```python
import torch

def _softmax(x, axis=-1):
    return torch.softmax(x, dim=axis)
def _gelu(x):
    return torch.nn.functional.gelu(x, approximate="tanh")
def _silu(x):
    return torch.nn.functional.silu(x)
def _sigmoid(x):
    return torch.sigmoid(x)
def _layernorm(x, axis=-1, eps=1e-5):
    m = x.mean(dim=axis, keepdim=True)
    v = x.var(dim=axis, keepdim=True, unbiased=False)
    return (x - m) / torch.sqrt(v + eps)
def _scatter_add(tgt, idx, src, axis=0):
    return tgt.clone().index_add_(axis, idx, src)
def _segment_sum(src, seg, n):
    out = torch.zeros((n,) + src.shape[1:], dtype=src.dtype)
    return out.index_add_(0, seg, src)
def _pad(x, pw):
    flat = tuple(v for pair in reversed(pw) for v in pair)
    return torch.nn.functional.pad(x, flat)

kernel_name = 'sequential_preLN__sliding_block_cached__mixer_channel_mlp__decode'

def setup_inputs():

    _w = (lambda a: (lambda t: t.to(torch.bfloat16) if t.is_floating_point() else t)(torch.as_tensor(a)))
    def _A_setup():
        B, Sq, D = 8, 1, 512
        Hq, Hkv, Sk, Dh = 32, 8, 4096, 128
        assert Hq % Hkv == 0, (Hq, Hkv)
        return {
            "x": _w((lambda *s: torch.randn(*s, dtype=torch.bfloat16) * 0.05)(B, Sq, D)),
            "k_cache": _w((lambda *s: torch.randn(*s, dtype=torch.bfloat16) * 3.2)(B, Hkv, Sk, Dh)),
            "v_cache": _w((lambda *s: torch.randn(*s, dtype=torch.bfloat16) * 0.4)(B, Hkv, Sk, Dh)),
            "wq": _w((lambda *s: torch.randn(*s, dtype=torch.bfloat16) * 3.2)(D, Hq * Dh) * (D ** -0.5)),
            "wo": _w((lambda *s: torch.randn(*s, dtype=torch.bfloat16) * 0.4)(Hq * Dh, D) * ((Hq * Dh) ** -0.5)),
        }
    _A_in = _A_setup()

    def _B_setup():
        B, S, D, F = 8, 1, 512, 1792
        return {
            "x": _w((lambda *s: torch.randn(*s, dtype=torch.bfloat16) * 0.05)(B, S, D)),
            "w1": _w((lambda *s: torch.randn(*s, dtype=torch.bfloat16) * 3.2)(D, F) * (D ** -0.5)),
            "b1": _w((lambda *s: torch.randn(*s, dtype=torch.bfloat16) * 1.6)(F)),
            "w2": _w((lambda *s: torch.randn(*s, dtype=torch.bfloat16) * 0.2)(F, D) * (F ** -0.5)),
            "b2": _w((lambda *s: torch.randn(*s, dtype=torch.bfloat16) * 0.4)(D)),
        }
    _B_in = _B_setup()

    return {
        "A_x": _A_in["x"],
        "A_k_cache": _A_in["k_cache"],
        "A_v_cache": _A_in["v_cache"],
        "A_wq": _A_in["wq"],
        "A_wo": _A_in["wo"],
        "B_x": _B_in["x"],
        "B_w1": _B_in["w1"],
        "B_b1": _B_in["b1"],
        "B_w2": _B_in["w2"],
        "B_b2": _B_in["b2"],
    }

def reference(A_x, A_k_cache, A_v_cache, A_wq, A_wo, B_x, B_w1, B_b1, B_w2, B_b2):
    def _A_ref(x, k_cache, v_cache, wq, wo):
        B, Sq, D = x.shape
        Hq, Dh = 32, 128
        Hkv, Sk = k_cache.shape[1], k_cache.shape[2]
        W = min(4096, max(256, Sk // 4))
        rep = Hq // Hkv
        q = (lambda x, *d: x.permute(*d))((x @ wq).reshape(B, Sq, Hq, Dh), 0, 2, 1, 3)
        k = (lambda x, n, axis: torch.repeat_interleave(x, n, dim=axis))(k_cache[:, :, Sk - W:, :], rep, axis=1)
        v = (lambda x, n, axis: torch.repeat_interleave(x, n, dim=axis))(v_cache[:, :, Sk - W:, :], rep, axis=1)
        scores = torch.einsum("bhqd,bhkd->bhqk", q, k) * (Dh ** -0.5)
        p = _softmax(scores, axis=-1)
        o = torch.einsum("bhqk,bhkd->bhqd", p, v)
        return (lambda x, *d: x.permute(*d))(o, 0, 2, 1, 3).reshape(B, Sq, Hq * Dh) @ wo

    def _B_ref(x, w1, b1, w2, b2):
        y = _layernorm(x, axis=-1)
        h = _gelu(torch.einsum("bsd,df->bsf", y, w1) + b1)
        return torch.einsum("bsf,fd->bsd", h, w2) + b2

    x = A_x
    h = x + _A_ref(_layernorm(x, axis=-1), A_k_cache, A_v_cache, A_wq, A_wo)
    h2 = h + _B_ref(_layernorm(h, axis=-1), B_w1, B_b1, B_w2, B_b2)
    return h2
```

```python
import re
KN = "sequential_preLN__sliding_block_cached__mixer_channel_mlp__decode_kernel"
SIZES = dict(x=8192, k=67108864, v=67108864, wq=4194304, wo=4194304, bx=8192, w1=1835008, b1=3584, w2=1835008, b2=1024,
             out=8192, dbg=256, ws=268435456)
KOFF = dict(x=0, k=8, v=16, wq=24, wo=32, bx=40, w1=48, b1=56, w2=64, b2=72, out=80, dbg=88, ws=96)

_REG = re.compile(r"^(-|abs\()?([vsa])(?:\[(\d+):(\d+)\]|(\d+))\)?$")
TRANS = ("v_exp_f32", "v_log_f32", "v_rcp_f32", "v_rsq_f32", "v_sqrt_f32", "v_sin_f32", "v_cos_f32")

def regs_of(op):
    op = op.strip()
    if op in ("vcc", "vcc_lo", "vcc_hi"): return {("s", 106), ("s", 107)}
    if op in ("exec", "exec_lo", "exec_hi"): return {("s", 126), ("s", 127)}
    if op == "m0": return {("s", 124)}
    m = _REG.match(op)
    if not m: return set()
    k = m.group(2)
    if m.group(3) is not None:
        return {(k, i) for i in range(int(m.group(3)), int(m.group(4)) + 1)}
    return {(k, int(m.group(5)))}

class Ins:
    def __init__(self, text):
        self.text = text
        t = text.split(";")[0].strip()
        parts = t.split(None, 1)
        self.mn = parts[0]
        rest = parts[1] if len(parts) > 1 else ""
        ops = [o.strip() for o in rest.split(",")] if rest else []
        mods = []
        if ops:
            joined = rest
            joined = re.sub(r"quad_perm:\[[^\]]*\]", "quad_perm", joined)
            joined = re.sub(r"op_sel(_hi)?:\[[^\]]*\]", "", joined)
            joined = re.sub(r"neg_(lo|hi):\[[^\]]*\]", "", joined)
            ops = [o.strip() for o in joined.split(",")]
            last = ops[-1].split()
            if last:
                ops[-1] = last[0]; mods = last[1:]
        self.ops = ops; self.mods = mods
        mn = self.mn
        self.is_mfma = mn.startswith("v_mfma")
        self.is_valu = mn.startswith("v_") and not self.is_mfma
        self.is_trans = any(mn.startswith(x) for x in TRANS)
        self.is_salu = mn.startswith("s_")
        self.is_vmem = mn.startswith("buffer_") or mn.startswith("global_")
        self.is_ds = mn.startswith("ds_")
        self.is_dpp = "_dpp" in mn or any(m.startswith(("row_", "quad_perm")) for m in mods)
        self.is_permlane = mn.startswith("v_permlane")
        self.is_readlane = mn.startswith(("v_readlane", "v_readfirstlane"))
        self.is_lds_dma = self.is_vmem and "lds" in mods
        R = [regs_of(o) for o in ops]
        w = set(); r = set()
        if self.is_vmem:
            if self.is_lds_dma:
                for x in R: r |= x
                r |= {("s", 124)}
            elif "_load" in mn:
                w |= R[0]
                for x in R[1:]: r |= x
            else:
                for x in R: r |= x
                if "atomic" in mn and "sc0" in mods: w |= R[0]
        elif self.is_ds:
            if mn.startswith(("ds_read", "ds_bpermute", "ds_permute", "ds_swizzle")) or "_rtn" in mn:
                w |= R[0]
                for x in R[1:]: r |= x
            else:
                for x in R: r |= x
        elif self.is_permlane:
            w |= R[0] | R[1]; r |= R[0] | R[1]
        elif self.is_valu or self.is_mfma:
            if mn in ("v_nop",): pass
            else:
                w |= R[0]
                start = 1
                if mn.startswith(("v_add_co", "v_sub_co", "v_addc_co", "v_subb_co", "v_div_scale", "v_mad_u64")):
                    w |= R[1]; start = 2
                for x in R[start:]: r |= x
                if mn.startswith(("v_fmac", "v_dot2c", "v_writelane")) or self.is_dpp: r |= R[0]
                if mn.startswith("v_cmpx"): w |= {("s", 126), ("s", 127)}
        elif self.is_salu:
            if mn.startswith(("s_cmp", "s_cbranch", "s_branch", "s_waitcnt", "s_nop", "s_barrier", "s_sleep", "s_setprio", "s_endpgm", "s_bitcmp")):
                for x in R: r |= x
            else:
                if R: w |= R[0]
                for x in R[1:]: r |= x
                if "saveexec" in mn: w |= {("s", 126), ("s", 127)}
        self.w = w; self.r = r
        if self.is_mfma:
            self.srcC = R[3]; self.srcAB = R[1] | R[2]
            self.passes = 8 if "32x32" in mn else 4
        self.states = 1
        if mn == "s_nop": self.states = int(ops[0], 0) + 1
        self.store_data = set()
        if self.is_vmem and ("store_dwordx4" in mn or "store_dwordx3" in mn):
            self.store_data = R[0] if mn.startswith("buffer_") else R[1]

def V(s): return {x for x in s if x[0] in "va"}
def S(s): return {x for x in s if x[0] == "s"}

def need(p, c):
    n = 0
    if p.is_valu:
        sw = S(p.w)
        if sw:
            if c.is_vmem and sw & c.r: n = max(n, 5)
            if (c.is_valu or c.is_mfma) and sw & c.r:
                n = max(n, 4 if (c.mn.startswith(("v_readlane", "v_writelane")) ) else 2)
            if c.mn.startswith("v_div_fmas"): n = max(n, 4)
            if c.is_salu and sw & c.r: n = max(n, 1)
        vw = V(p.w)
        if vw & c.r:
            if c.is_dpp: n = max(n, 2)
            if c.is_permlane: n = max(n, 2)
            if c.is_readlane: n = max(n, 1)
            if c.is_mfma: n = max(n, 2)
            if p.is_trans and (c.is_valu and not c.is_trans): n = max(n, 1)
            if p.is_trans and (c.is_vmem or c.is_ds): n = max(n, 1)
            if "sdwa" in p.mn and c.is_valu: n = max(n, 1)
    if p.is_salu and ("s", 124) in p.w and (c.is_lds_dma): n = max(n, 1)
    if p.is_mfma:
        D = p.w
        big = {4: 8, 8: 12}[p.passes]
        if c.is_mfma:
            if D & c.srcAB: n = max(n, big)
            if D & c.srcC and D != c.srcC: n = max(n, {4: 6, 8: 10}[p.passes])
            if D & c.w and not (D & c.srcC): n = max(n, big)
        else:
            if D & (c.r | c.w): n = max(n, big)
        if c.is_valu and p.srcC & c.w: n = max(n, {4: 3, 8: 7}[p.passes])
    if p.store_data and (p.store_data & c.w): n = max(n, 2)
    return n

class Asm:
    def __init__(self, autonop=True):
        self.items = []
        self.nlabel = 0
        self.autonop = autonop
    def __call__(self, s):
        for l in s.strip("\n").split("\n"):
            l = l.strip()
            if not l: continue
            if l.endswith(":") or l.startswith((".", ";")):
                self.items.append(l)
            else:
                self.items.append(Ins(l))
    def label(self, name):
        self.items.append(name + ":")
    def newlabel(self, p="L"):
        self.nlabel += 1
        return f"{p}_{self.nlabel}"
    def text(self):
        out = []
        hist = []
        nn = 0
        for it in self.items:
            if isinstance(it, str):
                out.append(it if it.endswith(":") else "    " + it)
                continue
            if self.autonop:
                req = 0
                dist = 0
                for p in reversed(hist):
                    k = need(p, it) - dist
                    if k > req: req = k
                    dist += p.states
                    if dist > 20: break
                if req > 0:
                    nop = Ins(f"s_nop {req-1}")
                    out.append(f"    s_nop {req-1}")
                    hist.append(nop); nn += 1
            out.append("    " + it.text)
            hist.append(it)
            if len(hist) > 40: hist = hist[-40:]
        return "\n".join(out) + "\n"

def wrap(body, grid, block, lds, vgpr=256, agpr=0, sgpr=102, header_comment=""):
    acc = (vgpr + 3) // 4 * 4
    nfv = acc + agpr if agpr else vgpr
    return f"""{header_comment}; @launch grid=({grid},1,1) block=({block},1,1) lds={lds}
.amdgcn_target "amdgcn-amd-amdhsa--gfx950"
.text
.globl {KN}
.p2align 8
.type {KN},@function
{KN}:
{body}
.section .rodata,"a"
.p2align 6
.amdhsa_kernel {KN}
  .amdhsa_next_free_vgpr {nfv}
  .amdhsa_next_free_sgpr {sgpr}
  .amdhsa_accum_offset {acc}
  .amdhsa_group_segment_fixed_size 0
  .amdhsa_kernarg_size 104
  .amdhsa_user_sgpr_count 2
  .amdhsa_user_sgpr_kernarg_segment_ptr 1
  .amdhsa_system_sgpr_workgroup_id_x 1
  .amdhsa_float_denorm_mode_32 3
.end_amdhsa_kernel
"""
```

```python
import sys
from asmgen import *

out = sys.argv[1]
opts = dict(kv.split("=") for kv in sys.argv[2:])
STAMPS = int(opts.get("stamps", 0))
NT = "nt" if int(opts.get("nt", 1)) else ""
SL_MLP = int(opts.get("sl_mlp", 40))
SL_RED = int(opts.get("sl_red", 40))
SL_RED2 = int(opts.get("sl_red2", 16))
SL_POLL = int(opts.get("sl_poll", 2))

WS_EPOCH = 0
WS_ZF = 256
WS_ST = 4096
WS_HACC = 32768
WS_Q = 65536
WS_OP = 0x40000
WS_OUTP = 0x140000
WS_STAMP = 128 << 20
NMLP = 28

L_V = 0
L_AUX = 65536
SC = 131072
F_TAG = SC + 0
F_QRDY = SC + 4
F_LN1 = SC + 16
F_A = SC + 32
F_B = SC + 48
F_C = SC + 64
F_D = SC + 80
F_ATT = SC + 96
C_ONE = SC + 112
C_ZERO = SC + 116
L_MX = SC + 128
L_SUM = SC + 192
L_QL = SC + 256
L_P = SC + 1280; P_STR = 528
L_OL = SC + 3456; OL_STR = 272
L_H1 = SC + 5632; H1_STR = 144
L_RL = SC + 6784; RL_STR = 144
L_Y = SC + 11392; Y_STR = 1040
L_RED = SC + 19712
LDS_BYTES = SC + 20480

sW, sHKV, sB, sS = 3, 4, 5, 6
SRD = dict(ws=8, k=12, v=16, x=20, wq=24, wo=28, w1=32, w2=36, b1=40, b2=44, out=48)
sTAG, sBUD = 52, 53
PTR = dict(x=64, k=66, v=68, wq=70, wo=72, bx=74, w1=76, b1=78, w2=80, b2=82, out=84, dbg=86, ws=88)
LOG2E = 0x3FB8AA3B
SCALE = 0x3DB504F3

a = Asm()

def srd(name):
    d = SRD[name]; p = PTR[name]
    a(f"s_mov_b32 s{d}, s{p}")
    a(f"s_and_b32 s{d+1}, s{p+1}, 0xffff")
    a(f"s_mov_b32 s{d+2}, {SIZES[name]}")
    a(f"s_mov_b32 s{d+3}, 0x20000")
def R(name): d = SRD[name]; return f"s[{d}:{d+3}]"

nstamp = [0]
def stamp(i):
    if not STAMPS: return
    a("s_memrealtime s[90:91]")
    a("s_waitcnt lgkmcnt(0)")
    a(f"v_mov_b32 v{240+i}, s90")

def budget():
    a(f"s_sub_u32 s{sBUD}, s{sBUD}, 1")
    a("s_cbranch_scc1 L_END")

def lds_wait4(flag, vt, vbase, sleep=0):
    L = a.newlabel("W4")
    a.label(L)
    a(f"ds_read_b128 v[{vt}:{vt+3}], v{vbase} offset:{flag-SC}")
    budget()
    a("s_waitcnt lgkmcnt(0)")
    a(f"v_add3_u32 v{vt}, v{vt}, v{vt+1}, v{vt+2}")
    a(f"v_add_u32 v{vt}, v{vt}, v{vt+3}")
    a(f"v_readfirstlane_b32 s54, v{vt}")
    if sleep: a(f"s_sleep {sleep}")
    a("s_cmp_lg_u32 s54, 4")
    a(f"s_cbranch_scc1 {L}")

def rnd1(v, t):
    a(f"v_cvt_pk_bf16_f32 v{t}, v{v}, v{v}")
    a(f"v_lshlrev_b32 v{v}, 16, v{t}")
def rnd2(v0, v1, t):
    a(f"v_cvt_pk_bf16_f32 v{t}, v{v0}, v{v1}")
    a(f"v_lshlrev_b32 v{v0}, 16, v{t}")
    a(f"v_and_b32 v{v1}, 0xffff0000, v{t}")
def unpack(src, lo, hi):
    a(f"v_lshlrev_b32 v{lo}, 16, v{src}")
    a(f"v_and_b32 v{hi}, 0xffff0000, v{src}")

DPPM = "row_mask:0xf bank_mask:0xf"
def wave_sum2(va, vb, sa, sb):
    for mod in ("quad_perm:[1,0,3,2]", "quad_perm:[2,3,0,1]", "row_half_mirror", "row_mirror"):
        a(f"v_add_f32_dpp v{va}, v{va}, v{va} {mod} {DPPM}")
        a(f"v_add_f32_dpp v{vb}, v{vb}, v{vb} {mod} {DPPM}")
    a(f"v_add_f32_dpp v{va}, v{va}, v{va} row_bcast:15 row_mask:0xa bank_mask:0xf")
    a(f"v_add_f32_dpp v{vb}, v{vb}, v{vb} row_bcast:15 row_mask:0xa bank_mask:0xf")
    a(f"v_add_f32_dpp v{va}, v{va}, v{va} row_bcast:31 row_mask:0xc bank_mask:0xf")
    a(f"v_add_f32_dpp v{vb}, v{vb}, v{vb} row_bcast:31 row_mask:0xc bank_mask:0xf")
    a(f"v_readlane_b32 s{sa}, v{va}, 63")
    a(f"v_readlane_b32 s{sb}, v{vb}, 63")

def layernorm(e, t, last_pack=None):
    a(f"v_readfirstlane_b32 s55, v{e}")
    for i in range(8):
        a(f"v_subrev_f32 v{t+i}, s55, v{e+i}")
    a(f"v_add_f32 v{t+8}, v{t}, v{t+1}")
    a(f"v_mul_f32 v{t+9}, v{t}, v{t}")
    a(f"v_fmac_f32 v{t+9}, v{t+1}, v{t+1}")
    for i in range(2, 8):
        a(f"v_add_f32 v{t+8}, v{t+8}, v{t+i}")
        a(f"v_fmac_f32 v{t+9}, v{t+i}, v{t+i}")
    wave_sum2(t+8, t+9, 56, 57)
    a(f"v_mov_b32 v{t+2}, 0x3b000000")
    a(f"v_mul_f32 v{t}, s56, v{t+2}")
    a(f"v_mul_f32 v{t+1}, s57, v{t+2}")
    a(f"v_fma_f32 v{t+1}, -v{t}, v{t}, v{t+1}")
    a(f"v_max_f32 v{t+1}, 0, v{t+1}")
    a(f"v_add_f32 v{t}, s55, v{t}")
    rnd2(t, t+1, t+2)
    a(f"v_add_f32 v{t+1}, 0x3727c5ac, v{t+1}")
    rnd1(t+1, t+2)
    a(f"v_sqrt_f32 v{t+1}, v{t+1}")
    rnd1(t+1, t+2)
    a(f"v_rcp_f32 v{t+2}, v{t+1}")
    a(f"v_fma_f32 v{t+3}, -v{t+1}, v{t+2}, 1.0")
    a(f"v_fma_f32 v{t+2}, v{t+3}, v{t+2}, v{t+2}")
    for i in range(8):
        a(f"v_sub_f32 v{e+i}, v{e+i}, v{t}")
    for i in range(0, 8, 2):
        rnd2(e+i, e+i+1, t+4+i//2)
    for i in range(8):
        a(f"v_mul_f32 v{t+4+i}, v{e+i}, v{t+2}")
    for i in range(8):
        a(f"v_fma_f32 v{e+i}, -v{t+4+i}, v{t+1}, v{e+i}")
    for i in range(8):
        a(f"v_fma_f32 v{e+i}, v{e+i}, v{t+2}, v{t+4+i}")
    if last_pack is not None:
        for i in range(0, 8, 2):
            a(f"v_cvt_pk_bf16_f32 v{last_pack+i//2}, v{e+i}, v{e+i+1}")
    else:
        for i in range(0, 8, 2):
            rnd2(e+i, e+i+1, t+4+i//2)

vLANE, vZ, vG, vC, vSC, vONE = 0, 1, 2, 3, 4, 5

if STAMPS:
    a("s_memrealtime s[92:93]")
a("s_cmp_ge_u32 s2, 256")
a("s_cbranch_scc1 L_END")
a("s_load_dwordx16 s[64:79], s[0:1], 0")
a("s_load_dwordx8 s[80:87], s[0:1], 64")
a("s_load_dwordx2 s[88:89], s[0:1], 96")
a("v_lshrrev_b32 v1, 6, v0")
a("v_and_b32 v0, 63, v0")
a(f"v_readfirstlane_b32 s{sW}, v1")
a(f"v_mov_b32 v{vZ}, 0")
a(f"v_lshrrev_b32 v{vG}, 4, v0")
a(f"v_and_b32 v{vC}, 15, v0")
a(f"v_mov_b32 v{vSC}, {SC}")
a(f"v_mov_b32 v{vONE}, 1")
a(f"s_and_b32 s{sHKV}, s2, 7")
a(f"s_lshr_b32 s{sB}, s2, 5")
a(f"s_bfe_u32 s{sS}, s2, 0x20003")
a(f"s_mov_b32 s{sBUD}, 400000")
if STAMPS:
    for i in range(12): a(f"v_mov_b32 v{240+i}, 0")
a(f"s_cmp_ge_u32 s{sW}, 4")
a("s_cbranch_scc1 L_AUX")

a("s_setprio 2")
a("s_barrier")
a(f"s_lshl_b32 s58, s{sB}, 3")
a(f"s_add_u32 s58, s58, s{sHKV}")
a("s_lshl_b32 s58, s58, 20")
a(f"s_lshl_b32 s59, s{sS}, 16")
a("s_add_u32 s58, s58, s59")
a("s_add_u32 s58, s58, 786432")
a(f"s_lshl_b32 s59, s{sW}, 14")
a("s_add_u32 s59, s59, s58")
vKOFF, vVOFF, vX = 6, 7, 8
a(f"v_lshlrev_b32 v{vKOFF}, 8, v{vC}")
a(f"v_lshl_add_u32 v{vKOFF}, v{vG}, 4, v{vKOFF}")
a(f"v_lshrrev_b32 v{vVOFF}, 2, v0")
a(f"v_lshlrev_b32 v{vVOFF}, 8, v{vVOFF}")
a("v_and_b32 v12, 3, v0")
a(f"v_lshl_add_u32 v{vVOFF}, v12, 4, v{vVOFF}")
a(f"s_lshl_b32 s60, s{sW}, 6")
a(f"v_add_u32 v{vVOFF}, s60, v{vVOFF}")
a("s_waitcnt lgkmcnt(0)")
if STAMPS:
    a("v_mov_b32 v240, s92")
srd("k"); srd("v"); srd("x"); srd("ws")
a("v_lshlrev_b32 v12, 4, v0")
a(f"s_lshl_b32 s60, s{sW}, 10")
a(f"buffer_load_dwordx4 v[{vX}:{vX+3}], v12, {R('x')}, s60 offen")
vK = 16
for t in range(4):
    for kk in range(4):
        r = vK + (t*4+kk)*4
        a(f"buffer_load_dwordx4 v[{r}:{r+3}], v{vKOFF}, {R('k')}, s59 offen offset:{kk*64} {NT}")
    if t < 3: a("s_add_u32 s59, s59, 4096")
a(f"s_lshl_b32 s60, s{sW}, 14")
a(f"s_add_u32 m0, s60, {L_V}")
a("s_mov_b32 s59, s58")
for i in range(16):
    a(f"buffer_load_dwordx4 v{vVOFF}, {R('v')}, s59 offen {NT} lds")
    if i < 15:
        a("s_add_u32 m0, m0, 1024")
        a("s_add_u32 s59, s59, 4096")
stamp(1)
Lq = a.newlabel("WQ")
a.label(Lq)
a(f"ds_read_b64 v[12:13], v{vSC} offset:{F_TAG-SC}")
budget()
a("s_waitcnt lgkmcnt(0)")
a("v_readfirstlane_b32 s54, v13")
a(f"v_readfirstlane_b32 s{sTAG}, v12")
a("s_sleep 1")
a("s_cmp_eq_u32 s54, 0")
a(f"s_cbranch_scc1 {Lq}")
stamp(2)
vQ = 80
a("v_and_b32 v12, 3, v0")
a("v_lshlrev_b32 v12, 8, v12")
a(f"v_lshl_add_u32 v12, v{vG}, 4, v12")
a(f"v_add_u32 v12, {L_QL}, v12")
for kk in range(4):
    a(f"ds_read_b128 v[{vQ+kk*4}:{vQ+kk*4+3}], v12 offset:{kk*64}")
vS = 96
a("s_waitcnt lgkmcnt(0)")
for t in range(4):
    a(f"s_waitcnt vmcnt({(3-t)*4+16})")
    for kk in range(4):
        r = vK + (t*4+kk)*4
        c = "0" if kk == 0 else f"v[{vS+t*4}:{vS+t*4+3}]"
        a(f"v_mfma_f32_16x16x32_bf16 v[{vS+t*4}:{vS+t*4+3}], v[{r}:{r+3}], v[{vQ+kk*4}:{vQ+kk*4+3}], {c}")
a("s_mov_b32 s94, 0x00f000f0"); a("s_mov_b32 s95, 0x00f000f0")
a("s_mov_b32 s96, 0x0f000f00"); a("s_mov_b32 s97, 0x0f000f00")
a("s_mov_b32 s98, 0xf000f000"); a("s_mov_b32 s99, 0xf000f000")
vE = 112
for i in range(4):
    a(f"v_cndmask_b32 v{vE+i}, v{vS+i}, v{vS+4+i}, s[94:95]")
for i in range(4):
    a(f"v_cndmask_b32 v{vE+i}, v{vE+i}, v{vS+8+i}, s[96:97]")
for i in range(4):
    a(f"v_cndmask_b32 v{vE+i}, v{vE+i}, v{vS+12+i}, s[98:99]")
rnd2(vE, vE+1, 116); rnd2(vE+2, vE+3, 117)
a(f"s_mov_b32 s55, {SCALE}")
for i in range(4):
    a(f"v_mul_f32 v{vE+i}, s55, v{vE+i}")
rnd2(vE, vE+1, 116); rnd2(vE+2, vE+3, 117)
vM = 118
a(f"v_max_f32 v{vM}, v{vE}, v{vE+1}")
a(f"v_max3_f32 v{vM}, v{vM}, v{vE+2}, v{vE+3}")
def head_reduce(v, t, op):
    a(f"v_{op}_f32_dpp v{v}, v{v}, v{v} row_ror:4 {DPPM}")
    a(f"v_{op}_f32_dpp v{v}, v{v}, v{v} row_ror:8 {DPPM}")
    a(f"v_mov_b32 v{t}, v{v}")
    a(f"v_permlane16_swap_b32 v{v}, v{t}")
    a(f"v_{op}_f32 v{v}, v{v}, v{t}")
    a(f"v_mov_b32 v{t}, v{v}")
    a(f"v_permlane32_swap_b32 v{v}, v{t}")
    a(f"v_{op}_f32 v{v}, v{v}, v{t}")
head_reduce(vM, 119, "max")
a("v_and_b32 v12, 3, v0")
a("v_lshlrev_b32 v12, 4, v12")
a(f"v_add_u32 v12, {SC}, v12")
a(f"s_lshl_b32 s60, s{sW}, 2")
a("v_add_u32 v13, s60, v12")
a(f"v_add_u32 v14, s60, v{vSC}")
a(f"ds_write_b32 v13, v{vM} offset:{L_MX-SC}")
a(f"ds_write_b32 v14, v{vONE} offset:{F_A-SC}")
lds_wait4(F_A, 120, vSC)
a(f"ds_read_b128 v[120:123], v12 offset:{L_MX-SC}")
a("s_waitcnt lgkmcnt(0)")
a(f"v_max3_f32 v{vM}, v120, v121, v122")
a(f"v_max_f32 v{vM}, v{vM}, v123")
a(f"s_mov_b32 s55, {LOG2E}")
for i in range(4):
    a(f"v_sub_f32 v{vE+i}, v{vE+i}, v{vM}")
for i in range(4):
    a(f"v_mul_f32 v{vE+i}, s55, v{vE+i}")
for i in range(4):
    a(f"v_exp_f32 v{vE+i}, v{vE+i}")
vL = 119
a(f"v_add_f32 v{vL}, v{vE}, v{vE+1}")
a(f"v_add_f32 v120, v{vE+2}, v{vE+3}")
a(f"v_add_f32 v{vL}, v{vL}, v120")
a(f"v_cvt_pk_bf16_f32 v116, v{vE}, v{vE+1}")
a(f"v_cvt_pk_bf16_f32 v117, v{vE+2}, v{vE+3}")
a("v_and_b32 v15, 3, v0")
a(f"v_mul_u32_u24 v15, {P_STR}, v15")
a(f"v_add_u32 v15, {L_P}, v15")
a("v_bfe_u32 v120, v0, 2, 2")
a("v_lshlrev_b32 v120, 5, v120")
a(f"v_lshl_add_u32 v120, v{vG}, 3, v120")
a(f"s_lshl_b32 s60, s{sW}, 7")
a("v_add3_u32 v120, v120, s60, v15")
a("ds_write_b64 v120, v[116:117]")
head_reduce(vL, 120, "add")
a(f"ds_write_b32 v13, v{vL} offset:{L_SUM-SC}")
a(f"ds_write_b32 v14, v{vONE} offset:{F_B-SC}")
lds_wait4(F_B, 120, vSC)
a(f"ds_read_b128 v[120:123], v12 offset:{L_SUM-SC}")
vP = 16
a(f"v_lshl_add_u32 v15, v{vG}, 4, v15")
for kk in range(8):
    a(f"ds_read_b128 v[{vP+kk*4}:{vP+kk*4+3}], v15 offset:{kk*64}")
a("s_waitcnt lgkmcnt(8)")
a(f"v_add_f32 v{vL}, v120, v121")
a("v_add_f32 v122, v122, v123")
a(f"v_add_f32 v{vL}, v{vL}, v122")
stamp(3)
a(f"s_lshl_b32 s60, s{sHKV}, 2")
a("v_and_b32 v12, 3, v0")
a("v_add_u32 v12, s60, v12")
a("s_lshr_b32 s60, s2, 3")
a("v_lshlrev_b32 v12, 5, v12")
a("v_add_u32 v12, s60, v12")
a("v_lshlrev_b32 v13, 4, v12")
a("v_lshlrev_b32 v12, 10, v12")
a("v_bfe_u32 v14, v0, 3, 1")
a("v_lshl_add_u32 v12, v14, 7, v12")
a(f"v_lshl_add_u32 v12, v{vG}, 5, v12")
a("v_bfe_u32 v14, v0, 2, 1")
a("v_lshl_add_u32 v12, v14, 4, v12")
a(f"s_lshl_b32 s60, s{sW}, 8")
a(f"s_add_u32 s60, s60, {WS_OP}")
a(f"v_mov_b32 v120, v{vM}")
a(f"v_mov_b32 v121, s{sTAG}")
a(f"v_mov_b32 v122, v{vL}")
a(f"v_mov_b32 v123, s{sTAG}")
a("v_bfe_u32 v14, v0, 2, 2")
a(f"v_lshl_add_u32 v14, v{vG}, 3, v14")
a("v_lshlrev_b32 v14, 6, v14")
a("v_and_b32 v15, 3, v0")
a("v_lshl_add_u32 v14, v15, 3, v14")
a(f"s_lshl_b32 s61, s{sW}, 14")
a("v_add_u32 v14, s61, v14")
vA = 48
vO = 96
for kk in range(8):
    a(f"s_waitcnt vmcnt({14-2*kk})")
    base = vA + (kk % 4)*8
    for dt in range(2):
        for hh in range(2):
            r = base + dt*4 + hh*2
            a(f"ds_read_b64_tr_b16 v[{r}:{r+1}], v14 offset:{kk*2048 + hh*256 + dt*32}")
    a("s_waitcnt lgkmcnt(0)")
    for dt in range(2):
        c = "0" if kk == 0 else f"v[{vO+dt*4}:{vO+dt*4+3}]"
        a(f"v_mfma_f32_16x16x32_bf16 v[{vO+dt*4}:{vO+dt*4+3}], v[{base+dt*4}:{base+dt*4+3}], v[{vP+kk*4}:{vP+kk*4+3}], {c}")
stamp(4)
a(f"v_mov_b32 v105, s{sTAG}")
a(f"v_mov_b32 v107, s{sTAG}")
a(f"v_cndmask_b32 v104, v{vO}, v{vO+2}, s[94:95]")
a(f"v_cndmask_b32 v106, v{vO+1}, v{vO+3}, s[94:95]")
a(f"v_cndmask_b32 v104, v104, v{vO+4}, s[96:97]")
a(f"v_cndmask_b32 v106, v106, v{vO+5}, s[96:97]")
a(f"v_cndmask_b32 v104, v104, v{vO+6}, s[98:99]")
a(f"v_cndmask_b32 v106, v106, v{vO+7}, s[98:99]")
a(f"buffer_store_dwordx4 v[104:107], v12, {R('ws')}, s60 offen sc1")
a(f"s_cmp_lg_u32 s{sW}, 0")
a("s_cbranch_scc1 L_B_NOST")
a("s_mov_b64 exec, 15")
a(f"s_mov_b32 s61, {WS_ST}")
a(f"buffer_store_dwordx4 v[120:123], v13, {R('ws')}, s61 offen sc1")
a("s_mov_b64 exec, -1")
a.label("L_B_NOST")
a(f"s_lshl_b32 s60, s{sW}, 2")
a(f"v_add_u32 v14, s60, v{vSC}")
a(f"ds_write_b32 v14, v{vONE} offset:{F_ATT-SC}")
a(f"s_cmp_ge_u32 s{sS}, 2")
a("s_cbranch_scc1 L_B_NOTWO")

a(f"s_lshl_b32 s58, s{sB}, 1")
a(f"s_add_u32 s58, s58, s{sS}")
a("s_and_b32 s58, s58, 3")
a(f"s_lshl_b32 s59, s{sHKV}, 2")
a("s_add_u32 s58, s58, s59")
a("s_lshl_b32 s59, s58, 9")
a(f"s_add_u32 s59, s59, {WS_ST}")
a("s_lshl_b32 s58, s58, 15")
a(f"s_lshl_b32 s60, s{sW}, 13")
a("s_add_u32 s58, s58, s60")
a(f"s_add_u32 s58, s58, {WS_OP}")
a("s_add_u32 s60, s58, 4096")
a("v_lshlrev_b32 v12, 4, v0")
a("v_and_b32 v13, 31, v0")
a("v_lshlrev_b32 v13, 4, v13")
a("s_waitcnt vmcnt(0)")
stamp(5)
vD = 16
Lg = a.newlabel("G1")
a.label(Lg)
a(f"buffer_load_dwordx4 v[48:51], v13, {R('ws')}, s59 offen sc1")
for i in range(8):
    a(f"buffer_load_dwordx4 v[{vD+i*4}:{vD+i*4+3}], v12, {R('ws')}, {'s58' if i < 4 else 's60'} offen offset:{(i%4)*1024} sc1")
budget()
a("s_waitcnt vmcnt(8)")
a(f"v_cmp_eq_u32 s[56:57], s{sTAG}, v49")
a(f"v_cmp_eq_u32 vcc, s{sTAG}, v51")
a("s_and_b64 s[56:57], s[56:57], vcc")
a(f"v_max_f32_dpp v52, v48, v48 quad_perm:[1,0,3,2] {DPPM}")
a(f"v_max_f32_dpp v52, v52, v52 quad_perm:[2,3,0,1] {DPPM}")
a("v_sub_f32 v52, v48, v52")
a(f"v_mul_f32 v52, {LOG2E}, v52")
a("v_exp_f32 v52, v52")
a("v_mul_f32 v53, v52, v50")
a(f"v_add_f32_dpp v53, v53, v53 quad_perm:[1,0,3,2] {DPPM}")
a(f"v_add_f32_dpp v53, v53, v53 quad_perm:[2,3,0,1] {DPPM}")
a("v_rcp_f32 v53, v53")
a("v_mul_f32 v52, v52, v53")
a(f"s_lshl_b32 s61, s{sW}, 3")
for i in range(8):
    a(f"v_readlane_b32 s{64+i}, v52, s61")
    if i < 7: a("s_add_u32 s61, s61, 1")
for i in range(8):
    a(f"s_waitcnt vmcnt({7-i})")
    a(f"v_cmp_eq_u32 vcc, s{sTAG}, v{vD+i*4+1}")
    a("s_and_b64 s[56:57], s[56:57], vcc")
    a(f"v_cmp_eq_u32 vcc, s{sTAG}, v{vD+i*4+3}")
    a("s_and_b64 s[56:57], s[56:57], vcc")
    bb, ss = i // 4, i % 4
    if ss == 0:
        a(f"v_mul_f32 v{54+bb*2}, s{64+i}, v{vD+i*4}")
        a(f"v_mul_f32 v{55+bb*2}, s{64+i}, v{vD+i*4+2}")
    else:
        a(f"v_fmac_f32 v{54+bb*2}, s{64+i}, v{vD+i*4}")
        a(f"v_fmac_f32 v{55+bb*2}, s{64+i}, v{vD+i*4+2}")
a("s_cmp_eq_u64 s[56:57], -1")
a(f"s_cbranch_scc1 {Lg}_ok")
a(f"s_sleep {SL_POLL}")
a(f"s_branch {Lg}")
a.label(f"{Lg}_ok")
a("v_cvt_pk_bf16_f32 v54, v54, v55")
a("v_cvt_pk_bf16_f32 v56, v56, v57")
a(f"s_mul_i32 s60, s{sW}, {2*OL_STR}")
a(f"s_add_u32 s60, s60, {L_OL}")
a("v_lshl_add_u32 v12, v0, 2, s60")
a("ds_write_b32 v12, v54")
a(f"ds_write_b32 v12, v56 offset:{OL_STR}")
a(f"ds_write_b32 v14, v{vONE} offset:{F_C-SC}")
stamp(6)
a("s_branch L_FIN")

a.label("L_B_NOTWO")
a(f"s_cmp_eq_u32 s{sS}, 3")
a("s_cbranch_scc1 L_B_RED")
a(f"s_lshl_b32 s58, s{sB}, 3")
a(f"s_add_u32 s58, s58, s{sHKV}")
a(f"s_cmp_ge_u32 s58, {NMLP}")
a("s_cbranch_scc1 L_FIN")
a("s_branch L_MLP_LN")

a.label("L_B_RED")
a(f"s_cmp_lg_u32 s{sW}, 0")
a("s_cbranch_scc1 L_FIN")
srd("b2"); srd("out")
a("v_and_b32 v12, 31, v0")
a("v_lshlrev_b32 v13, 2, v12")
a(f"s_lshl_b32 s58, s{sHKV}, 7")
a(f"s_lshl_b32 s59, s{sB}, 10")
a("s_add_u32 s59, s59, s58")
a(f"buffer_load_dword v16, v13, {R('x')}, s59 offen")
a(f"buffer_load_dword v17, v13, {R('b2')}, s58 offen")
def zflag_wait(vt):
    L = a.newlabel("ZF")
    a("v_and_b32 v%d, 7, v0" % vt)
    a(f"v_lshlrev_b32 v{vt}, 3, v{vt}")
    a(f"s_mov_b32 s60, {WS_ZF}")
    a.label(L)
    a(f"buffer_load_dword v{vt+1}, v{vt}, {R('ws')}, s60 offen sc1")
    budget()
    a("s_waitcnt vmcnt(0)")
    a(f"v_cmp_eq_u32 vcc, s{sTAG}, v{vt+1}")
    a("s_cmp_eq_u64 vcc, -1")
    a(f"s_cbranch_scc0 {L}")
zflag_wait(18)
a("v_lshrrev_b32 v18, 3, v0")
a("v_min_u32 v18, 2, v18")
a("v_and_b32 v19, 7, v0")
a("v_lshlrev_b32 v20, 10, v18")
a("v_lshl_add_u32 v20, v19, 4, v20")
a("v_lshlrev_b32 v21, 7, v18")
a("v_lshl_add_u32 v21, v19, 4, v21")
a(f"v_add_u32 v21, {L_RED}, v21")
a(f"s_mul_i32 s60, s{sB}, 3072")
a(f"s_lshl_b32 s61, s{sHKV}, 7")
a("s_add_u32 s60, s60, s61")
a(f"s_add_u32 s60, s60, {WS_HACC}")
for q in range(2):
    a(f"v_lshlrev_b32 v22, 1, v12")
    if q: a("v_add_u32 v22, 1, v22")
    a("v_and_b32 v23, 7, v22")
    a("v_mul_u32_u24 v24, 11, v23")
    a("v_lshrrev_b32 v24, 5, v24")
    a("v_mul_u32_u24 v25, 3, v24")
    a("v_sub_u32 v25, v23, v25")
    a("v_lshrrev_b32 v22, 3, v22")
    a("v_lshl_add_u32 v22, v24, 3, v22")
    a("v_lshlrev_b32 v22, 4, v22")
    a("v_lshl_add_u32 v22, v25, 2, v22")
    a(f"v_add_u32 v{26+q}, {L_RED}, v22")
a("s_mov_b32 s61, 0x42000000")
a(f"s_sleep {SL_RED}")
Lh = a.newlabel("RH")
a.label(Lh)
a(f"buffer_load_dwordx4 v[28:31], v20, {R('ws')}, s60 offen sc1")
budget()
a("s_waitcnt vmcnt(0)")
a("v_cmp_eq_f32 vcc, s61, v31")
a("s_cmp_eq_u64 vcc, -1")
a(f"s_cbranch_scc1 {Lh}_ok")
a(f"s_sleep {SL_POLL+2}")
a(f"s_branch {Lh}")
a.label(f"{Lh}_ok")
stamp(5)
a("ds_write_b128 v21, v[28:31]")
a("ds_read_b32 v28, v26")
a("ds_read_b32 v29, v27")
unpack(16, 30, 31)
unpack(17, 32, 33)
a("s_waitcnt lgkmcnt(0)")
rnd2(28, 29, 34)
a("v_add_f32 v28, v28, v30")
a("v_add_f32 v29, v29, v31")
rnd2(28, 29, 34)
a(f"s_lshl_b32 s60, s{sB}, 3")
a(f"s_add_u32 s60, s60, s{sHKV}")
a(f"s_mul_i32 s60, s60, {NMLP*512}")
a(f"s_add_u32 s60, s60, {WS_OUTP}")
a("s_add_u32 s61, s60, 4096")
a("s_add_u32 s62, s60, 8192")
a("s_add_u32 s63, s60, 12288")
a("v_lshlrev_b32 v12, 4, v0")
a(f"s_sleep {SL_RED2}")
Lr = a.newlabel("RP")
a.label(Lr)
vD = 40
for i in range(14):
    a(f"buffer_load_dwordx4 v[{vD+i*4}:{vD+i*4+3}], v12, {R('ws')}, s{60+i//4} offen offset:{(i%4)*1024} sc1")
budget()
a("s_mov_b64 s[56:57], -1")
for i in range(14):
    a(f"s_waitcnt vmcnt({13-i})")
    a(f"v_cmp_eq_u32 vcc, s{sTAG}, v{vD+i*4+1}")
    a("s_and_b64 s[56:57], s[56:57], vcc")
    a(f"v_cmp_eq_u32 vcc, s{sTAG}, v{vD+i*4+3}")
    a("s_and_b64 s[56:57], s[56:57], vcc")
    if i == 0:
        a(f"v_mov_b32 v34, v{vD}")
        a(f"v_mov_b32 v35, v{vD+2}")
    else:
        a(f"v_add_f32 v34, v34, v{vD+i*4}")
        a(f"v_add_f32 v35, v35, v{vD+i*4+2}")
a("s_cmp_eq_u64 s[56:57], -1")
a(f"s_cbranch_scc1 {Lr}_ok")
a(f"s_sleep {SL_POLL}")
a(f"s_branch {Lr}")
a.label(f"{Lr}_ok")
a("v_mov_b32 v36, v34")
a("v_mov_b32 v37, v35")
a("v_permlane32_swap_b32 v34, v36")
a("v_permlane32_swap_b32 v35, v37")
a("v_add_f32 v34, v34, v36")
a("v_add_f32 v35, v35, v37")
rnd2(34, 35, 36)
a("v_add_f32 v34, v34, v32")
a("v_add_f32 v35, v35, v33")
rnd2(34, 35, 36)
a("v_add_f32 v34, v34, v28")
a("v_add_f32 v35, v35, v29")
a("v_cvt_pk_bf16_f32 v34, v34, v35")
a("s_mov_b32 exec_hi, 0")
a(f"buffer_store_dword v34, v13, {R('out')}, s59 offen")
a("s_mov_b64 exec, -1")
stamp(6)
a("s_cmp_lg_u32 s2, 24")
a("s_cbranch_scc1 L_FIN")
a(f"v_mov_b32 v34, s{sTAG}")
a("s_mov_b64 exec, 1")
a(f"buffer_store_dword v34, v{vZ}, {R('ws')}, 0 offen sc1")
a("s_mov_b64 exec, -1")
a("s_branch L_FIN")

a.label("L_AUX")
sAW = 7
a(f"s_sub_u32 s{sAW}, s{sW}, 4")
a(f"s_cmp_lg_u32 s{sAW}, 0")
a("s_cbranch_scc1 L_AUX_NZ")
a("s_setprio 3")
a(f"v_lshl_add_u32 v12, v0, 2, v{vSC}")
a("v_mov_b32 v13, 0")
a("v_mov_b32 v14, 1.0")
a(f"v_cmp_eq_u32 vcc, {(C_ONE-SC)//4}, v0")
a("v_cndmask_b32 v13, v13, v14, vcc")
a("s_mov_b32 exec_hi, 0")
a("ds_write_b32 v12, v13")
a("s_mov_b64 exec, -1")
a.label("L_AUX_NZ")
a("s_waitcnt lgkmcnt(0)")
a("s_barrier")
if STAMPS:
    a("v_mov_b32 v240, s92")
srd("ws"); srd("x")
a("v_lshlrev_b32 v12, 4, v0")
a(f"s_cmp_lg_u32 s{sAW}, 0")
a("s_cbranch_scc1 L_AUX_NOWQ")
srd("wq")
a(f"buffer_load_dword v6, v{vZ}, {R('ws')}, 0 offen sc1")
a.label("L_AUX_NOWQ")
vX = 8
a(f"s_lshl_b32 s60, s{sAW}, 11")
a(f"buffer_load_dwordx4 v[16:19], v12, {R('x')}, s60 offen")
a(f"buffer_load_dwordx4 v[20:23], v12, {R('x')}, s60 offen offset:1024")
a(f"s_lshl_b32 s60, s{sW}, 10")
a(f"buffer_load_dwordx4 v[{vX}:{vX+3}], v12, {R('x')}, s60 offen")
a(f"s_cmp_lg_u32 s{sAW}, 0")
a("s_cbranch_scc1 L_AUX_NOWQ2")
a(f"s_lshl_b32 s58, s{sHKV}, 10")
a("s_lshr_b32 s59, s2, 3")
a("s_lshl_b32 s59, s59, 5")
a("s_add_u32 s58, s58, s59")
a("v_lshrrev_b32 v13, 1, v0")
a("v_lshlrev_b32 v13, 13, v13")
a("v_and_b32 v14, 1, v0")
a("v_lshl_add_u32 v13, v14, 4, v13")
a(f"s_mov_b32 m0, {L_AUX}")
a("s_mov_b32 s59, s58")
for i in range(16):
    a(f"buffer_load_dwordx4 v13, {R('wq')}, s59 offen {NT} lds")
    if i < 15:
        a("s_add_u32 m0, m0, 1024")
        a("s_add_u32 s59, s59, 262144")
a("s_waitcnt vmcnt(17)")
a("s_branch L_AUX_LN1")
a.label("L_AUX_NOWQ2")
a("s_waitcnt vmcnt(1)")
a.label("L_AUX_LN1")
a(f"s_mul_i32 s60, s{sAW}, {2*Y_STR}")
a(f"s_add_u32 s60, s60, {L_Y}")
a("v_add_u32 v15, s60, v12")
for rr in range(2):
    for i in range(4):
        unpack(16+rr*4+i, 24+2*i, 25+2*i)
    layernorm(24, 32, last_pack=44)
    a(f"ds_write_b128 v15, v[44:47] offset:{rr*Y_STR}")
a(f"s_lshl_b32 s60, s{sAW}, 2")
a(f"v_add_u32 v7, s60, v{vSC}")
a(f"ds_write_b32 v7, v{vONE} offset:{F_LN1-SC}")
a(f"s_cmp_lg_u32 s{sAW}, 0")
a("s_cbranch_scc1 L_AUX_TAGWAIT")

stamp(1)
a("v_add_u32 v6, 1, v6")
a(f"v_readfirstlane_b32 s{sTAG}, v6")
a(f"ds_write_b32 v{vSC}, v6 offset:{F_TAG-SC}")
a(f"ds_write_b32 v{vSC}, v{vONE} offset:{F_TAG-SC+8}")
lds_wait4(F_LN1, 16, vSC)
def trA_addr(v, rowbytes, t):
    a(f"v_bfe_u32 v{v}, v0, 2, 2")
    a(f"v_lshl_add_u32 v{v}, v{vG}, 3, v{v}")
    a(f"v_mul_u32_u24 v{v}, {rowbytes}, v{v}")
    a(f"v_and_b32 v{t}, 3, v0")
    a(f"v_lshl_add_u32 v{v}, v{t}, 3, v{v}")
def B_addr(v, base, stride, t):
    a(f"v_and_b32 v{t}, 7, v0")
    a(f"v_mul_u32_u24 v{v}, {stride}, v{t}")
    a(f"v_lshl_add_u32 v{v}, v{vG}, 4, v{v}")
    a(f"v_add_u32 v{v}, {base}, v{v}")
trA_addr(13, 32, 14)
a(f"v_add_u32 v13, {L_AUX}, v13")
B_addr(14, L_Y, Y_STR, 15)
vB = 16
vA = 80
for kk in range(16):
    a(f"ds_read_b128 v[{vB+kk*4}:{vB+kk*4+3}], v14 offset:{kk*64}")
    if kk % 8 == 7: a("s_waitcnt lgkmcnt(0)")
for half in range(4):
    a(f"s_waitcnt vmcnt({12-4*half})")
    for kk in range(half*4, half*4+4):
        for hh in range(2):
            a(f"ds_read_b64_tr_b16 v[{vA+kk*4+hh*2}:{vA+kk*4+hh*2+1}], v13 offset:{kk*1024+hh*128}")
    a("s_waitcnt lgkmcnt(0)")
    for kk in range(half*4, half*4+4):
        c = "0" if kk == 0 else "v[144:147]"
        a(f"v_mfma_f32_16x16x32_bf16 v[144:147], v[{vA+kk*4}:{vA+kk*4+3}], v[{vB+kk*4}:{vB+kk*4+3}], {c}")
a("v_and_b32 v13, 7, v0")
a("v_lshlrev_b32 v13, 14, v13")
a(f"v_lshl_add_u32 v13, v{vG}, 4, v13")
a("s_lshl_b32 s59, s58, 1")
a(f"s_add_u32 s59, s59, {WS_Q}")
a(f"v_mov_b32 v149, s{sTAG}")
a(f"v_mov_b32 v151, s{sTAG}")
a("v_cvt_pk_bf16_f32 v148, v144, v145")
a("v_cvt_pk_bf16_f32 v150, v146, v147")
a("s_mov_b32 exec_lo, 0x00ff00ff")
a("s_mov_b32 exec_hi, 0x00ff00ff")
a(f"buffer_store_dwordx4 v[148:151], v13, {R('ws')}, s59 offen sc1")
a("s_mov_b64 exec, -1")
stamp(2)
a(f"s_lshl_b32 s59, s{sB}, 14")
a(f"s_lshl_b32 s60, s{sHKV}, 11")
a("s_add_u32 s59, s59, s60")
a(f"s_add_u32 s59, s59, {WS_Q}")
a("s_waitcnt vmcnt(0)")
Lq = a.newlabel("GQ")
a.label(Lq)
a(f"buffer_load_dwordx4 v[16:19], v12, {R('ws')}, s59 offen sc1")
a(f"buffer_load_dwordx4 v[20:23], v12, {R('ws')}, s59 offen offset:1024 sc1")
budget()
a("s_waitcnt vmcnt(0)")
a(f"v_cmp_eq_u32 s[56:57], s{sTAG}, v17")
for r in (19, 21, 23):
    a(f"v_cmp_eq_u32 vcc, s{sTAG}, v{r}")
    a("s_and_b64 s[56:57], s[56:57], vcc")
a("s_cmp_eq_u64 s[56:57], -1")
a(f"s_cbranch_scc1 {Lq}_ok")
a("s_sleep 4")
a(f"s_branch {Lq}")
a.label(f"{Lq}_ok")
a("v_mov_b32 v17, v18")
a("v_mov_b32 v21, v22")
a("v_lshlrev_b32 v13, 3, v0")
a(f"v_add_u32 v13, {L_QL}, v13")
a("ds_write_b64 v13, v[16:17]")
a("ds_write_b64 v13, v[20:21] offset:512")
a(f"ds_write_b32 v{vSC}, v{vONE} offset:{F_QRDY-SC}")
stamp(3)
a("s_setprio 0")
a("s_branch L_AUX_ROLE")

a.label("L_AUX_TAGWAIT")
Lt = a.newlabel("TW")
a.label(Lt)
a(f"ds_read_b128 v[16:19], v{vSC} offset:{F_TAG-SC}")
budget()
a("s_waitcnt lgkmcnt(0)")
a("v_readfirstlane_b32 s54, v18")
a(f"v_readfirstlane_b32 s{sTAG}, v16")
a("s_sleep 1")
a("s_cmp_eq_u32 s54, 0")
a(f"s_cbranch_scc1 {Lt}")

a.label("L_AUX_ROLE")
a(f"s_lshl_b32 s62, s{sAW}, 14")
a(f"s_add_u32 s62, s62, {L_AUX}")
a(f"s_cmp_ge_u32 s{sS}, 2")
a("s_cbranch_scc1 L_A_NOTWO")
srd("wo")
a(f"s_lshl_b32 s58, s{sB}, 1")
a(f"s_add_u32 s58, s58, s{sS}")
a("s_lshr_b32 s63, s58, 2")
a("s_and_b32 s58, s58, 3")
a(f"s_lshl_b32 s59, s{sHKV}, 2")
a("s_add_u32 s58, s58, s59")
a("s_lshl_b32 s58, s58, 17")
a("s_lshl_b32 s63, s63, 2")
a(f"s_add_u32 s63, s63, s{sAW}")
a("s_lshl_b32 s59, s63, 6")
a("s_add_u32 s58, s58, s59")
a("v_lshrrev_b32 v13, 2, v0")
a("v_lshlrev_b32 v13, 10, v13")
a("v_and_b32 v14, 3, v0")
a("v_lshl_add_u32 v13, v14, 4, v13")
a("s_mov_b32 m0, s62")
for i in range(8):
    a(f"buffer_load_dwordx4 v13, {R('wo')}, s58 offen {NT} lds")
    if i < 7:
        a("s_add_u32 m0, m0, 1024")
        a("s_add_u32 s58, s58, 16384")
trA_addr(13, 64, 14)
a("v_add_u32 v13, s62, v13")
B_addr(14, L_OL, OL_STR, 15)
a(f"s_mul_i32 s60, s{sAW}, {8*RL_STR}")
a(f"s_add_u32 s60, s60, {L_RL}")
a("v_and_b32 v15, 7, v0")
a(f"v_mul_u32_u24 v15, {RL_STR}, v15")
a("v_bfe_u32 v16, v0, 3, 1")
a("v_lshl_add_u32 v15, v16, 6, v15")
a(f"v_lshl_add_u32 v15, v{vG}, 4, v15")
a("v_add_u32 v15, s60, v15")
a("v_bfe_u32 v16, v0, 2, 2")
a("v_and_b32 v17, 3, v0")
a(f"v_mul_u32_u24 v18, {RL_STR}, v{vG}")
a("v_lshl_add_u32 v18, v16, 5, v18")
a("v_lshl_add_u32 v18, v17, 2, v18")
a("v_add_u32 v18, s60, v18")
a(f"v_mov_b32 v19, {C_ONE}")
a(f"v_mov_b32 v20, {C_ZERO}")
a("v_cmp_eq_u32 s[56:57], 3, v17")
a("v_cmp_eq_u32 s[58:59], 2, v17")
for j in range(3):
    for bh in range(2):
        r = 24 + j*2 + bh
        a(f"v_add_u32 v{r}, {j*12 + bh*4*RL_STR}, v18")
        a(f"v_cndmask_b32 v{r}, v{r}, v19, s[56:57]")
        if j == 2:
            a(f"v_cndmask_b32 v{r}, v{r}, v20, s[58:59]")
a(f"v_mul_u32_u24 v21, 3072, v{vG}")
a("v_and_b32 v22, 15, v0")
a("v_lshl_add_u32 v21, v22, 2, v21")
a("s_lshl_b32 s63, s63, 6")
a(f"s_add_u32 s63, s63, {WS_HACC}")
a("s_add_u32 s61, s63, 12288")
zflag_wait(30)
vA = 32
for nt_ in range(2):
    for kk in range(4):
        for hh in range(2):
            r = vA + (nt_*4+kk)*4 + hh*2
            a(f"ds_read_b64_tr_b16 v[{r}:{r+1}], v13 offset:{kk*2048 + hh*256 + nt_*32}")
    a("s_waitcnt lgkmcnt(0)")
stamp(4)
a("s_mov_b32 s94, 0xff00ff00"); a("s_mov_b32 s95, 0xff00ff00")
lds_wait4(F_C, 64, vSC)
stamp(5)
vB = 64
for kk in range(4):
    a(f"ds_read_b128 v[{vB+kk*4}:{vB+kk*4+3}], v14 offset:{kk*64}")
for kk in range(4):
    a(f"s_waitcnt lgkmcnt({3-kk})")
    for nt_ in range(2):
        c = "0" if kk == 0 else f"v[{80+nt_*4}:{83+nt_*4}]"
        r = vA + (nt_*4+kk)*4
        a(f"v_mfma_f32_16x16x32_bf16 v[{80+nt_*4}:{83+nt_*4}], v[{r}:{r+3}], v[{vB+kk*4}:{vB+kk*4+3}], {c}")
for i in range(4):
    a(f"v_cndmask_b32 v{88+i}, v{80+i}, v{84+i}, s[94:95]")
a("ds_write_b128 v15, v[88:91]")
for r in range(6):
    a(f"ds_read_b32 v{92+r}, v{24+r}")
for j in range(3):
    for bh in range(2):
        r = j*2 + bh
        a(f"s_waitcnt lgkmcnt({5-r})")
        a(f"buffer_atomic_add_f32 v{92+r}, v21, {R('ws')}, {'s63' if bh == 0 else 's61'} offen offset:{j*1024}")
stamp(6)
a("s_branch L_FIN")

a.label("L_A_NOTWO")
a(f"s_cmp_eq_u32 s{sS}, 3")
a("s_cbranch_scc1 L_A_ZERO")
a(f"s_lshl_b32 s63, s{sB}, 3")
a(f"s_add_u32 s63, s63, s{sHKV}")
a(f"s_cmp_ge_u32 s63, {NMLP}")
a("s_cbranch_scc1 L_FIN")
srd("w1"); srd("w2"); srd("b1")
a("s_lshl_b32 s58, s63, 7")
a(f"s_lshl_b32 s59, s{sAW}, 5")
a("s_add_u32 s58, s58, s59")
a(f"v_lshlrev_b32 v13, 3, v{vG}")
a(f"buffer_load_dwordx2 v[14:15], v13, {R('b1')}, s58 offen")
a("v_lshrrev_b32 v13, 1, v0")
a("v_mul_u32_u24 v13, 3584, v13")
a("v_and_b32 v16, 1, v0")
a("v_lshl_add_u32 v13, v16, 4, v13")
a("s_mov_b32 m0, s62")
for i in range(16):
    a(f"buffer_load_dwordx4 v13, {R('w1')}, s58 offen {NT} lds")
    if i < 15:
        a("s_add_u32 m0, m0, 1024")
        a(f"s_add_u32 s58, s58, {32*3584}")
trA_addr(13, 32, 16)
a("v_add_u32 v13, s62, v13")
vA1 = 64
a("s_waitcnt vmcnt(0)")
for kk in range(16):
    for hh in range(2):
        a(f"ds_read_b64_tr_b16 v[{vA1+kk*4+hh*2}:{vA1+kk*4+hh*2+1}], v13 offset:{kk*1024+hh*128}")
    if kk % 4 == 3: a("s_waitcnt lgkmcnt(0)")
a("s_lshl_b32 s58, s63, 16")
a(f"s_lshl_b32 s59, s{sAW}, 8")
a("s_add_u32 s58, s58, s59")
a(f"v_lshlrev_b32 v13, 10, v{vG}")
a(f"v_lshl_add_u32 v13, v{vC}, 4, v13")
a("s_mov_b32 m0, s62")
for i in range(16):
    a(f"buffer_load_dwordx4 v13, {R('w2')}, s58 offen {NT} lds")
    if i < 15:
        a("s_add_u32 m0, m0, 1024")
        a("s_add_u32 s58, s58, 4096")
trA_addr(13, 256, 16)
a("v_add_u32 v13, s62, v13")
vA2 = 128
a("s_waitcnt vmcnt(0)")
for nt_ in range(8):
    for kk in range(2):
        for hh in range(2):
            r = vA2 + (nt_*2+kk)*4 + hh*2
            a(f"ds_read_b64_tr_b16 v[{r}:{r+1}], v13 offset:{kk*8192 + hh*1024 + nt_*32}")
    if nt_ % 2 == 1: a("s_waitcnt lgkmcnt(0)")
unpack(14, 192, 193); unpack(15, 194, 195)
stamp(4)
lds_wait4(F_ATT, 16, vSC, sleep=2)

a.label("L_MLP_LN")
zflag_wait(16)
a("v_lshlrev_b32 v12, 4, v0")
a(f"s_mul_i32 s60, s{sW}, 3072")
a(f"s_add_u32 s60, s60, {WS_HACC}")
a("s_mov_b32 s61, 0x42000000")
for i in range(4):
    unpack(vX+i, 16+2*i, 17+2*i)
a(f"s_mul_i32 s58, s{sW}, {Y_STR}")
a(f"s_add_u32 s58, s58, {L_Y}")
a("v_add_u32 v13, s58, v12")
a(f"s_sleep {SL_MLP}")
Lh = a.newlabel("MH")
a.label(Lh)
for j in range(3):
    a(f"buffer_load_dwordx4 v[{24+j*4}:{27+j*4}], v12, {R('ws')}, s60 offen offset:{j*1024} sc1")
budget()
a("s_waitcnt vmcnt(2)")
a("v_cmp_eq_f32 s[56:57], s61, v27")
a("s_waitcnt vmcnt(1)")
a("v_cmp_eq_f32 vcc, s61, v31")
a("s_and_b64 s[56:57], s[56:57], vcc")
a("s_waitcnt vmcnt(0)")
a("v_cmp_eq_f32 vcc, s61, v35")
a("s_and_b64 s[56:57], s[56:57], vcc")
a("s_cmp_eq_u64 s[56:57], -1")
a(f"s_cbranch_scc1 {Lh}_ok")
a(f"s_sleep {SL_POLL+2}")
a(f"s_branch {Lh}")
a.label(f"{Lh}_ok")
stamp(5)
src = [24, 25, 26, 28, 29, 30, 32, 33]
for i in range(0, 8, 2):
    a(f"v_cvt_pk_bf16_f32 v{36+i//2}, v{src[i]}, v{src[i+1]}")
for i in range(4):
    unpack(36+i, 24+2*i, 25+2*i)
for i in range(8):
    a(f"v_add_f32 v{24+i}, v{24+i}, v{16+i}")
for i in range(0, 8, 2):
    rnd2(24+i, 25+i, 36+i//2)
layernorm(24, 32)
layernorm(24, 32, last_pack=44)
a("ds_write_b128 v13, v[44:47]")
a("s_waitcnt lgkmcnt(0)")
a("s_barrier")
stamp(6)
a(f"s_cmp_lt_u32 s{sW}, 4")
a("s_cbranch_scc1 L_FIN")
B_addr(14, L_Y, Y_STR, 15)
vB = 196
for half in range(2):
    for kk in range(8):
        a(f"ds_read_b128 v[{vB+kk*4}:{vB+kk*4+3}], v14 offset:{(half*8+kk)*64}")
    for kk in range(8):
        a(f"s_waitcnt lgkmcnt({7-kk})")
        k2 = half*8 + kk
        c = "0" if k2 == 0 else "v[16:19]"
        a(f"v_mfma_f32_16x16x32_bf16 v[16:19], v[{vA1+k2*4}:{vA1+k2*4+3}], v[{vB+kk*4}:{vB+kk*4+3}], {c}")
a("v_and_b32 v13, 7, v0")
a(f"v_mul_u32_u24 v13, {H1_STR}, v13")
a(f"v_lshl_add_u32 v13, v{vG}, 3, v13")
a(f"s_lshl_b32 s60, s{sAW}, 5")
a(f"s_add_u32 s60, s60, {L_H1}")
a("v_add_u32 v13, s60, v13")
B_addr(14, L_H1, H1_STR, 15)
rnd2(16, 17, 20); rnd2(18, 19, 21)
for i in range(4):
    a(f"v_add_f32 v{16+i}, v{16+i}, v{192+i}")
rnd2(16, 17, 20); rnd2(18, 19, 21)
import struct
def f2u(x): return struct.unpack("<I", struct.pack("<f", x))[0]
k0 = 0.7978845608028654; k1 = 0.044715; l2e = 1.4426950408889634
a(f"s_mov_b32 s58, {f2u(-2*k0*l2e):#x}")
a(f"s_mov_b32 s59, {f2u(-2*k0*k1*l2e):#x}")
a("v_mov_b32 v24, s58")
for i in range(4):
    a(f"v_mul_f32 v{20+i}, v{16+i}, v{16+i}")
for i in range(4):
    a(f"v_fma_f32 v{20+i}, v{20+i}, s59, v24")
for i in range(4):
    a(f"v_mul_f32 v{20+i}, v{20+i}, v{16+i}")
for i in range(4):
    a(f"v_exp_f32 v{20+i}, v{20+i}")
for i in range(4):
    a(f"v_add_f32 v{20+i}, 1.0, v{20+i}")
for i in range(4):
    a(f"v_rcp_f32 v{20+i}, v{20+i}")
for i in range(4):
    a(f"v_mul_f32 v{16+i}, v{16+i}, v{20+i}")
a("v_cvt_pk_bf16_f32 v16, v16, v17")
a("v_cvt_pk_bf16_f32 v17, v18, v19")
a("ds_write_b64 v13, v[16:17]")
a(f"ds_write_b32 v7, v{vONE} offset:{F_D-SC}")
a("v_and_b32 v13, 7, v0")
a(f"s_mov_b32 s60, {8*NMLP*512}")
a("v_mul_lo_u32 v13, v13, s60")
a(f"v_lshl_add_u32 v13, v{vG}, 5, v13")
a("v_bfe_u32 v15, v0, 3, 1")
a("v_lshl_add_u32 v13, v15, 4, v13")
a(f"s_mul_i32 s60, s{sAW}, {2*NMLP*512}")
a("s_lshl_b32 s61, s63, 9")
a("s_add_u32 s60, s60, s61")
a(f"s_add_u32 s60, s60, {WS_OUTP}")
a(f"s_add_u32 s61, s60, {NMLP*512}")
a("s_mov_b32 s94, 0xff00ff00"); a("s_mov_b32 s95, 0xff00ff00")
lds_wait4(F_D, 20, vSC)
a("ds_read_b128 v[16:19], v14")
a("ds_read_b128 v[20:23], v14 offset:64")
a("s_waitcnt lgkmcnt(0)")
vO = 24
for nt_ in range(8):
    for kk in range(2):
        r = vA2 + (nt_*2+kk)*4
        c = "0" if kk == 0 else f"v[{vO+nt_*4}:{vO+nt_*4+3}]"
        a(f"v_mfma_f32_16x16x32_bf16 v[{vO+nt_*4}:{vO+nt_*4+3}], v[{r}:{r+3}], v[{16+kk*4}:{19+kk*4}], {c}")
for nt_ in range(8):
    r = 64 + nt_*4
    a(f"v_mov_b32 v{r+1}, s{sTAG}")
    a(f"v_mov_b32 v{r+3}, s{sTAG}")
    a(f"v_cndmask_b32 v{r}, v{vO+nt_*4}, v{vO+nt_*4+2}, s[94:95]")
    a(f"v_cndmask_b32 v{r+2}, v{vO+nt_*4+1}, v{vO+nt_*4+3}, s[94:95]")
    a(f"buffer_store_dwordx4 v[{r}:{r+3}], v13, {R('ws')}, {'s60' if nt_ < 4 else 's61'} offen offset:{(nt_%4)*128} sc1")
stamp(7)
a("s_branch L_FIN")

a.label("L_A_ZERO")
a(f"s_cmp_lg_u32 s{sHKV}, 0")
a("s_cbranch_scc1 L_FIN")
a(f"s_cmp_lg_u32 s{sAW}, 1")
a("s_cbranch_scc1 L_FIN")
for i in range(4): a(f"v_mov_b32 v{16+i}, 0")
a(f"s_mul_i32 s60, s{sB}, 3072")
a(f"s_add_u32 s60, s60, {WS_HACC}")
for j in range(3):
    a(f"buffer_store_dwordx4 v[16:19], v12, {R('ws')}, s60 offen offset:{j*1024} sc1")
a(f"v_mov_b32 v20, s{sTAG}")
a(f"s_lshl_b32 s60, s{sB}, 3")
a(f"s_add_u32 s60, s60, {WS_ZF}")
a("s_waitcnt vmcnt(0)")
a("s_mov_b64 exec, 1")
a(f"buffer_store_dword v20, v{vZ}, {R('ws')}, s60 offen sc1")
a("s_mov_b64 exec, -1")

a.label("L_FIN")
if STAMPS:
    stamp(8)
    a("s_lshl_b32 s60, s2, 3")
    a(f"s_add_u32 s60, s60, s{sW}")
    a("s_mul_i32 s60, s60, 48")
    a(f"s_add_u32 s60, s60, {WS_STAMP}")
    a("s_mov_b64 exec, 1")
    for i in range(3):
        a(f"buffer_store_dwordx4 v[{240+4*i}:{243+4*i}], v{vZ}, {R('ws')}, s60 offen offset:{16*i}")
a.label("L_END")
a("s_endpgm")

hdr = open("sequential_preLN__sliding_block_cached__mixer_channel_mlp__decode.s.ref").read().split("; Override launch")[0]
open(out, "w").write(wrap(a.text(), 256, 512, LDS_BYTES, vgpr=256, header_comment=hdr))
```

```python
import sys, struct
from asmgen import *

out = sys.argv[1]
opts = dict(kv.split("=") for kv in sys.argv[2:])
STAMPS = int(opts.get("stamps", 0))
DBGST = int(opts.get("dbgst", 0))
if DBGST: STAMPS = 1
NT = "nt" if int(opts.get("nt", 1)) else ""
SL_GO = int(opts.get("sl_go", 0))
SL_POLL = int(opts.get("sl_poll", 2))
SL_RED = int(opts.get("sl_red", 4))
SL_Q = int(opts.get("sl_q", 10))
SL_Q2 = int(opts.get("sl_q2", 14))
NK1 = int(opts.get("nk1", 8))
QFL = int(opts.get("qfl", 1))
PFP = opts.get("pfp", "nt")
if PFP == "none": PFP = ""
MLPP = opts.get("mlpp", "nt")
if MLPP == "none": MLPP = ""

def f2u(x): return struct.unpack("<I", struct.pack("<f", x))[0]

WS_ZF = 256
WS_ST = 4096
WS_HACC = 32768
WS_FL = 65536
WS_QF = 0x20000
WS_QP = 0x40000
WS_OP = 0x140000
WS_OUTP = 0x240000
WS_STAMP = 128 << 20
NMLP = 28
HPUB_ID = ((6*4+2)*8+4)
SL_W = int(opts.get("sl_w", 0))
W1AFTER = int(opts.get("w1after", 1))

L_V = 0
L_K = 65536
L_WQ = 131072
L_QL = L_WQ
L_P = L_WQ + 1024; P_STR = 528
L_OL = L_WQ + 3200; OL_STR = 272
L_H1 = L_WQ + 5376; H1_STR = 144
L_RL = L_WQ + 6528; RL_STR = 144
SC = 147456
F_TAG = SC + 0
F_TRDY = SC + 4
F_GO = SC + 8
F_CF = SC + 12
F_LN1 = SC + 16
F_Q = SC + 32
F_A = SC + 48
F_B = SC + 64
F_V = SC + 80
F_W = SC + 96
F_C = SC + 112
F_D = SC + 128
F_W2 = SC + 144
F_KI = SC + 304
F_QGO = SC + 168
F_Y = SC + 512
C_ONE = SC + 160
C_ZERO = SC + 164
L_AB = SC + 176
L_MX = SC + 320
L_SUM = SC + 384
L_CF = L_WQ + 12288
L_Y = SC + 640; Y_STR = 1040
LDS_BYTES = SC + 640 + 8*Y_STR
assert LDS_BYTES <= 163840

sW, sHKV, sB, sS, sAW = 3, 4, 5, 6, 7
SRD = dict(ws=8, k=12, v=16, x=20, wq=24, wo=28, w1=32, w2=36, b1=40, b2=44, out=48)
sTAG, sBUD = 52, 53
PTR = dict(x=64, k=66, v=68, wq=70, wo=72, bx=74, w1=76, b1=78, w2=80, b2=82, out=84, dbg=86, ws=88)
LOG2E = 0x3FB8AA3B
SCALE = 0x3DB504F3
DPPM = "row_mask:0xf bank_mask:0xf"

a = Asm()

def srd(name):
    d = SRD[name]; p = PTR[name]
    a(f"s_mov_b32 s{d}, s{p}")
    a(f"s_and_b32 s{d+1}, s{p+1}, 0xffff")
    a(f"s_mov_b32 s{d+2}, {SIZES[name]}")
    a(f"s_mov_b32 s{d+3}, 0x20000")
def R(name): d = SRD[name]; return f"s[{d}:{d+3}]"

def stamp(i):
    if not STAMPS: return
    a("s_memrealtime s[90:91]")
    a("s_waitcnt lgkmcnt(0)")
    a(f"v_mov_b32 v{240+i}, s90")

def budget():
    a(f"s_sub_u32 s{sBUD}, s{sBUD}, 1")
    a("s_cbranch_scc1 L_END")

def set_flag(flag, val=None):
    a(f"ds_write_b32 v{vFL}, v{vONE if val is None else val} offset:{flag-SC}")

def lds_wait4(flag, vt, sleep=0, minval=None):
    L = a.newlabel("W4")
    a.label(L)
    a(f"ds_read_b128 v[{vt}:{vt+3}], v{vSC} offset:{flag-SC}")
    budget()
    a("s_waitcnt lgkmcnt(0)")
    a(f"v_min3_u32 v{vt}, v{vt}, v{vt+1}, v{vt+2}")
    a(f"v_min_u32 v{vt}, v{vt}, v{vt+3}")
    a(f"v_readfirstlane_b32 s54, v{vt}")
    if sleep: a(f"s_sleep {sleep}")
    a(f"s_cmp_lt_u32 s54, {1 if minval is None else minval}")
    a(f"s_cbranch_scc1 {L}")

def lds_wait1(flag, vt, sleep=0):
    L = a.newlabel("W1")
    a.label(L)
    a(f"ds_read_b32 v{vt}, v{vSC} offset:{flag-SC}")
    budget()
    a("s_waitcnt lgkmcnt(0)")
    a(f"v_readfirstlane_b32 s54, v{vt}")
    if sleep: a(f"s_sleep {sleep}")
    a("s_cmp_eq_u32 s54, 0")
    a(f"s_cbranch_scc1 {L}")

def rnd1(v, t):
    a(f"v_cvt_pk_bf16_f32 v{t}, v{v}, v{v}")
    a(f"v_lshlrev_b32 v{v}, 16, v{t}")
def rnd2(v0, v1, t):
    a(f"v_cvt_pk_bf16_f32 v{t}, v{v0}, v{v1}")
    a(f"v_lshlrev_b32 v{v0}, 16, v{t}")
    a(f"v_and_b32 v{v1}, 0xffff0000, v{t}")
def unpack(src, lo, hi):
    a(f"v_lshlrev_b32 v{lo}, 16, v{src}")
    a(f"v_and_b32 v{hi}, 0xffff0000, v{src}")

def wave_sum2(va, vb, sa, sb):
    for mod in ("quad_perm:[1,0,3,2]", "quad_perm:[2,3,0,1]", "row_half_mirror", "row_mirror"):
        a(f"v_add_f32_dpp v{va}, v{va}, v{va} {mod} {DPPM}")
        a(f"v_add_f32_dpp v{vb}, v{vb}, v{vb} {mod} {DPPM}")
    a(f"v_add_f32_dpp v{va}, v{va}, v{va} row_bcast:15 row_mask:0xa bank_mask:0xf")
    a(f"v_add_f32_dpp v{vb}, v{vb}, v{vb} row_bcast:15 row_mask:0xa bank_mask:0xf")
    a(f"v_add_f32_dpp v{va}, v{va}, v{va} row_bcast:31 row_mask:0xc bank_mask:0xf")
    a(f"v_add_f32_dpp v{vb}, v{vb}, v{vb} row_bcast:31 row_mask:0xc bank_mask:0xf")
    a(f"v_readlane_b32 s{sa}, v{va}, 63")
    a(f"v_readlane_b32 s{sb}, v{vb}, 63")

def row_stats(e, t, sg=55):
    a(f"v_readfirstlane_b32 s{sg}, v{e}")
    a(f"v_mov_b32 v{t+10}, s{sg}")
    a(f"v_mov_b32 v{t+11}, s{sg}")
    for i in range(0, 8, 2):
        a(f"v_pk_add_f32 v[{t+i}:{t+i+1}], v[{e+i}:{e+i+1}], v[{t+10}:{t+11}] neg_lo:[0,1] neg_hi:[0,1]")
    a(f"v_pk_add_f32 v[{t+8}:{t+9}], v[{t}:{t+1}], v[{t+2}:{t+3}]")
    a(f"v_pk_mul_f32 v[{t+10}:{t+11}], v[{t}:{t+1}], v[{t}:{t+1}]")
    a(f"v_pk_add_f32 v[{t}:{t+1}], v[{t+4}:{t+5}], v[{t+6}:{t+7}]")
    for i in (2, 4, 6):
        a(f"v_pk_fma_f32 v[{t+10}:{t+11}], v[{t+i}:{t+i+1}], v[{t+i}:{t+i+1}], v[{t+10}:{t+11}]")
    a(f"v_pk_add_f32 v[{t+8}:{t+9}], v[{t+8}:{t+9}], v[{t}:{t+1}]")
    a(f"v_add_f32 v{t+10}, v{t+10}, v{t+11}")
    a(f"v_add_f32 v{t+8}, v{t+8}, v{t+9}")
    wave_sum2(t+8, t+10, sg+1, sg+2)
    a(f"v_mov_b32 v{t+2}, 0x3b000000")
    a(f"v_mul_f32 v{t}, s{sg+1}, v{t+2}")
    a(f"v_mul_f32 v{t+1}, s{sg+2}, v{t+2}")
    a(f"v_fma_f32 v{t+1}, -v{t}, v{t}, v{t+1}")
    a(f"v_max_f32 v{t+1}, 0, v{t+1}")
    a(f"v_add_f32 v{t}, s{sg}, v{t}")

def sd_of(v, t):
    a(f"v_add_f32 v{v}, 0x3727c5ac, v{v}")
    rnd1(v, t)
    a(f"v_sqrt_f32 v{v}, v{v}")
    rnd1(v, t)

def rcp_nr(dst, src, t):
    a(f"v_rcp_f32 v{dst}, v{src}")
    a(f"v_fma_f32 v{t}, -v{src}, v{dst}, 1.0")
    a(f"v_fma_f32 v{dst}, v{t}, v{dst}, v{dst}")

def layernorm(e, t, last_pack):
    row_stats(e, t)
    rnd2(t, t+1, t+2)
    sd_of(t+1, t+2)
    rcp_nr(t+2, t+1, t+3)
    for i in range(8):
        a(f"v_sub_f32 v{e+i}, v{e+i}, v{t}")
    for i in range(0, 8, 2):
        rnd2(e+i, e+i+1, t+4+i//2)
    for i in range(8):
        a(f"v_mul_f32 v{t+4+i}, v{e+i}, v{t+2}")
    for i in range(8):
        a(f"v_fma_f32 v{e+i}, -v{t+4+i}, v{t+1}, v{e+i}")
    for i in range(8):
        a(f"v_fma_f32 v{e+i}, v{e+i}, v{t+2}, v{t+4+i}")
    for i in range(0, 8, 2):
        a(f"v_cvt_pk_bf16_f32 v{last_pack+i//2}, v{e+i}, v{e+i+1}")

def head_reduce(v, t, op):
    a(f"v_{op}_f32_dpp v{v}, v{v}, v{v} row_ror:4 {DPPM}")
    a(f"v_{op}_f32_dpp v{v}, v{v}, v{v} row_ror:8 {DPPM}")
    a(f"v_mov_b32 v{t}, v{v}")
    a(f"v_permlane16_swap_b32 v{v}, v{t}")
    a(f"v_{op}_f32 v{v}, v{v}, v{t}")
    a(f"v_mov_b32 v{t}, v{v}")
    a(f"v_permlane32_swap_b32 v{v}, v{t}")
    a(f"v_{op}_f32 v{v}, v{v}, v{t}")

def trA_addr(v, rowbytes, t):
    a(f"v_bfe_u32 v{v}, v0, 2, 2")
    a(f"v_lshl_add_u32 v{v}, v{vG}, 3, v{v}")
    a(f"v_mul_u32_u24 v{v}, {rowbytes}, v{v}")
    a(f"v_and_b32 v{t}, 3, v0")
    a(f"v_lshl_add_u32 v{v}, v{t}, 3, v{v}")
def B_addr(v, base, stride, t):
    a(f"v_and_b32 v{t}, 7, v0")
    a(f"v_mul_u32_u24 v{v}, {stride}, v{t}")
    a(f"v_lshl_add_u32 v{v}, v{vG}, 4, v{v}")
    a(f"v_add_u32 v{v}, {base}, v{v}")

def zflag_wait(vt):
    L = a.newlabel("ZF")
    a(f"v_and_b32 v{vt}, 7, v0")
    a(f"v_lshlrev_b32 v{vt}, 3, v{vt}")
    a(f"s_mov_b32 s60, {WS_ZF}")
    a.label(L)
    a(f"buffer_load_dword v{vt+1}, v{vt}, {R('ws')}, s60 offen sc1")
    budget()
    a("s_waitcnt vmcnt(0)")
    a(f"v_cmp_eq_u32 vcc, s{sTAG}, v{vt+1}")
    a("s_cmp_eq_u64 vcc, -1")
    a(f"s_cbranch_scc0 {L}")

def masked_gather(n, load, tags, consume, sleep):
    L = a.newlabel("MG")
    a(f"s_mov_b32 s62, {(1 << n) - 1}")
    a.label(L)
    for i in range(n):
        a(f"s_bitcmp1_b32 s62, {i}")
        a(f"s_cbranch_scc0 {L}_l{i}")
        load(i)
        a.label(f"{L}_l{i}")
    budget()
    a("s_waitcnt vmcnt(0)")
    for i in range(n):
        a(f"s_bitcmp1_b32 s62, {i}")
        a(f"s_cbranch_scc0 {L}_c{i}")
        t = tags(i)
        a(f"v_cmp_eq_u32 vcc, s{sTAG}, v{t[0]}")
        if len(t) > 1:
            a(f"v_cmp_eq_u32 s[56:57], s{sTAG}, v{t[1]}")
            a("s_and_b64 vcc, vcc, s[56:57]")
        a("s_cmp_eq_u64 vcc, -1")
        a(f"s_cbranch_scc0 {L}_c{i}")
        consume(i)
        a(f"s_bitset0_b32 s62, {i}")
        a.label(f"{L}_c{i}")
    a("s_cmp_eq_u32 s62, 0")
    a(f"s_cbranch_scc1 {L}_ok")
    if sleep: a(f"s_sleep {sleep}")
    a(f"s_branch {L}")
    a.label(f"{L}_ok")

def capture(fn):
    save = a.items; a.items = []
    fn()
    got = a.items; a.items = save
    return got

def dma(n, voff, srdname, soff, sstep, mstep=1024, pol=None):
    if pol is None: pol = NT
    for i in range(n):
        v = voff(i) if callable(voff) else voff
        a(f"buffer_load_dwordx4 v{v}, {R(srdname)}, s{soff} offen {pol} lds")
        if i < n-1:
            ms = mstep(i) if callable(mstep) else mstep
            ss = sstep(i) if callable(sstep) else sstep
            a(f"s_add_u32 m0, m0, {ms}")
            a(f"s_add_u32 s{soff}, s{soff}, {ss}")

vLANE, vZ, vG, vC, vSC, vONE = 0, 1, 2, 3, 4, 5
vFL = 7
vX = 8
vL16 = 12
vA1 = 64
vA2 = 128
vB1, vCS = 192, 196
vYR, vH1W, vH1R, vSTO, vABR, vGC = 232, 233, 234, 235, 236, 237

if STAMPS:
    a("s_memrealtime s[92:93]")
a("s_cmp_ge_u32 s2, 256")
a("s_cbranch_scc1 L_END")
a("s_load_dwordx16 s[64:79], s[0:1], 0")
a("s_load_dwordx8 s[80:87], s[0:1], 64")
a("s_load_dwordx2 s[88:89], s[0:1], 96")
a("v_lshrrev_b32 v1, 6, v0")
a("v_and_b32 v0, 63, v0")
a(f"v_readfirstlane_b32 s{sW}, v1")
a(f"v_mov_b32 v{vZ}, 0")
a(f"v_lshrrev_b32 v{vG}, 4, v0")
a(f"v_and_b32 v{vC}, 15, v0")
a(f"v_mov_b32 v{vSC}, {SC}")
a(f"v_mov_b32 v{vONE}, 1")
a(f"s_and_b32 s{sHKV}, s2, 7")
a(f"s_lshr_b32 s{sB}, s2, 5")
a(f"s_bfe_u32 s{sS}, s2, 0x20003")
a(f"s_mov_b32 s{sBUD}, 400000")
a(f"s_and_b32 s{sAW}, s{sW}, 3")
a(f"s_lshl_b32 s60, s{sAW}, 2")
a(f"v_add_u32 v{vFL}, s60, v{vSC}")
a(f"v_lshlrev_b32 v{vL16}, 4, v0")
a(f"v_mov_b32 v{vSTO}, 0")
a(f"s_lshl_b32 s58, s{sB}, 3")
a(f"s_add_u32 s58, s58, s{sHKV}")
a("s_mov_b32 s63, s58")
a("s_lshl_b32 s58, s58, 20")
a(f"s_lshl_b32 s59, s{sS}, 16")
a("s_add_u32 s58, s58, s59")
a("s_add_u32 s58, s58, 786432")
if STAMPS:
    for i in range(12): a(f"v_mov_b32 v{240+i}, 0")
a(f"s_cmp_ge_u32 s{sW}, 4")
a("s_cbranch_scc1 L_VW")

a("s_setprio 2")
a(f"s_lshl_b32 s60, s{sW}, 14")
a("s_add_u32 s59, s60, s58")
a(f"s_add_u32 m0, s60, {L_K}")
for j in range(4):
    a(f"v_xor_b32 v{16+j}, {j*4}, v{vG}")
    a(f"v_xor_b32 v{16+j}, v{16+j}, v{vC}")
    a(f"v_lshlrev_b32 v{16+j}, 4, v{16+j}")
    a(f"v_lshl_add_u32 v{16+j}, v{vG}, 8, v{16+j}")
a(f"s_lshl_b32 s61, s{sW}, 10")
a("s_waitcnt lgkmcnt(0)")
if STAMPS:
    a("v_mov_b32 v240, s92")
srd("k"); srd("x"); srd("ws")
a("s_barrier")
a(f"buffer_load_dwordx4 v[{vX}:{vX+3}], v{vL16}, {R('x')}, s61 offen")
dma(NK1, lambda i: 16 + (i & 3), "k", 59, 1024)
a("s_mov_b32 s68, s59")
a("s_mov_b32 s69, m0")
vQA, vMXA, vMXW, vPW, vSTA, vQW = 120, 121, 122, 123, 124, 125
vKR = 126
a("v_and_b32 v15, 3, v0")
a(f"v_lshlrev_b32 v{vQA}, 8, v15")
a(f"v_lshl_add_u32 v{vQA}, v{vG}, 4, v{vQA}")
a(f"v_add_u32 v{vQA}, {L_QL}, v{vQA}")
a(f"v_lshl_add_u32 v{vMXA}, v15, 4, v{vSC}")
a(f"s_lshl_b32 s60, s{sW}, 2")
a(f"v_add_u32 v{vMXW}, s60, v{vMXA}")
a(f"v_mul_u32_u24 v14, {P_STR}, v15")
a(f"v_add_u32 v14, {L_P}, v14")
a(f"v_bfe_u32 v{vPW}, v0, 2, 2")
a(f"v_lshlrev_b32 v{vPW}, 5, v{vPW}")
a(f"v_lshl_add_u32 v{vPW}, v{vG}, 3, v{vPW}")
a(f"s_lshl_b32 s60, s{sW}, 7")
a(f"v_add3_u32 v{vPW}, v{vPW}, s60, v14")
a(f"s_lshl_b32 s60, s{sHKV}, 2")
a(f"v_add_u32 v{vSTA}, s60, v15")
a("s_lshr_b32 s60, s2, 3")
a(f"v_lshlrev_b32 v{vSTA}, 5, v{vSTA}")
a(f"v_add_u32 v{vSTA}, s60, v{vSTA}")
a(f"v_lshlrev_b32 v{vSTA}, 4, v{vSTA}")
a(f"s_lshl_b32 s60, s{sW}, 8")
a(f"s_add_u32 s60, s60, {L_QL}")
a(f"v_lshl_add_u32 v{vQW}, v0, 2, s60")
a(f"s_lshl_b32 s60, s{sW}, 14")
a(f"s_add_u32 s60, s60, {L_K}")
for kk in range(4):
    a(f"v_xor_b32 v{vKR+kk}, {kk*4}, v{vG}")
    a(f"v_xor_b32 v{vKR+kk}, v{vKR+kk}, v{vC}")
    a(f"v_lshlrev_b32 v{vKR+kk}, 4, v{vKR+kk}")
    a(f"v_lshl_add_u32 v{vKR+kk}, v{vC}, 8, v{vKR+kk}")
    a(f"v_add_u32 v{vKR+kk}, s60, v{vKR+kk}")
a("s_mov_b32 s94, 0x00f000f0"); a("s_mov_b32 s95, 0x00f000f0")
a("s_mov_b32 s96, 0x0f000f00"); a("s_mov_b32 s97, 0x0f000f00")
a("s_mov_b32 s98, 0xf000f000"); a("s_mov_b32 s99, 0xf000f000")
a("s_lshl_b32 s59, s63, 14")
a(f"s_lshl_b32 s60, s{sW}, 10")
a("s_add_u32 s59, s59, s60")
a(f"s_add_u32 s64, s59, {WS_QP}")
for i in range(1, 4): a(f"s_add_u32 s{64+i}, s{63+i}, 4096")
Lt = a.newlabel("TW")
a.label(Lt)
a(f"ds_read_b64 v[14:15], v{vSC} offset:{F_TAG-SC}")
budget()
a("s_waitcnt lgkmcnt(0)")
a("v_readfirstlane_b32 s54, v15")
a(f"v_readfirstlane_b32 s{sTAG}, v14")
a("s_sleep 1")
a("s_cmp_eq_u32 s54, 0")
a(f"s_cbranch_scc1 {Lt}")
if QFL:
    lds_wait1(F_QGO, 20, sleep=1)
    a("s_setprio 3")
else:
    lds_wait4(F_Q, 20, sleep=1)
    a("s_setprio 3")
    a(f"s_sleep {SL_Q}")
def qload():
    for i in range(4):
        a(f"buffer_load_dwordx4 v[{32+i*4}:{35+i*4}], v{vL16}, {R('ws')}, s{64+i} offen sc1")
qload()
if int(opts.get("dbgq", 0)): stamp(4)
a("s_add_u32 s68, s68, 1024")
a("s_add_u32 m0, s69, 1024")
dma(16-NK1, lambda i: 16 + ((i+NK1) & 3), "k", 68, 1024)
set_flag(F_KI)
stamp(1)
a(f"s_waitcnt vmcnt({16-NK1})")
a("s_branch L_QG1")
a.label("L_QG")
qload()
budget()
a("s_waitcnt vmcnt(0)")
a.label("L_QG1")
if int(opts.get("dbgq", 0)):
    a("v_mov_b32 v251, v250"); a("v_mov_b32 v250, v249"); stamp(9)
a(f"v_cmp_eq_u32 s[56:57], s{sTAG}, v33")
for r in (3, 5, 7, 9, 11, 13, 15):
    a(f"v_cmp_eq_u32 vcc, s{sTAG}, v{32+r}")
    a("s_and_b64 s[56:57], s[56:57], vcc")
a("s_cmp_eq_u64 s[56:57], -1")
a("s_cbranch_scc0 L_QG")
a("v_add_f32 v48, v32, v36")
a("v_add_f32 v49, v34, v38")
a("v_add_f32 v50, v40, v44")
a("v_add_f32 v51, v42, v46")
a("v_pk_add_f32 v[48:49], v[48:49], v[50:51]")
a("v_cvt_pk_bf16_f32 v48, v48, v49")
a(f"ds_write_b32 v{vQW}, v48")
a("v_mov_b32 v14, 2")
set_flag(F_Q, 14)
stamp(2)
vK = 132
lds_wait4(F_Q, 56, minval=2)
vQ = 80
for kk in range(4):
    a(f"ds_read_b128 v[{vQ+kk*4}:{vQ+kk*4+3}], v{vQA} offset:{kk*64}")
vS = 96
for t in range(4):
    a(f"s_waitcnt vmcnt({(3-t)*4})")
    for kk in range(4):
        r = vK + (t*4+kk)*4
        a(f"ds_read_b128 v[{r}:{r+3}], v{vKR+kk} offset:{t*4096}")
    for kk in range(4):
        a(f"s_waitcnt lgkmcnt({3-kk})")
        r = vK + (t*4+kk)*4
        c = "0" if kk == 0 else f"v[{vS+t*4}:{vS+t*4+3}]"
        a(f"v_mfma_f32_16x16x32_bf16 v[{vS+t*4}:{vS+t*4+3}], v[{r}:{r+3}], v[{vQ+kk*4}:{vQ+kk*4+3}], {c}")
vE = 112
for i in range(4):
    a(f"v_cndmask_b32 v{vE+i}, v{vS+i}, v{vS+4+i}, s[94:95]")
for i in range(4):
    a(f"v_cndmask_b32 v{vE+i}, v{vE+i}, v{vS+8+i}, s[96:97]")
for i in range(4):
    a(f"v_cndmask_b32 v{vE+i}, v{vE+i}, v{vS+12+i}, s[98:99]")
rnd2(vE, vE+1, 116); rnd2(vE+2, vE+3, 117)
a(f"s_mov_b32 s55, {SCALE}")
for i in range(4):
    a(f"v_mul_f32 v{vE+i}, s55, v{vE+i}")
rnd2(vE, vE+1, 116); rnd2(vE+2, vE+3, 117)
vM, vL = 118, 119
a(f"v_max_f32 v{vM}, v{vE}, v{vE+1}")
a(f"v_max3_f32 v{vM}, v{vM}, v{vE+2}, v{vE+3}")
head_reduce(vM, 119, "max")
a(f"ds_write_b32 v{vMXW}, v{vM} offset:{L_MX-SC}")
set_flag(F_A)
lds_wait4(F_A, 56)
a(f"ds_read_b128 v[56:59], v{vMXA} offset:{L_MX-SC}")
a("s_waitcnt lgkmcnt(0)")
a(f"v_max3_f32 v{vM}, v56, v57, v58")
a(f"v_max_f32 v{vM}, v{vM}, v59")
a(f"s_mov_b32 s55, {LOG2E}")
for i in range(4):
    a(f"v_sub_f32 v{vE+i}, v{vE+i}, v{vM}")
for i in range(4):
    a(f"v_mul_f32 v{vE+i}, s55, v{vE+i}")
for i in range(4):
    a(f"v_exp_f32 v{vE+i}, v{vE+i}")
a(f"v_add_f32 v{vL}, v{vE}, v{vE+1}")
a(f"v_add_f32 v56, v{vE+2}, v{vE+3}")
a(f"v_add_f32 v{vL}, v{vL}, v56")
a(f"v_cvt_pk_bf16_f32 v116, v{vE}, v{vE+1}")
a(f"v_cvt_pk_bf16_f32 v117, v{vE+2}, v{vE+3}")
a(f"ds_write_b64 v{vPW}, v[116:117]")
head_reduce(vL, 56, "add")
a(f"ds_write_b32 v{vMXW}, v{vL} offset:{L_SUM-SC}")
set_flag(F_B)
lds_wait4(F_B, 56)
a(f"ds_read_b128 v[56:59], v{vMXA} offset:{L_SUM-SC}")
a("s_waitcnt lgkmcnt(0)")
a(f"v_add_f32 v{vL}, v56, v57")
a("v_add_f32 v58, v58, v59")
a(f"v_add_f32 v58, v{vL}, v58")
a(f"v_mov_b32 v56, v{vM}")
a(f"v_mov_b32 v57, s{sTAG}")
a(f"v_mov_b32 v59, s{sTAG}")
a(f"s_lshl_b64 s[56:57], 1, s{sW}")
a(f"s_mov_b32 s61, {WS_ST}")
a("s_mov_b64 exec, s[56:57]")
a(f"buffer_store_dwordx4 v[56:59], v{vSTA}, {R('ws')}, s61 offen sc1")
a("s_mov_b64 exec, -1")
stamp(3)
a("s_setprio 0")
a(f"s_cmp_ge_u32 s{sS}, 2")
a("s_cbranch_scc1 L_K_NOTWO")

srd("wo")
a(f"s_lshl_b32 s58, s{sB}, 1")
a(f"s_add_u32 s58, s58, s{sS}")
a("s_lshr_b32 s59, s58, 2")
a("s_and_b32 s58, s58, 3")
a(f"s_lshl_b32 s60, s{sHKV}, 2")
a("s_add_u32 s58, s58, s60")
a("s_lshl_b32 s60, s58, 17")
a("s_lshl_b32 s59, s59, 8")
a("s_add_u32 s59, s59, s60")
a(f"s_lshl_b32 s60, s{sW}, 15")
a("s_add_u32 s59, s59, s60")
a(f"v_lshlrev_b32 v13, 10, v{vG}")
a(f"v_lshl_add_u32 v13, v{vC}, 4, v13")
a(f"s_lshl_b32 s60, s{sW}, 13")
a(f"s_add_u32 m0, s60, {L_K}")
dma(8, 13, "wo", 59, 4096)
a("s_lshl_b32 s65, s58, 9")
a(f"s_add_u32 s65, s65, {WS_ST}")
a("s_lshl_b32 s58, s58, 15")
a(f"s_lshl_b32 s60, s{sW}, 13")
a("s_add_u32 s58, s58, s60")
a(f"s_add_u32 s58, s58, {WS_OP}")
a("s_add_u32 s59, s58, 4096")
a(f"s_mul_i32 s60, s{sW}, {2*OL_STR}")
a(f"s_add_u32 s60, s60, {L_OL}")
a("v_lshl_add_u32 v13, v0, 2, s60")
a(f"s_lshl_b32 s60, s{sW}, 5")
a(f"s_add_u32 s60, s60, {L_CF}")
a("v_mov_b32 v14, s60")
for i in range(4): a(f"v_mov_b32 v{56+i}, 0")
a(f"s_cmp_lg_u32 s{sW}, 0")
a("s_cbranch_scc1 L_K_NOCF")
a("v_and_b32 v64, 31, v0")
a("v_lshlrev_b32 v65, 4, v64")
a("v_lshlrev_b32 v64, 2, v64")
a(f"v_add_u32 v64, {L_CF}, v64")
a("v_and_b32 v66, 7, v0")
a("v_lshlrev_b32 v66, 3, v66")
a(f"s_mov_b32 s60, {WS_ZF}")
Ls = a.newlabel("ST")
a.label(Ls)
a(f"buffer_load_dwordx4 v[68:71], v65, {R('ws')}, s65 offen sc1")
a(f"buffer_load_dword v67, v66, {R('ws')}, s60 offen sc1")
budget()
a("s_waitcnt vmcnt(0)")
a(f"v_cmp_eq_u32 s[56:57], s{sTAG}, v69")
a(f"v_cmp_eq_u32 vcc, s{sTAG}, v71")
a("s_and_b64 s[56:57], vcc, s[56:57]")
a(f"v_cmp_eq_u32 vcc, s{sTAG}, v67")
a("s_and_b64 vcc, vcc, s[56:57]")
a("s_cmp_eq_u64 vcc, -1")
a(f"s_cbranch_scc1 {Ls}_ok")
a("s_sleep 2")
a(f"s_branch {Ls}")
a.label(f"{Ls}_ok")
a(f"v_max_f32_dpp v72, v68, v68 quad_perm:[1,0,3,2] {DPPM}")
a(f"v_max_f32_dpp v72, v72, v72 quad_perm:[2,3,0,1] {DPPM}")
a("v_sub_f32 v72, v68, v72")
a(f"v_mul_f32 v72, {LOG2E}, v72")
a("v_exp_f32 v72, v72")
a("v_mul_f32 v73, v72, v70")
a(f"v_add_f32_dpp v73, v73, v73 quad_perm:[1,0,3,2] {DPPM}")
a(f"v_add_f32_dpp v73, v73, v73 quad_perm:[2,3,0,1] {DPPM}")
rcp_nr(74, 73, 75)
a("v_mul_f32 v72, v72, v74")
a("ds_write_b32 v64, v72")
a(f"ds_write_b32 v{vSC}, v{vONE} offset:{F_CF-SC}")
a.label("L_K_NOCF")
a("s_waitcnt vmcnt(0)")
set_flag(F_W)
stamp(4)
lds_wait1(F_CF, 48)
a("ds_read_b128 v[48:51], v14")
a("ds_read_b128 v[52:55], v14 offset:16")
lds_wait4(F_V, 60, minval=9)
stamp(5)
vD = 16
def ld(i): a(f"buffer_load_dwordx4 v[{vD+i*4}:{vD+i*4+3}], v{vL16}, {R('ws')}, {'s58' if i < 4 else 's59'} offen offset:{(i%4)*1024} sc1")
def cons(i):
    bb = i // 4
    a(f"v_fmac_f32 v{56+bb*2}, v{48+i}, v{vD+i*4}")
    a(f"v_fmac_f32 v{57+bb*2}, v{48+i}, v{vD+i*4+2}")
masked_gather(8, ld, lambda i: [vD+i*4+1, vD+i*4+3], cons, SL_POLL)
a("v_cvt_pk_bf16_f32 v56, v56, v57")
a("v_cvt_pk_bf16_f32 v58, v58, v59")
a("ds_write_b32 v13, v56")
a(f"ds_write_b32 v13, v58 offset:{OL_STR}")
set_flag(F_C)
stamp(6)
a(f"s_cmp_lg_u32 s{sS}, 0")
a("s_cbranch_scc1 L_FIN")

srd("b2"); srd("out")
a("v_and_b32 v13, 7, v0")
a("v_lshlrev_b32 v14, 2, v13")
a(f"s_lshl_b32 s58, s{sHKV}, 7")
a(f"s_lshl_b32 s59, s{sW}, 5")
a("s_add_u32 s58, s58, s59")
a(f"s_lshl_b32 s59, s{sB}, 10")
a("s_add_u32 s59, s59, s58")
a(f"buffer_load_dword v15, v14, {R('b2')}, s58 offen")
a("s_lshl_b32 s60, s63, 2")
a(f"s_add_u32 s60, s60, s{sW}")
a("s_lshl_b32 s60, s60, 12")
a(f"s_add_u32 s60, s60, {WS_OUTP}")
a("v_lshlrev_b32 v16, 3, v13")
a("v_and_b32 v17, 31, v0")
a("v_lshlrev_b32 v17, 4, v17")
a("v_mov_b32 v18, 0")
a("v_mov_b32 v19, 0")
a("v_mov_b32 v20, 1.0")
a("v_cmp_gt_u32 vcc, 32, v0")
a("v_cndmask_b32 v20, 0, v20, vcc")
a("s_waitcnt vmcnt(0)")
unpack(15, 22, 23)
vD = 24
def ld(i):
    if i < 3: a(f"buffer_load_dwordx4 v[{vD+i*4}:{vD+i*4+3}], v{vL16}, {R('ws')}, s60 offen offset:{i*1024} sc1")
    elif i == 3: a(f"buffer_load_dwordx4 v[{vD+12}:{vD+15}], v17, {R('ws')}, s60 offen offset:3072 sc1")
    else: a(f"buffer_load_dwordx2 v[40:41], v16, {R('ws')}, s60 offen offset:{NMLP*128} sc1")
def tg(i): return [vD+i*4+1, vD+i*4+3] if i < 4 else [41]
def cons(i):
    if i < 3:
        a(f"v_add_f32 v18, v18, v{vD+i*4}")
        a(f"v_add_f32 v19, v19, v{vD+i*4+2}")
    elif i == 3:
        a(f"v_fmac_f32 v18, v20, v{vD+12}")
        a(f"v_fmac_f32 v19, v20, v{vD+14}")
    else:
        unpack(40, 42, 43)
masked_gather(5, ld, tg, cons, SL_RED)
stamp(9)
a(f"v_add_f32_dpp v18, v18, v18 row_ror:8 {DPPM}")
a(f"v_add_f32_dpp v19, v19, v19 row_ror:8 {DPPM}")
for sw in ("16", "32"):
    a("v_mov_b32 v24, v18")
    a("v_mov_b32 v25, v19")
    a(f"v_permlane{sw}_swap_b32 v18, v24")
    a(f"v_permlane{sw}_swap_b32 v19, v25")
    a("v_add_f32 v18, v18, v24")
    a("v_add_f32 v19, v19, v25")
rnd2(18, 19, 24)
a("v_add_f32 v18, v18, v22")
a("v_add_f32 v19, v19, v23")
rnd2(18, 19, 24)
a("v_add_f32 v18, v18, v42")
a("v_add_f32 v19, v19, v43")
a("v_cvt_pk_bf16_f32 v18, v18, v19")
a("s_mov_b64 exec, 0xff")
a(f"buffer_store_dword v18, v14, {R('out')}, s59 offen")
a("s_mov_b64 exec, -1")
stamp(10)
a("s_cmp_lg_u32 s2, 0")
a("s_cbranch_scc1 L_FIN")
a(f"s_cmp_lg_u32 s{sW}, 0")
a("s_cbranch_scc1 L_FIN")
a(f"v_mov_b32 v34, s{sTAG}")
a("s_mov_b64 exec, 1")
a(f"buffer_store_dword v34, v{vZ}, {R('ws')}, 0 offen sc1")
a("s_mov_b64 exec, -1")
a("s_branch L_FIN")

a.label("L_VW")
a("s_setprio 3")
a(f"s_cmp_lg_u32 s{sAW}, 0")
a("s_cbranch_scc1 L_V_NZ")
a(f"v_lshl_add_u32 v13, v0, 2, v{vSC}")
a("v_mov_b32 v14, 1.0")
a(f"v_cmp_eq_u32 vcc, {(C_ONE-SC)//4}, v0")
a("v_cndmask_b32 v14, 0, v14, vcc")
a("ds_write_b32 v13, v14")
a(f"ds_write_b32 v13, v{vZ} offset:256")
a(f"ds_write_b32 v13, v{vZ} offset:512")
a.label("L_V_NZ")
a(f"s_lshl_b32 s59, s{sHKV}, 10")
a(f"s_lshl_b32 s60, s{sB}, 7")
a("s_add_u32 s59, s59, s60")
a(f"s_lshl_b32 s60, s{sS}, 20")
a("s_add_u32 s59, s59, s60")
a(f"s_lshl_b32 s60, s{sAW}, 18")
a("s_add_u32 s59, s59, s60")
a("v_lshrrev_b32 v13, 3, v0")
a("v_lshlrev_b32 v13, 13, v13")
a("v_and_b32 v14, 7, v0")
a("v_lshl_add_u32 v13, v14, 4, v13")
a(f"s_lshl_b32 s60, s{sAW}, 12")
a(f"s_add_u32 m0, s60, {L_WQ}")
a("v_lshrrev_b32 v15, 5, v0")
a("v_lshlrev_b32 v15, 10, v15")
a("v_and_b32 v14, 31, v0")
a("v_lshl_add_u32 v15, v14, 3, v15")
a(f"s_lshl_b32 s60, s{sS}, 8")
a("v_add_u32 v15, s60, v15")
a(f"s_lshl_b32 s60, s{sAW}, 11")
a(f"s_lshl_b32 s61, s{sW}, 10")
a("s_waitcnt lgkmcnt(0)")
if STAMPS:
    a("v_mov_b32 v240, s92")
DBGV = int(opts.get("dbgv", 0))
if DBGV: stamp(5)
srd("x"); srd("wq"); srd("ws")
a(f"buffer_load_dwordx4 v[16:19], v{vL16}, {R('x')}, s60 offen")
a(f"buffer_load_dwordx4 v[20:23], v{vL16}, {R('x')}, s60 offen offset:1024")
a(f"buffer_load_dwordx2 v[64:65], v15, {R('x')}, s60 offen")
a(f"buffer_load_dword v6, v{vZ}, {R('ws')}, 0 offen sc1")
dma(4, 13, "wq", 59, 65536)
a(f"buffer_load_dwordx4 v[{vX}:{vX+3}], v{vL16}, {R('x')}, s61 offen")
if DBGV: stamp(6)
a("s_barrier")
srd("v")
a(f"s_mul_i32 s60, s{sAW}, {2*Y_STR}")
a(f"s_add_u32 s60, s60, {L_Y}")
a("v_lshrrev_b32 v15, 5, v0")
a(f"v_mul_u32_u24 v15, {Y_STR}, v15")
a("v_and_b32 v14, 31, v0")
a("v_lshl_add_u32 v15, v14, 3, v15")
a("v_add_u32 v15, s60, v15")
trA_addr(70, 128, 14)
a(f"s_lshl_b32 s60, s{sAW}, 5")
a(f"s_add_u32 s60, s60, {L_WQ}")
a("v_add_u32 v70, s60, v70")
B_addr(71, L_Y, Y_STR, 14)
a("v_and_b32 v72, 7, v0")
a("v_lshlrev_b32 v72, 17, v72")
a(f"v_lshl_add_u32 v72, v{vG}, 5, v72")
a("v_bfe_u32 v14, v0, 3, 1")
a("v_lshl_add_u32 v72, v14, 4, v72")
a(f"s_lshl_b32 s61, s{sHKV}, 2")
a(f"s_add_u32 s61, s61, s{sS}")
a("s_lshl_b32 s61, s61, 12")
a(f"s_lshl_b32 s60, s{sB}, 9")
a("s_add_u32 s61, s61, s60")
a(f"s_lshl_b32 s60, s{sAW}, 7")
a("s_add_u32 s61, s61, s60")
a(f"s_add_u32 s61, s61, {WS_QP}")
a("s_mov_b32 s100, 0xff00ff00"); a("s_mov_b32 s101, 0xff00ff00")
a("s_mov_b32 s98, 0"); a("s_mov_b32 s99, -1")
a(f"s_and_b32 s60, s{sAW}, 1")
a("s_lshl_b32 s60, s60, 3")
a(f"v_lshlrev_b32 v13, 1, v{vG}")
a("v_or_b32 v13, s60, v13")
a(f"v_xor_b32 v13, v13, v{vC}")
a("v_lshlrev_b32 v13, 4, v13")
a(f"v_lshl_add_u32 v13, v{vG}, 8, v13")
a(f"s_lshl_b32 s60, s{sAW}, 11")
a("s_add_u32 s59, s58, s60")
if DBGV: stamp(7)
a("s_waitcnt vmcnt(7)")
if DBGV: stamp(10)
def st0():
    for i in range(4): unpack(16+i, 24+2*i, 25+2*i)
    row_stats(24, 40, 55)
def st1():
    for i in range(4): unpack(20+i, 32+2*i, 33+2*i)
    row_stats(32, 52, 94)
A_, B_ = capture(st0), capture(st1)
for x_, y_ in zip(A_, B_):
    a.items += [x_, y_]
a("v_cndmask_b32 v40, v40, v52, s[98:99]")
a("v_cndmask_b32 v41, v41, v53, s[98:99]")
rnd2(40, 41, 42)
sd_of(41, 42)
rcp_nr(42, 41, 43)
a("s_waitcnt vmcnt(6)")
unpack(64, 66, 67); unpack(65, 68, 69)
for i in range(4):
    a(f"v_sub_f32 v{66+i}, v{66+i}, v40")
rnd2(66, 67, 44); rnd2(68, 69, 45)
for i in range(4):
    a(f"v_mul_f32 v{44+i}, v{66+i}, v42")
for i in range(4):
    a(f"v_fma_f32 v{66+i}, -v{44+i}, v41, v{66+i}")
for i in range(4):
    a(f"v_fma_f32 v{66+i}, v{66+i}, v42, v{44+i}")
a("v_cvt_pk_bf16_f32 v44, v66, v67")
a("v_cvt_pk_bf16_f32 v45, v68, v69")
a("ds_write_b64 v15, v[44:45]")
if DBGV: stamp(11)
a("s_waitcnt vmcnt(5)")
a("v_add_u32 v6, 1, v6")
a(f"v_readfirstlane_b32 s{sTAG}, v6")
a(f"ds_write_b32 v{vSC}, v6 offset:{F_TAG-SC}")
a(f"ds_write_b32 v{vSC}, v{vONE} offset:{F_TRDY-SC}")
a(f"v_mov_b32 v53, s{sTAG}")
a(f"v_mov_b32 v55, s{sTAG}")
a("s_waitcnt vmcnt(0)")
set_flag(F_LN1)
stamp(1)
lds_wait4(F_LN1, 16)
for kk in range(4):
    a(f"ds_read_b128 v[{16+kk*4}:{19+kk*4}], v71 offset:{kk*64}")
    for hh in range(2):
        a(f"ds_read_b64_tr_b16 v[{32+kk*4+hh*2}:{33+kk*4+hh*2}], v70 offset:{kk*4096+hh*512}")
for kk in range(4):
    a(f"s_waitcnt lgkmcnt({(3-kk)*3})")
    c = "0" if kk == 0 else "v[56:59]"
    a(f"v_mfma_f32_16x16x32_bf16 v[56:59], v[{32+kk*4}:{35+kk*4}], v[{16+kk*4}:{19+kk*4}], {c}")
a(f"s_lshl_b32 s60, s{sAW}, 11")
a(f"s_add_u32 m0, s60, {L_V}")
a("v_cndmask_b32 v52, v56, v58, s[100:101]")
a("v_cndmask_b32 v54, v57, v59, s[100:101]")
a(f"buffer_store_dwordx4 v[52:55], v72, {R('ws')}, s61 offen sc1")
set_flag(F_Q)
stamp(2)
a("s_setprio 1")
a(f"s_cmp_lg_u32 s{sW}, 5")
a("s_cbranch_scc1 L_V_NOZ")
a("s_and_b32 s60, s2, 31")
a("s_cmp_lg_u32 s60, 24")
a("s_cbranch_scc1 L_V_NOZ")
for i in range(4): a(f"v_mov_b32 v{16+i}, 0")
a(f"s_mul_i32 s60, s{sB}, 3072")
a(f"s_add_u32 s60, s60, {WS_HACC}")
for j in range(3):
    a(f"buffer_store_dwordx4 v[16:19], v{vL16}, {R('ws')}, s60 offen offset:{j*1024} sc1")
a(f"s_lshl_b32 s60, s{sB}, 3")
a(f"s_add_u32 s60, s60, {WS_ZF}")
a("s_waitcnt vmcnt(0)")
a("s_mov_b64 exec, 1")
a(f"buffer_store_dword v53, v{vZ}, {R('ws')}, s60 offen sc1")
a("s_mov_b64 exec, -1")
a.label("L_V_NOZ")
step = lambda i: 1024 if i % 2 == 0 else 7168
if QFL:
    a(f"s_cmp_lg_u32 s{sAW}, 0")
    a("s_cbranch_scc1 L_V_NOQF")
    a("s_setprio 3")
    a(f"s_lshl_b32 s60, s{sHKV}, 12")
    a(f"s_add_u32 s60, s60, {WS_QF}")
    a("s_lshr_b32 s61, s2, 3")
    a("s_lshl_b32 s61, s61, 7")
    a("s_add_u32 s61, s61, s60")
    a("v_and_b32 v20, 31, v0")
    a("v_lshlrev_b32 v20, 7, v20")
    lds_wait4(F_Q, 16)
    a("s_mov_b64 exec, 1")
    a(f"buffer_store_dword v53, v{vZ}, {R('ws')}, s61 offen sc1")
    a("s_mov_b64 exec, -1")
    a(f"s_sleep {SL_Q}")
    a.label("L_V_QF")
    a(f"buffer_load_dword v21, v20, {R('ws')}, s60 offen sc1")
    budget()
    a("s_waitcnt vmcnt(0)")
    a(f"v_cmp_eq_u32 vcc, s{sTAG}, v21")
    a("s_cmp_eq_u64 vcc, -1")
    a("s_cbranch_scc0 L_V_QF")
    a(f"ds_write_b32 v{vSC}, v{vONE} offset:{F_QGO-SC}")
    a("s_setprio 1")
    a.label("L_V_NOQF")
lds_wait4(F_KI, 16)
dma(16, 13, "v", 59, step, step)
stamp(3)
vPR, vOPA, vTR = 120, 121, 122
a("v_and_b32 v15, 3, v0")
a(f"v_mul_u32_u24 v{vPR}, {P_STR}, v15")
a(f"v_add_u32 v{vPR}, {L_P}, v{vPR}")
a(f"v_lshl_add_u32 v{vPR}, v{vG}, 4, v{vPR}")
a(f"s_lshl_b32 s60, s{sHKV}, 2")
a(f"v_add_u32 v{vOPA}, s60, v15")
a("s_lshr_b32 s60, s2, 3")
a(f"v_lshlrev_b32 v{vOPA}, 5, v{vOPA}")
a(f"v_add_u32 v{vOPA}, s60, v{vOPA}")
a(f"v_lshlrev_b32 v{vOPA}, 10, v{vOPA}")
a("v_bfe_u32 v15, v0, 3, 1")
a(f"v_lshl_add_u32 v{vOPA}, v15, 7, v{vOPA}")
a(f"v_lshl_add_u32 v{vOPA}, v{vG}, 5, v{vOPA}")
a("v_bfe_u32 v15, v0, 2, 1")
a(f"v_lshl_add_u32 v{vOPA}, v15, 4, v{vOPA}")
a("v_bfe_u32 v14, v0, 2, 2")
a(f"v_and_b32 v15, 1, v{vG}")
a("v_lshl_add_u32 v15, v15, 2, v14")
a("v_lshlrev_b32 v15, 1, v15")
a("v_bfe_u32 v16, v0, 1, 1")
a("v_xor_b32 v15, v15, v16")
a(f"v_lshl_add_u32 v14, v{vG}, 3, v14")
a("v_lshlrev_b32 v14, 8, v14")
a("v_and_b32 v16, 1, v0")
a("v_lshl_add_u32 v14, v16, 3, v14")
for dt in range(2):
    a(f"s_lshl_b32 s60, s{sAW}, 2")
    if dt: a("s_add_u32 s60, s60, 2")
    a("v_xor_b32 v16, s60, v15")
    a(f"v_lshl_add_u32 v{vTR+dt}, v16, 4, v14")
a("s_mov_b32 s94, 0x00f000f0"); a("s_mov_b32 s95, 0x00f000f0")
a("s_mov_b32 s96, 0x0f000f00"); a("s_mov_b32 s97, 0x0f000f00")
a("s_mov_b32 s98, 0xf000f000"); a("s_mov_b32 s99, 0xf000f000")
a(f"s_lshl_b32 s60, s{sAW}, 8")
a(f"s_add_u32 s60, s60, {WS_OP}")
a(f"v_mov_b32 v105, s{sTAG}")
a(f"v_mov_b32 v107, s{sTAG}")
lds_wait4(F_B, 16, sleep=1)
vP = 16
for kk in range(8):
    a(f"ds_read_b128 v[{vP+kk*4}:{vP+kk*4+3}], v{vPR} offset:{kk*64}")
stamp(9)
vA = 48
vO = 96
def pv_reads(kk):
    base = vA + (kk % 6)*8
    for dt in range(2):
        for hh in range(2):
            r = base + dt*4 + hh*2
            a(f"ds_read_b64_tr_b16 v[{r}:{r+1}], v{vTR+dt} offset:{kk*8192 + hh*1024}")
def pv_mfma(kk, dt):
    base = vA + (kk % 6)*8
    c = "0" if kk == 0 else f"v[{vO+dt*4}:{vO+dt*4+3}]"
    a(f"v_mfma_f32_16x16x32_bf16 v[{vO+dt*4}:{vO+dt*4+3}], v[{base+dt*4}:{base+dt*4+3}], v[{vP+kk*4}:{vP+kk*4+3}], {c}")
for grp in ([0,1,2,3,4], [5,6], [7]):
    last = grp[-1]
    a(f"v_mov_b32 v14, {last+1}")
    a(f"s_waitcnt vmcnt({14-2*last})")
    set_flag(F_V, 14)
    lds_wait4(F_V, 108, minval=last+1)
    pend = list(grp)
    issued = []
    for kk in pend[:3]:
        pv_reads(kk); issued.append(kk)
    for idx, kk in enumerate(pend):
        after = len(issued) - 1 - idx
        for dt in range(2):
            a(f"s_waitcnt lgkmcnt({after*4 + 2 - 2*dt})")
            pv_mfma(kk, dt)
        if idx + 3 < len(pend):
            pv_reads(pend[idx+3]); issued.append(pend[idx+3])
a("v_mov_b32 v14, 9")
a(f"v_cndmask_b32 v104, v{vO}, v{vO+2}, s[94:95]")
a(f"v_cndmask_b32 v106, v{vO+1}, v{vO+3}, s[94:95]")
a(f"v_cndmask_b32 v104, v104, v{vO+4}, s[96:97]")
a(f"v_cndmask_b32 v106, v106, v{vO+5}, s[96:97]")
a(f"v_cndmask_b32 v104, v104, v{vO+6}, s[98:99]")
a(f"v_cndmask_b32 v106, v106, v{vO+7}, s[98:99]")
a(f"buffer_store_dwordx4 v[104:107], v{vOPA}, {R('ws')}, s60 offen sc1")
stamp(4)
a(f"s_cmp_ge_u32 s{sS}, 2")
a("s_cbranch_scc1 L_V_NOTWO")

a(f"s_lshl_b32 s58, s{sB}, 1")
a(f"s_add_u32 s58, s58, s{sS}")
a("s_lshl_b32 s64, s58, 3")
a(f"s_add_u32 s64, s64, s{sHKV}")
a("s_lshl_b32 s64, s64, 7")
a(f"s_add_u32 s64, s64, {WS_FL}")
a("s_lshr_b32 s63, s58, 2")
a("s_lshl_b32 s63, s63, 2")
a(f"s_add_u32 s63, s63, s{sAW}")
trA_addr(13, 256, 15)
a(f"s_lshl_b32 s60, s{sAW}, 6")
a(f"s_add_u32 s60, s60, {L_K}")
a("v_add_u32 v13, s60, v13")
a("s_waitcnt vmcnt(0)")
set_flag(F_V, 14)
B_addr(14, L_OL, OL_STR, 15)
a(f"s_mul_i32 s60, s{sAW}, {8*RL_STR}")
a(f"s_add_u32 s60, s60, {L_RL}")
a("v_and_b32 v15, 7, v0")
a(f"v_mul_u32_u24 v15, {RL_STR}, v15")
a("v_bfe_u32 v16, v0, 3, 1")
a("v_lshl_add_u32 v15, v16, 6, v15")
a(f"v_lshl_add_u32 v15, v{vG}, 4, v15")
a("v_add_u32 v15, s60, v15")
a("v_bfe_u32 v16, v0, 2, 2")
a("v_and_b32 v17, 3, v0")
a(f"v_mul_u32_u24 v18, {RL_STR}, v{vG}")
a("v_lshl_add_u32 v18, v16, 5, v18")
a("v_lshl_add_u32 v18, v17, 2, v18")
a("v_add_u32 v18, s60, v18")
a(f"v_mov_b32 v19, {C_ONE}")
a(f"v_mov_b32 v20, {C_ZERO}")
a("v_cmp_eq_u32 s[56:57], 3, v17")
a("v_cmp_eq_u32 s[58:59], 2, v17")
for j in range(3):
    for bh in range(2):
        r = 24 + j*2 + bh
        a(f"v_add_u32 v{r}, {j*12 + bh*4*RL_STR}, v18")
        a(f"v_cndmask_b32 v{r}, v{r}, v19, s[56:57]")
        if j == 2:
            a(f"v_cndmask_b32 v{r}, v{r}, v20, s[58:59]")
a(f"v_mul_u32_u24 v21, 3072, v{vG}")
a("v_and_b32 v22, 15, v0")
a("v_lshl_add_u32 v21, v22, 2, v21")
a("s_lshl_b32 s63, s63, 6")
a(f"s_add_u32 s63, s63, {WS_HACC}")
a("s_add_u32 s61, s63, 12288")
lds_wait4(F_W, 32)
vA = 32
for nt_ in range(2):
    for kk in range(4):
        for hh in range(2):
            r = vA + (nt_*4+kk)*4 + hh*2
            a(f"ds_read_b64_tr_b16 v[{r}:{r+1}], v13 offset:{kk*8192 + hh*1024 + nt_*32}")
    a("s_waitcnt lgkmcnt(0)")
stamp(10)
lds_wait4(F_C, 64)
stamp(5)
vB = 64
for kk in range(4):
    a(f"ds_read_b128 v[{vB+kk*4}:{vB+kk*4+3}], v14 offset:{kk*64}")
for kk in range(4):
    a(f"s_waitcnt lgkmcnt({3-kk})")
    for nt_ in range(2):
        c = "0" if kk == 0 else f"v[{80+nt_*4}:{83+nt_*4}]"
        r = vA + (nt_*4+kk)*4
        a(f"v_mfma_f32_16x16x32_bf16 v[{80+nt_*4}:{83+nt_*4}], v[{r}:{r+3}], v[{vB+kk*4}:{vB+kk*4+3}], {c}")
for i in range(4):
    a(f"v_cndmask_b32 v{88+i}, v{80+i}, v{84+i}, s[100:101]")
a("ds_write_b128 v15, v[88:91]")
for r in range(6):
    a(f"ds_read_b32 v{92+r}, v{24+r}")
for j in range(3):
    for bh in range(2):
        r = j*2 + bh
        a(f"s_waitcnt lgkmcnt({5-r})")
        a(f"buffer_atomic_add_f32 v{92+r}, v21, {R('ws')}, {'s63' if bh == 0 else 's61'} offen offset:{j*1024}")
a(f"s_cmp_lg_u32 s{sAW}, 3")
a("s_cbranch_scc1 L_V_NOFL")
a("s_mov_b64 exec, 1")
a(f"buffer_store_dword v105, v{vZ}, {R('ws')}, s64 offen sc1")
a("s_mov_b64 exec, -1")
a.label("L_V_NOFL")
stamp(6)
if STAMPS:
    a("s_waitcnt vmcnt(0)")
    stamp(7)
a("s_branch L_FIN")


def mlp_decode():
    a(f"s_lshl_b32 s62, s{sB}, 1")
    a(f"s_add_u32 s62, s62, s{sS}")
    a("s_sub_u32 s62, s62, 2")
    a("s_lshr_b32 s63, s62, 2")
    a("s_lshl_b32 s63, s63, 3")
    a(f"s_add_u32 s63, s63, s{sHKV}")
    a("s_and_b32 s62, s62, 3")

def w2_common():
    trA_addr(13, 1024, 16)
    a(f"s_lshl_b32 s60, s{sW}, 7")
    a("v_add_u32 v13, s60, v13")
    a("v_add_u32 v14, 32768, v13")
    a("v_and_b32 v16, 1, v0")
    a(f"v_lshlrev_b32 v{vSTO}, 17, v16")
    a("v_bfe_u32 v17, v0, 2, 2")
    a(f"v_lshl_add_u32 v{vSTO}, v17, 12, v{vSTO}")
    a(f"v_lshl_add_u32 v{vSTO}, v{vG}, 5, v{vSTO}")
    a("v_bfe_u32 v17, v0, 1, 1")
    a(f"v_lshl_add_u32 v{vSTO}, v17, 4, v{vSTO}")
    a(f"v_mul_u32_u24 v{vH1R}, {H1_STR}, v16")
    a(f"v_lshl_add_u32 v{vH1R}, v{vG}, 4, v{vH1R}")
    a(f"v_add_u32 v{vH1R}, {L_H1}, v{vH1R}")
    a("s_lshl_b32 s64, s62, 18")
    a(f"s_lshl_b32 s65, s{sW}, 14")
    a("s_add_u32 s64, s64, s65")
    a("s_lshl_b32 s65, s63, 7")
    a("s_add_u32 s64, s64, s65")
    a(f"s_add_u32 s64, s64, {WS_OUTP}")
    a("s_mov_b32 s94, 0xcccccccc"); a("s_mov_b32 s95, 0xcccccccc")
    a("s_mov_b32 s96, 0xf0f0f0f0"); a("s_mov_b32 s97, 0xf0f0f0f0")
    a("s_mov_b32 s98, 0xff00ff00"); a("s_mov_b32 s99, 0xff00ff00")
    a(f"v_mov_b32 v161, s{sTAG}")
    a(f"v_mov_b32 v163, s{sTAG}")
    lds_wait4(F_W2, 16, sleep=1)
    for nt_ in range(4):
        for kk in range(2):
            for hh in range(2):
                r = vA2 + (nt_*2+kk)*4 + hh*2
                a(f"ds_read_b64_tr_b16 v[{r}:{r+1}], v{13+kk} offset:{hh*4096 + nt_*32}")
        if nt_ % 2 == 1: a("s_waitcnt lgkmcnt(0)")
    stamp(10)

def flags_poll():
    zflag_wait(16)
    a("v_lshlrev_b32 v13, 7, v0")
    a(f"s_mov_b32 s58, {WS_FL}")
    a(f"s_mov_b32 s59, {WS_FL+8192}")
    Lf = a.newlabel("FL")
    a.label(Lf)
    a(f"buffer_load_dword v16, v13, {R('ws')}, s58 offen sc1")
    a(f"buffer_load_dword v17, v13, {R('ws')}, s59 offen sc1")
    budget()
    a("s_waitcnt vmcnt(0)")
    a(f"v_cmp_eq_u32 vcc, s{sTAG}, v16")
    a(f"v_cmp_eq_u32 s[56:57], s{sTAG}, v17")
    a("s_and_b64 vcc, vcc, s[56:57]")
    a("s_cmp_eq_u64 vcc, -1")
    a(f"s_cbranch_scc1 {Lf}_ok")
    a(f"s_sleep {SL_POLL}")
    a(f"s_branch {Lf}")
    a.label(f"{Lf}_ok")
    if SL_GO: a(f"s_sleep {SL_GO}")

def h_gather():
    Lh = a.newlabel("MH")
    a.label(Lh)
    for j in range(3):
        a(f"buffer_load_dwordx4 v[{24+j*4}:{27+j*4}], v{vL16}, {R('ws')}, s60 offen offset:{j*1024} sc1")
    budget()
    a("s_waitcnt vmcnt(2)")
    a("v_cmp_eq_f32 s[56:57], s61, v27")
    a("s_waitcnt vmcnt(1)")
    a("v_cmp_eq_f32 vcc, s61, v31")
    a("s_and_b64 s[56:57], s[56:57], vcc")
    a("s_waitcnt vmcnt(0)")
    a("v_cmp_eq_f32 vcc, s61, v35")
    a("s_and_b64 s[56:57], s[56:57], vcc")
    a("s_cmp_eq_u64 s[56:57], -1")
    a(f"s_cbranch_scc1 {Lh}_ok")
    a(f"s_sleep {SL_POLL+2}")
    a(f"s_branch {Lh}")
    a.label(f"{Lh}_ok")
    stamp(5)
    src = [24, 25, 26, 28, 29, 30, 32, 33]
    for i in range(0, 8, 2):
        a(f"v_cvt_pk_bf16_f32 v{36+i//2}, v{src[i]}, v{src[i+1]}")
    for i in range(4):
        unpack(36+i, 24+2*i, 25+2*i)
    for i in range(0, 8, 2):
        a(f"v_pk_add_f32 v[{24+i}:{25+i}], v[{24+i}:{25+i}], v[{16+i}:{17+i}]")
    for i in range(0, 8, 2):
        a(f"v_cvt_pk_bf16_f32 v{44+i//2}, v{24+i}, v{25+i}")

a.label("L_K_NOTWO")
mlp_decode()
a(f"s_cmp_lt_u32 s63, {NMLP}")
a("s_cbranch_scc1 L_K_MLP")
a(f"s_cmp_lg_u32 s2, {HPUB_ID}")
a("s_cbranch_scc1 L_FIN")
a("s_branch L_HPUB")
a.label("L_K_MLP")
srd("w1"); srd("b1"); srd("w2")
a("v_lshrrev_b32 v13, 3, v0")
a("v_mul_u32_u24 v13, 3584, v13")
a("v_and_b32 v16, 7, v0")
a("v_lshl_add_u32 v13, v16, 4, v13")
a("s_lshl_b32 s58, s63, 7")
a(f"s_lshl_b32 s60, s{sW}, 5")
a("s_add_u32 s60, s60, s58")
a(f"v_lshlrev_b32 v16, 3, v{vG}")
a(f"buffer_load_dwordx2 v[14:15], v16, {R('b1')}, s60 offen")
a(f"s_mul_i32 s59, s{sW}, {32*3584}")
a("s_add_u32 s58, s59, s58")
a(f"s_lshl_b32 s61, s{sW}, 12")
a(f"s_add_u32 s61, s61, {L_K}")
if W1AFTER: lds_wait4(F_V, 16, minval=9, sleep=2)
if SL_W: a(f"s_sleep {SL_W}")
for q in range(4):
    a(f"s_add_u32 s60, s62, {q}")
    a("s_and_b32 s60, s60, 3")
    a(f"s_mul_i32 s59, s60, {128*3584}")
    a("s_add_u32 s59, s59, s58")
    a("s_lshl_b32 s60, s60, 14")
    a("s_add_u32 m0, s60, s61")
    dma(4, 13, "w1", 59, 8*3584, pol=MLPP)
stamp(4)
trA_addr(13, 128, 16)
a(f"s_lshl_b32 s60, s{sW}, 5")
a(f"s_add_u32 s60, s60, {L_K}")
a("v_add_u32 v13, s60, v13")
a("v_mov_b32 v16, 2")
a("s_waitcnt vmcnt(0)")
set_flag(F_W, 16)
unpack(14, vB1, vB1+1); unpack(15, vB1+2, vB1+3)
lds_wait4(F_W, 16, sleep=1, minval=2)
for kk in range(16):
    for hh in range(2):
        a(f"ds_read_b64_tr_b16 v[{vA1+kk*4+hh*2}:{vA1+kk*4+hh*2+1}], v13 offset:{kk*4096+hh*512}")
    if kk % 4 == 3: a("s_waitcnt lgkmcnt(0)")
for i in range(4): a(f"v_mov_b32 v{16+i}, 0x3f803f80")
for kk in range(16):
    c = "0" if kk == 0 else f"v[{vCS}:{vCS+3}]"
    a(f"v_mfma_f32_16x16x32_bf16 v[{vCS}:{vCS+3}], v[{vA1+kk*4}:{vA1+kk*4+3}], v[16:19], {c}")
a("v_and_b32 v16, 1, v0")
a(f"v_mul_u32_u24 v{vYR}, {Y_STR}, v16")
a(f"v_lshl_add_u32 v{vYR}, v{vG}, 4, v{vYR}")
a(f"v_add_u32 v{vYR}, {L_Y}, v{vYR}")
a(f"v_mul_u32_u24 v{vH1W}, {H1_STR}, v16")
a(f"v_lshl_add_u32 v{vH1W}, v{vG}, 3, v{vH1W}")
a(f"s_lshl_b32 s60, s{sW}, 5")
a(f"s_add_u32 s60, s60, {L_H1}")
a(f"v_add_u32 v{vH1W}, s60, v{vH1W}")
a(f"v_lshlrev_b32 v{vABR}, 4, v16")
a(f"v_add_u32 v{vABR}, {L_AB}, v{vABR}")
k0 = 0.7978845608028654; k1 = 0.044715; l2e = 1.4426950408889634
a(f"s_mov_b32 s67, {f2u(-2*k0*k1*l2e):#x}")
a(f"v_mov_b32 v{vGC}, {f2u(-2*k0*l2e):#x}")
stamp(11)
w2_common()
a("s_setprio 2")
Ly = a.newlabel("WY")
a.label(Ly)
a(f"ds_read_b64 v[16:17], v{vSC} offset:{F_Y-SC}")
budget()
a("s_waitcnt lgkmcnt(0)")
a("v_and_b32 v16, v16, v17")
a("v_readfirstlane_b32 s54, v16")
a("s_cmp_eq_u32 s54, 0")
a(f"s_cbranch_scc1 {Ly}")
stamp(5)
vB = 164
Bq = [200+4*i for i in range(8)] + [164+4*i for i in range(7)] + [24]
for k2 in range(15):
    a(f"ds_read_b128 v[{Bq[k2]}:{Bq[k2]+3}], v{vYR} offset:{k2*64}")
for k2 in range(16):
    if k2 == 1:
        a(f"ds_read_b128 v[{Bq[15]}:{Bq[15]+3}], v{vYR} offset:{15*64}")
    a(f"s_waitcnt lgkmcnt({14 if k2 == 0 else 15-k2})")
    c = "0" if k2 == 0 else "v[16:19]"
    a(f"v_mfma_f32_16x16x32_bf16 v[16:19], v[{vA1+k2*4}:{vA1+k2*4+3}], v[{Bq[k2]}:{Bq[k2]+3}], {c}")
stamp(6)
Lab = a.newlabel("AB")
a.label(Lab)
a(f"ds_read_b96 v[20:22], v{vABR}")
budget()
a("s_waitcnt lgkmcnt(0)")
a("v_cmp_eq_u32 vcc, 1, v22")
a("s_cmp_eq_u64 vcc, -1")
a(f"s_cbranch_scc0 {Lab}")
for i in range(4):
    a(f"v_mul_f32 v{16+i}, v20, v{16+i}")
for i in range(4):
    a(f"v_fmac_f32 v{16+i}, v21, v{vCS+i}")
rnd2(16, 17, 20); rnd2(18, 19, 21)
for i in range(4):
    a(f"v_add_f32 v{16+i}, v{16+i}, v{vB1+i}")
rnd2(16, 17, 20); rnd2(18, 19, 21)
for i in range(4):
    a(f"v_mul_f32 v{20+i}, v{16+i}, v{16+i}")
for i in range(4):
    a(f"v_fma_f32 v{20+i}, v{20+i}, s67, v{vGC}")
for i in range(4):
    a(f"v_mul_f32 v{20+i}, v{20+i}, v{16+i}")
for i in range(4):
    a(f"v_exp_f32 v{20+i}, v{20+i}")
for i in range(4):
    a(f"v_add_f32 v{20+i}, 1.0, v{20+i}")
for i in range(4):
    a(f"v_rcp_f32 v{20+i}, v{20+i}")
for i in range(4):
    a(f"v_mul_f32 v{16+i}, v{16+i}, v{20+i}")
a("v_cvt_pk_bf16_f32 v16, v16, v17")
a("v_cvt_pk_bf16_f32 v17, v18, v19")
a(f"ds_write_b64 v{vH1W}, v[16:17]")
set_flag(F_D)
stamp(9)
a.label("L_MLP_W2")
lds_wait4(F_D, 20)
a(f"ds_read_b128 v[16:19], v{vH1R}")
a(f"ds_read_b128 v[20:23], v{vH1R} offset:64")
vO = 24
for kk in range(2):
    a(f"s_waitcnt lgkmcnt({1-kk})")
    for nt_ in range(4):
        r = vA2 + (nt_*2+kk)*4
        c = "0" if kk == 0 else f"v[{vO+nt_*4}:{vO+nt_*4+3}]"
        a(f"v_mfma_f32_16x16x32_bf16 v[{vO+nt_*4}:{vO+nt_*4+3}], v[{r}:{r+3}], v[{16+kk*4}:{19+kk*4}], {c}")
for nt_ in range(4):
    a(f"v_cndmask_b32 v{40+nt_*2}, v{vO+nt_*4}, v{vO+nt_*4+2}, s[94:95]")
    a(f"v_cndmask_b32 v{41+nt_*2}, v{vO+nt_*4+1}, v{vO+nt_*4+3}, s[94:95]")
for q in range(2):
    a(f"v_cndmask_b32 v{40+q*4}, v{40+q*4}, v{42+q*4}, s[96:97]")
    a(f"v_cndmask_b32 v{41+q*4}, v{41+q*4}, v{43+q*4}, s[96:97]")
a("v_cndmask_b32 v160, v40, v44, s[98:99]")
a("v_cndmask_b32 v162, v41, v45, s[98:99]")
a(f"buffer_store_dwordx4 v[160:163], v{vSTO}, {R('ws')}, s64 offen sc1")
stamp(7)
a("s_branch L_FIN")

a.label("L_V_NOTWO")
set_flag(F_V, 14)
mlp_decode()
a(f"s_cmp_lt_u32 s63, {NMLP}")
a("s_cbranch_scc1 L_V_MLP")
a(f"s_cmp_lg_u32 s2, {HPUB_ID}")
a("s_cbranch_scc1 L_FIN")
a("s_branch L_HPUB")
a.label("L_V_MLP")
srd("w2")
a("s_lshl_b32 s58, s63, 16")
a(f"s_lshl_b32 s61, s{sAW}, 12")
a("s_add_u32 s58, s58, s61")
a("s_lshl_b32 s60, s62, 1")
a(f"s_add_u32 s66, s60, s{sAW}")
a("s_and_b32 s66, s66, 7")
a("s_lshl_b32 s60, s66, 10")
a(f"buffer_load_dwordx4 v[{vX}:{vX+3}], v{vL16}, {R('x')}, s60 offen")
lds_wait4(F_V, 16, minval=9)
if SL_W: a(f"s_sleep {SL_W}")
for q in range(4):
    a(f"s_add_u32 s60, s62, {q}")
    a("s_and_b32 s60, s60, 3")
    a("s_lshl_b32 s60, s60, 14")
    a("s_add_u32 s59, s60, s58")
    a("s_add_u32 m0, s60, s61")
    dma(4, vL16, "w2", 59, 1024, pol=MLPP)
a("s_waitcnt vmcnt(0)")
set_flag(F_W2)
w2_common()
a(f"s_cmp_ge_u32 s{sAW}, 2")
a("s_cbranch_scc1 L_MLP_W2")
a("s_setprio 3")
flags_poll()
stamp(11)
a("s_mul_i32 s60, s66, 3072")
a(f"s_add_u32 s60, s60, {WS_HACC}")
a("s_mov_b32 s61, 0x42000000")
for i in range(4):
    unpack(vX+i, 16+2*i, 17+2*i)
a(f"s_mul_i32 s58, s{sAW}, {Y_STR}")
a(f"s_add_u32 s58, s58, {L_Y}")
a(f"v_add_u32 v13, s58, v{vL16}")
a(f"s_lshl_b32 s58, s{sAW}, 4")
a(f"v_add_u32 v14, s58, v{vSC}")
h_gather()
a("ds_write_b128 v13, v[44:47]")
set_flag(F_Y)
for i in range(4):
    unpack(44+i, 24+2*i, 25+2*i)
row_stats(24, 32)
a("v_mov_b32 v34, v32")
a("v_mov_b32 v35, v33")
rnd2(34, 35, 36)
sd_of(35, 36)
rcp_nr(36, 35, 37)
a("v_sub_f32 v32, v32, v34")
a("v_mul_f32 v32, v32, v36")
a("v_mul_f32 v33, v33, v36")
a("v_mul_f32 v33, v33, v36")
rnd2(32, 33, 37)
sd_of(33, 37)
rcp_nr(37, 33, 38)
a("v_mul_f32 v40, v36, v37")
a("v_fma_f32 v41, v32, v35, v34")
a("v_mul_f32 v41, -v41, v40")
a("v_mov_b32 v42, 1")
a(f"ds_write_b96 v14, v[40:42] offset:{L_AB-SC}")
stamp(6)
a("s_branch L_MLP_W2")

a.label("L_HPUB")
flags_poll()
a(f"s_mul_i32 s60, s{sW}, 3072")
a(f"s_add_u32 s60, s60, {WS_HACC}")
a("s_mov_b32 s61, 0x42000000")
for i in range(4):
    unpack(vX+i, 16+2*i, 17+2*i)
a("v_lshrrev_b32 v13, 1, v0")
a("v_lshlrev_b32 v13, 12, v13")
a("v_and_b32 v14, 1, v0")
a("v_lshl_add_u32 v13, v14, 5, v13")
a(f"s_lshl_b32 s62, s{sW}, 17")
a(f"s_add_u32 s62, s62, {WS_OUTP + NMLP*128}")
h_gather()
for i in range(4):
    a(f"v_mov_b32 v{24+2*i}, v{44+i}")
    a(f"v_mov_b32 v{25+2*i}, s{sTAG}")
a(f"buffer_store_dwordx4 v[24:27], v13, {R('ws')}, s62 offen sc1")
a(f"buffer_store_dwordx4 v[28:31], v13, {R('ws')}, s62 offen offset:16 sc1")

a.label("L_FIN")
if STAMPS:
    stamp(8)
    a("s_lshl_b32 s60, s2, 3")
    a(f"s_add_u32 s60, s60, s{sW}")
    a("s_mul_i32 s60, s60, 48")
    a(f"s_add_u32 s60, s60, {WS_STAMP}")
    a("s_mov_b64 exec, 1")
    for i in range(3):
        a(f"buffer_store_dwordx4 v[{240+4*i}:{243+4*i}], v{vZ}, {R('ws')}, s60 offen offset:{16*i}")
    if DBGST:
        a("v_not_b32 v252, v240")
        for i in range(13):
            a(f"global_atomic_umax v{vZ}, v{240+i}, s[86:87] offset:{4*i}")
a.label("L_END")
a("s_endpgm")

hdr = open("sequential_preLN__sliding_block_cached__mixer_channel_mlp__decode.s.ref").read().split("; Override launch")[0]
open(out, "w").write(wrap(a.text(), 256, 512, LDS_BYTES, vgpr=256, header_comment=hdr))
```

```python
import sys, struct
from asmgen import *

out = sys.argv[1]
opts = dict(kv.split("=") for kv in sys.argv[2:])
STAMPS = int(opts.get("stamps", 0))
DBGST = int(opts.get("dbgst", 0))
if DBGST: STAMPS = 1
CAL = opts.get("cal")
CALWG = int(opts.get("calwg", 0))
if CAL: STAMPS = 1
NT = "nt" if int(opts.get("nt", 1)) else ""
SL_GO = int(opts.get("sl_go", 0))
SL_POLL = int(opts.get("sl_poll", 2))
SL_RED = int(opts.get("sl_red", 4))
SL_Q = int(opts.get("sl_q", 10))
SL_Q2 = int(opts.get("sl_q2", 14))
NK1 = int(opts.get("nk1", 8))
QFL = int(opts.get("qfl", 1))
PFP = opts.get("pfp", "nt")
if PFP == "none": PFP = ""
MLPP = opts.get("mlpp", "nt")
if MLPP == "none": MLPP = ""

def f2u(x): return struct.unpack("<I", struct.pack("<f", x))[0]

WS_ZF = 256
WS_ST = 4096
WS_HACC = 32768
WS_FL = 65536
WS_QF = 0x20000
WS_QP = 0x40000
WS_OP = 0x140000
WS_OUTP = 0x240000
WS_STAMP = 128 << 20
NMLP = 28
HPUB_ID = ((6*4+2)*8+4)
SL_W = int(opts.get("sl_w", 0))
W1AFTER = int(opts.get("w1after", 1))

L_V = 0
L_K = 65536
L_WQ = 131072
L_QL = L_WQ
L_P = L_WQ + 1024; P_STR = 528
L_OL = L_WQ + 3200; OL_STR = 272
L_H1 = L_WQ + 5376; H1_STR = 144
L_RL = L_WQ + 6528; RL_STR = 144
SC = 147456
F_TAG = SC + 0
F_TRDY = SC + 4
F_GO = SC + 8
F_CF = SC + 12
F_LN1 = SC + 16
F_Q = SC + 32
F_A = SC + 48
F_B = SC + 64
F_V = SC + 80
F_W = SC + 96
F_C = SC + 112
F_D = SC + 128
F_W2 = SC + 144
F_KI = SC + 304
F_QGO = SC + 168
F_Y = SC + 512
C_ONE = SC + 160
C_ZERO = SC + 164
L_AB = SC + 176
L_MX = SC + 320
L_SUM = SC + 384
L_CF = L_WQ + 12288
L_Y = SC + 640; Y_STR = 1040
LDS_BYTES = SC + 640 + 8*Y_STR
assert LDS_BYTES <= 163840

sW, sHKV, sB, sS, sAW = 3, 4, 5, 6, 7
SRD = dict(ws=8, k=12, v=16, x=20, wq=24, wo=28, w1=32, w2=36, b1=40, b2=44, out=48)
sTAG, sBUD = 52, 53
PTR = dict(x=64, k=66, v=68, wq=70, wo=72, bx=74, w1=76, b1=78, w2=80, b2=82, out=84, dbg=86, ws=88)
LOG2E = 0x3FB8AA3B
SCALE = 0x3DB504F3
DPPM = "row_mask:0xf bank_mask:0xf"

a = Asm()

def srd(name):
    d = SRD[name]; p = PTR[name]
    a(f"s_mov_b32 s{d}, s{p}")
    a(f"s_and_b32 s{d+1}, s{p+1}, 0xffff")
    a(f"s_mov_b32 s{d+2}, {SIZES[name]}")
    a(f"s_mov_b32 s{d+3}, 0x20000")
def R(name): d = SRD[name]; return f"s[{d}:{d+3}]"

def stamp(i):
    if not STAMPS: return
    a("s_memrealtime s[90:91]")
    a("s_waitcnt lgkmcnt(0)")
    a(f"v_mov_b32 v{240+i}, s90")

def budget():
    a(f"s_sub_u32 s{sBUD}, s{sBUD}, 1")
    a("s_cbranch_scc1 L_END")

def set_flag(flag, val=None):
    a(f"ds_write_b32 v{vFL}, v{vONE if val is None else val} offset:{flag-SC}")

def lds_wait4(flag, vt, sleep=0, minval=None):
    L = a.newlabel("W4")
    a.label(L)
    a(f"ds_read_b128 v[{vt}:{vt+3}], v{vSC} offset:{flag-SC}")
    budget()
    a("s_waitcnt lgkmcnt(0)")
    a(f"v_min3_u32 v{vt}, v{vt}, v{vt+1}, v{vt+2}")
    a(f"v_min_u32 v{vt}, v{vt}, v{vt+3}")
    a(f"v_readfirstlane_b32 s54, v{vt}")
    if sleep: a(f"s_sleep {sleep}")
    a(f"s_cmp_lt_u32 s54, {1 if minval is None else minval}")
    a(f"s_cbranch_scc1 {L}")

def lds_wait1(flag, vt, sleep=0):
    L = a.newlabel("W1")
    a.label(L)
    a(f"ds_read_b32 v{vt}, v{vSC} offset:{flag-SC}")
    budget()
    a("s_waitcnt lgkmcnt(0)")
    a(f"v_readfirstlane_b32 s54, v{vt}")
    if sleep: a(f"s_sleep {sleep}")
    a("s_cmp_eq_u32 s54, 0")
    a(f"s_cbranch_scc1 {L}")

def rnd1(v, t):
    a(f"v_cvt_pk_bf16_f32 v{t}, v{v}, v{v}")
    a(f"v_lshlrev_b32 v{v}, 16, v{t}")
def rnd2(v0, v1, t):
    a(f"v_cvt_pk_bf16_f32 v{t}, v{v0}, v{v1}")
    a(f"v_lshlrev_b32 v{v0}, 16, v{t}")
    a(f"v_and_b32 v{v1}, 0xffff0000, v{t}")
def unpack(src, lo, hi):
    a(f"v_lshlrev_b32 v{lo}, 16, v{src}")
    a(f"v_and_b32 v{hi}, 0xffff0000, v{src}")

def wave_sum2(va, vb, sa, sb):
    for mod in ("quad_perm:[1,0,3,2]", "quad_perm:[2,3,0,1]", "row_half_mirror", "row_mirror"):
        a(f"v_add_f32_dpp v{va}, v{va}, v{va} {mod} {DPPM}")
        a(f"v_add_f32_dpp v{vb}, v{vb}, v{vb} {mod} {DPPM}")
    a(f"v_add_f32_dpp v{va}, v{va}, v{va} row_bcast:15 row_mask:0xa bank_mask:0xf")
    a(f"v_add_f32_dpp v{vb}, v{vb}, v{vb} row_bcast:15 row_mask:0xa bank_mask:0xf")
    a(f"v_add_f32_dpp v{va}, v{va}, v{va} row_bcast:31 row_mask:0xc bank_mask:0xf")
    a(f"v_add_f32_dpp v{vb}, v{vb}, v{vb} row_bcast:31 row_mask:0xc bank_mask:0xf")
    a(f"v_readlane_b32 s{sa}, v{va}, 63")
    a(f"v_readlane_b32 s{sb}, v{vb}, 63")

def row_stats(e, t, sg=55):
    a(f"v_readfirstlane_b32 s{sg}, v{e}")
    a(f"v_mov_b32 v{t+10}, s{sg}")
    a(f"v_mov_b32 v{t+11}, s{sg}")
    for i in range(0, 8, 2):
        a(f"v_pk_add_f32 v[{t+i}:{t+i+1}], v[{e+i}:{e+i+1}], v[{t+10}:{t+11}] neg_lo:[0,1] neg_hi:[0,1]")
    a(f"v_pk_add_f32 v[{t+8}:{t+9}], v[{t}:{t+1}], v[{t+2}:{t+3}]")
    a(f"v_pk_mul_f32 v[{t+10}:{t+11}], v[{t}:{t+1}], v[{t}:{t+1}]")
    a(f"v_pk_add_f32 v[{t}:{t+1}], v[{t+4}:{t+5}], v[{t+6}:{t+7}]")
    for i in (2, 4, 6):
        a(f"v_pk_fma_f32 v[{t+10}:{t+11}], v[{t+i}:{t+i+1}], v[{t+i}:{t+i+1}], v[{t+10}:{t+11}]")
    a(f"v_pk_add_f32 v[{t+8}:{t+9}], v[{t+8}:{t+9}], v[{t}:{t+1}]")
    a(f"v_add_f32 v{t+10}, v{t+10}, v{t+11}")
    a(f"v_add_f32 v{t+8}, v{t+8}, v{t+9}")
    wave_sum2(t+8, t+10, sg+1, sg+2)
    a(f"v_mov_b32 v{t+2}, 0x3b000000")
    a(f"v_mul_f32 v{t}, s{sg+1}, v{t+2}")
    a(f"v_mul_f32 v{t+1}, s{sg+2}, v{t+2}")
    a(f"v_fma_f32 v{t+1}, -v{t}, v{t}, v{t+1}")
    a(f"v_max_f32 v{t+1}, 0, v{t+1}")
    a(f"v_add_f32 v{t}, s{sg}, v{t}")

def sd_of(v, t):
    a(f"v_add_f32 v{v}, 0x3727c5ac, v{v}")
    rnd1(v, t)
    a(f"v_sqrt_f32 v{v}, v{v}")
    rnd1(v, t)

def rcp_nr(dst, src, t):
    a(f"v_rcp_f32 v{dst}, v{src}")
    a(f"v_fma_f32 v{t}, -v{src}, v{dst}, 1.0")
    a(f"v_fma_f32 v{dst}, v{t}, v{dst}, v{dst}")

def layernorm(e, t, last_pack):
    row_stats(e, t)
    rnd2(t, t+1, t+2)
    sd_of(t+1, t+2)
    rcp_nr(t+2, t+1, t+3)
    for i in range(8):
        a(f"v_sub_f32 v{e+i}, v{e+i}, v{t}")
    for i in range(0, 8, 2):
        rnd2(e+i, e+i+1, t+4+i//2)
    for i in range(8):
        a(f"v_mul_f32 v{t+4+i}, v{e+i}, v{t+2}")
    for i in range(8):
        a(f"v_fma_f32 v{e+i}, -v{t+4+i}, v{t+1}, v{e+i}")
    for i in range(8):
        a(f"v_fma_f32 v{e+i}, v{e+i}, v{t+2}, v{t+4+i}")
    for i in range(0, 8, 2):
        a(f"v_cvt_pk_bf16_f32 v{last_pack+i//2}, v{e+i}, v{e+i+1}")

def head_reduce(v, t, op):
    a(f"v_{op}_f32_dpp v{v}, v{v}, v{v} row_ror:4 {DPPM}")
    a(f"v_{op}_f32_dpp v{v}, v{v}, v{v} row_ror:8 {DPPM}")
    a(f"v_mov_b32 v{t}, v{v}")
    a(f"v_permlane16_swap_b32 v{v}, v{t}")
    a(f"v_{op}_f32 v{v}, v{v}, v{t}")
    a(f"v_mov_b32 v{t}, v{v}")
    a(f"v_permlane32_swap_b32 v{v}, v{t}")
    a(f"v_{op}_f32 v{v}, v{v}, v{t}")

def trA_addr(v, rowbytes, t):
    a(f"v_bfe_u32 v{v}, v0, 2, 2")
    a(f"v_lshl_add_u32 v{v}, v{vG}, 3, v{v}")
    a(f"v_mul_u32_u24 v{v}, {rowbytes}, v{v}")
    a(f"v_and_b32 v{t}, 3, v0")
    a(f"v_lshl_add_u32 v{v}, v{t}, 3, v{v}")
def B_addr(v, base, stride, t):
    a(f"v_and_b32 v{t}, 7, v0")
    a(f"v_mul_u32_u24 v{v}, {stride}, v{t}")
    a(f"v_lshl_add_u32 v{v}, v{vG}, 4, v{v}")
    a(f"v_add_u32 v{v}, {base}, v{v}")

def zflag_wait(vt):
    L = a.newlabel("ZF")
    a(f"v_and_b32 v{vt}, 7, v0")
    a(f"v_lshlrev_b32 v{vt}, 3, v{vt}")
    a(f"s_mov_b32 s60, {WS_ZF}")
    a.label(L)
    a(f"buffer_load_dword v{vt+1}, v{vt}, {R('ws')}, s60 offen sc1")
    budget()
    a("s_waitcnt vmcnt(0)")
    a(f"v_cmp_eq_u32 vcc, s{sTAG}, v{vt+1}")
    a("s_cmp_eq_u64 vcc, -1")
    a(f"s_cbranch_scc0 {L}")

def masked_gather(n, load, tags, consume, sleep):
    L = a.newlabel("MG")
    a(f"s_mov_b32 s62, {(1 << n) - 1}")
    a.label(L)
    for i in range(n):
        a(f"s_bitcmp1_b32 s62, {i}")
        a(f"s_cbranch_scc0 {L}_l{i}")
        load(i)
        a.label(f"{L}_l{i}")
    budget()
    a("s_waitcnt vmcnt(0)")
    for i in range(n):
        a(f"s_bitcmp1_b32 s62, {i}")
        a(f"s_cbranch_scc0 {L}_c{i}")
        t = tags(i)
        a(f"v_cmp_eq_u32 vcc, s{sTAG}, v{t[0]}")
        if len(t) > 1:
            a(f"v_cmp_eq_u32 s[56:57], s{sTAG}, v{t[1]}")
            a("s_and_b64 vcc, vcc, s[56:57]")
        a("s_cmp_eq_u64 vcc, -1")
        a(f"s_cbranch_scc0 {L}_c{i}")
        consume(i)
        a(f"s_bitset0_b32 s62, {i}")
        a.label(f"{L}_c{i}")
    a("s_cmp_eq_u32 s62, 0")
    a(f"s_cbranch_scc1 {L}_ok")
    if sleep: a(f"s_sleep {sleep}")
    a(f"s_branch {L}")
    a.label(f"{L}_ok")

def capture(fn):
    save = a.items; a.items = []
    fn()
    got = a.items; a.items = save
    return got

def dma(n, voff, srdname, soff, sstep, mstep=1024, pol=None):
    if pol is None: pol = NT
    for i in range(n):
        v = voff(i) if callable(voff) else voff
        a(f"buffer_load_dwordx4 v{v}, {R(srdname)}, s{soff} offen {pol} lds")
        if i < n-1:
            ms = mstep(i) if callable(mstep) else mstep
            ss = sstep(i) if callable(sstep) else sstep
            a(f"s_add_u32 m0, m0, {ms}")
            a(f"s_add_u32 s{soff}, s{soff}, {ss}")

vLANE, vZ, vG, vC, vSC, vONE = 0, 1, 2, 3, 4, 5
vFL = 7
vX = 8
vL16 = 12
vA1 = 64
vA2 = 128
vB1, vCS = 192, 196
vYR, vH1W, vH1R, vSTO, vABR, vGC = 232, 233, 234, 235, 236, 237

if STAMPS:
    a("s_memrealtime s[92:93]")
a("s_cmp_ge_u32 s2, 256")
a("s_cbranch_scc1 L_END")
a("s_load_dwordx16 s[64:79], s[0:1], 0")
a("s_load_dwordx8 s[80:87], s[0:1], 64")
a("s_load_dwordx2 s[88:89], s[0:1], 96")
a("v_lshrrev_b32 v1, 6, v0")
a("v_and_b32 v0, 63, v0")
a(f"v_readfirstlane_b32 s{sW}, v1")
a(f"v_mov_b32 v{vZ}, 0")
a(f"v_lshrrev_b32 v{vG}, 4, v0")
a(f"v_and_b32 v{vC}, 15, v0")
a(f"v_mov_b32 v{vSC}, {SC}")
a(f"v_mov_b32 v{vONE}, 1")
a(f"s_and_b32 s{sHKV}, s2, 7")
a(f"s_lshr_b32 s{sB}, s2, 5")
a(f"s_bfe_u32 s{sS}, s2, 0x20003")
a(f"s_mov_b32 s{sBUD}, 400000")
a(f"s_and_b32 s{sAW}, s{sW}, 3")
a(f"s_lshl_b32 s60, s{sAW}, 2")
a(f"v_add_u32 v{vFL}, s60, v{vSC}")
a(f"v_lshlrev_b32 v{vL16}, 4, v0")
a(f"v_mov_b32 v{vSTO}, 0")
a(f"s_lshl_b32 s58, s{sB}, 3")
a(f"s_add_u32 s58, s58, s{sHKV}")
a("s_mov_b32 s63, s58")
a("s_lshl_b32 s58, s58, 20")
a(f"s_lshl_b32 s59, s{sS}, 16")
a("s_add_u32 s58, s58, s59")
a("s_add_u32 s58, s58, 786432")
if STAMPS:
    for i in range(12): a(f"v_mov_b32 v{240+i}, 0")
a(f"s_cmp_ge_u32 s{sW}, 4")
a("s_cbranch_scc1 L_VW")

a("s_setprio 2")
a(f"s_lshl_b32 s60, s{sW}, 14")
a("s_add_u32 s59, s60, s58")
a(f"s_add_u32 m0, s60, {L_K}")
for j in range(4):
    a(f"v_xor_b32 v{16+j}, {j*4}, v{vG}")
    a(f"v_xor_b32 v{16+j}, v{16+j}, v{vC}")
    a(f"v_lshlrev_b32 v{16+j}, 4, v{16+j}")
    a(f"v_lshl_add_u32 v{16+j}, v{vG}, 8, v{16+j}")
a(f"s_lshl_b32 s61, s{sW}, 10")
a("s_waitcnt lgkmcnt(0)")
if STAMPS:
    a("v_mov_b32 v240, s92")
srd("k"); srd("x"); srd("ws")
a("s_barrier")
a(f"buffer_load_dwordx4 v[{vX}:{vX+3}], v{vL16}, {R('x')}, s61 offen")
dma(NK1, lambda i: 16 + (i & 3), "k", 59, 1024)
a("s_mov_b32 s68, s59")
a("s_mov_b32 s69, m0")
vQA, vMXA, vMXW, vPW, vSTA, vQW = 120, 121, 122, 123, 124, 125
vKR = 126
a("v_and_b32 v15, 3, v0")
a(f"v_lshlrev_b32 v{vQA}, 8, v15")
a(f"v_lshl_add_u32 v{vQA}, v{vG}, 4, v{vQA}")
a(f"v_add_u32 v{vQA}, {L_QL}, v{vQA}")
a(f"v_lshl_add_u32 v{vMXA}, v15, 4, v{vSC}")
a(f"s_lshl_b32 s60, s{sW}, 2")
a(f"v_add_u32 v{vMXW}, s60, v{vMXA}")
a(f"v_mul_u32_u24 v14, {P_STR}, v15")
a(f"v_add_u32 v14, {L_P}, v14")
a(f"v_bfe_u32 v{vPW}, v0, 2, 2")
a(f"v_lshlrev_b32 v{vPW}, 5, v{vPW}")
a(f"v_lshl_add_u32 v{vPW}, v{vG}, 3, v{vPW}")
a(f"s_lshl_b32 s60, s{sW}, 7")
a(f"v_add3_u32 v{vPW}, v{vPW}, s60, v14")
a(f"s_lshl_b32 s60, s{sHKV}, 2")
a(f"v_add_u32 v{vSTA}, s60, v15")
a("s_lshr_b32 s60, s2, 3")
a(f"v_lshlrev_b32 v{vSTA}, 5, v{vSTA}")
a(f"v_add_u32 v{vSTA}, s60, v{vSTA}")
a(f"v_lshlrev_b32 v{vSTA}, 4, v{vSTA}")
a(f"s_lshl_b32 s60, s{sW}, 8")
a(f"s_add_u32 s60, s60, {L_QL}")
a(f"v_lshl_add_u32 v{vQW}, v0, 2, s60")
a(f"s_lshl_b32 s60, s{sW}, 14")
a(f"s_add_u32 s60, s60, {L_K}")
for kk in range(4):
    a(f"v_xor_b32 v{vKR+kk}, {kk*4}, v{vG}")
    a(f"v_xor_b32 v{vKR+kk}, v{vKR+kk}, v{vC}")
    a(f"v_lshlrev_b32 v{vKR+kk}, 4, v{vKR+kk}")
    a(f"v_lshl_add_u32 v{vKR+kk}, v{vC}, 8, v{vKR+kk}")
    a(f"v_add_u32 v{vKR+kk}, s60, v{vKR+kk}")
a("s_mov_b32 s94, 0x00f000f0"); a("s_mov_b32 s95, 0x00f000f0")
a("s_mov_b32 s96, 0x0f000f00"); a("s_mov_b32 s97, 0x0f000f00")
a("s_mov_b32 s98, 0xf000f000"); a("s_mov_b32 s99, 0xf000f000")
a("s_lshl_b32 s59, s63, 14")
a(f"s_lshl_b32 s60, s{sW}, 10")
a("s_add_u32 s59, s59, s60")
a(f"s_add_u32 s64, s59, {WS_QP}")
for i in range(1, 4): a(f"s_add_u32 s{64+i}, s{63+i}, 4096")
Lt = a.newlabel("TW")
a.label(Lt)
a(f"ds_read_b64 v[14:15], v{vSC} offset:{F_TAG-SC}")
budget()
a("s_waitcnt lgkmcnt(0)")
a("v_readfirstlane_b32 s54, v15")
a(f"v_readfirstlane_b32 s{sTAG}, v14")
a("s_sleep 1")
a("s_cmp_eq_u32 s54, 0")
a(f"s_cbranch_scc1 {Lt}")
if QFL:
    lds_wait1(F_QGO, 20, sleep=1)
    a("s_setprio 3")
else:
    lds_wait4(F_Q, 20, sleep=1)
    a("s_setprio 3")
    a(f"s_sleep {SL_Q}")
def qload():
    for i in range(4):
        a(f"buffer_load_dwordx4 v[{32+i*4}:{35+i*4}], v{vL16}, {R('ws')}, s{64+i} offen sc1")
qload()
if int(opts.get("dbgq", 0)): stamp(4)
a("s_add_u32 s68, s68, 1024")
a("s_add_u32 m0, s69, 1024")
dma(16-NK1, lambda i: 16 + ((i+NK1) & 3), "k", 68, 1024)
set_flag(F_KI)
stamp(1)
a(f"s_waitcnt vmcnt({16-NK1})")
a("s_branch L_QG1")
a.label("L_QG")
qload()
budget()
a("s_waitcnt vmcnt(0)")
a.label("L_QG1")
if int(opts.get("dbgq", 0)):
    a("v_mov_b32 v251, v250"); a("v_mov_b32 v250, v249"); stamp(9)
a(f"v_cmp_eq_u32 s[56:57], s{sTAG}, v33")
for r in (3, 5, 7, 9, 11, 13, 15):
    a(f"v_cmp_eq_u32 vcc, s{sTAG}, v{32+r}")
    a("s_and_b64 s[56:57], s[56:57], vcc")
a("s_cmp_eq_u64 s[56:57], -1")
a("s_cbranch_scc0 L_QG")
a("v_add_f32 v48, v32, v36")
a("v_add_f32 v49, v34, v38")
a("v_add_f32 v50, v40, v44")
a("v_add_f32 v51, v42, v46")
a("v_pk_add_f32 v[48:49], v[48:49], v[50:51]")
a("v_cvt_pk_bf16_f32 v48, v48, v49")
a(f"ds_write_b32 v{vQW}, v48")
a("v_mov_b32 v14, 2")
set_flag(F_Q, 14)
stamp(2)
vK = 132
lds_wait4(F_Q, 56, minval=2)
vQ = 80
for kk in range(4):
    a(f"ds_read_b128 v[{vQ+kk*4}:{vQ+kk*4+3}], v{vQA} offset:{kk*64}")
vS = 96
for t in range(4):
    a(f"s_waitcnt vmcnt({(3-t)*4})")
    for kk in range(4):
        r = vK + (t*4+kk)*4
        a(f"ds_read_b128 v[{r}:{r+3}], v{vKR+kk} offset:{t*4096}")
    for kk in range(4):
        a(f"s_waitcnt lgkmcnt({3-kk})")
        r = vK + (t*4+kk)*4
        c = "0" if kk == 0 else f"v[{vS+t*4}:{vS+t*4+3}]"
        a(f"v_mfma_f32_16x16x32_bf16 v[{vS+t*4}:{vS+t*4+3}], v[{r}:{r+3}], v[{vQ+kk*4}:{vQ+kk*4+3}], {c}")
vE = 112
for i in range(4):
    a(f"v_cndmask_b32 v{vE+i}, v{vS+i}, v{vS+4+i}, s[94:95]")
for i in range(4):
    a(f"v_cndmask_b32 v{vE+i}, v{vE+i}, v{vS+8+i}, s[96:97]")
for i in range(4):
    a(f"v_cndmask_b32 v{vE+i}, v{vE+i}, v{vS+12+i}, s[98:99]")
rnd2(vE, vE+1, 116); rnd2(vE+2, vE+3, 117)
a(f"s_mov_b32 s55, {SCALE}")
for i in range(4):
    a(f"v_mul_f32 v{vE+i}, s55, v{vE+i}")
rnd2(vE, vE+1, 116); rnd2(vE+2, vE+3, 117)
vM, vL = 118, 119
a(f"v_max_f32 v{vM}, v{vE}, v{vE+1}")
a(f"v_max3_f32 v{vM}, v{vM}, v{vE+2}, v{vE+3}")
head_reduce(vM, 119, "max")
a(f"ds_write_b32 v{vMXW}, v{vM} offset:{L_MX-SC}")
set_flag(F_A)
lds_wait4(F_A, 56)
a(f"ds_read_b128 v[56:59], v{vMXA} offset:{L_MX-SC}")
a("s_waitcnt lgkmcnt(0)")
a(f"v_max3_f32 v{vM}, v56, v57, v58")
a(f"v_max_f32 v{vM}, v{vM}, v59")
a(f"s_mov_b32 s55, {LOG2E}")
for i in range(4):
    a(f"v_sub_f32 v{vE+i}, v{vE+i}, v{vM}")
for i in range(4):
    a(f"v_mul_f32 v{vE+i}, s55, v{vE+i}")
for i in range(4):
    a(f"v_exp_f32 v{vE+i}, v{vE+i}")
a(f"v_add_f32 v{vL}, v{vE}, v{vE+1}")
a(f"v_add_f32 v56, v{vE+2}, v{vE+3}")
a(f"v_add_f32 v{vL}, v{vL}, v56")
a(f"v_cvt_pk_bf16_f32 v116, v{vE}, v{vE+1}")
a(f"v_cvt_pk_bf16_f32 v117, v{vE+2}, v{vE+3}")
a(f"ds_write_b64 v{vPW}, v[116:117]")
head_reduce(vL, 56, "add")
a(f"ds_write_b32 v{vMXW}, v{vL} offset:{L_SUM-SC}")
set_flag(F_B)
lds_wait4(F_B, 56)
a(f"ds_read_b128 v[56:59], v{vMXA} offset:{L_SUM-SC}")
a("s_waitcnt lgkmcnt(0)")
a(f"v_add_f32 v{vL}, v56, v57")
a("v_add_f32 v58, v58, v59")
a(f"v_add_f32 v58, v{vL}, v58")
a(f"v_mov_b32 v56, v{vM}")
a(f"v_mov_b32 v57, s{sTAG}")
a(f"v_mov_b32 v59, s{sTAG}")
a(f"s_lshl_b64 s[56:57], 1, s{sW}")
a(f"s_mov_b32 s61, {WS_ST}")
a("s_mov_b64 exec, s[56:57]")
a(f"buffer_store_dwordx4 v[56:59], v{vSTA}, {R('ws')}, s61 offen sc1")
a("s_mov_b64 exec, -1")
stamp(3)
a("s_setprio 0")
a(f"s_cmp_ge_u32 s{sS}, 2")
a("s_cbranch_scc1 L_K_NOTWO")

srd("wo")
a(f"s_lshl_b32 s58, s{sB}, 1")
a(f"s_add_u32 s58, s58, s{sS}")
a("s_lshr_b32 s59, s58, 2")
a("s_and_b32 s58, s58, 3")
a(f"s_lshl_b32 s60, s{sHKV}, 2")
a("s_add_u32 s58, s58, s60")
a("s_lshl_b32 s60, s58, 17")
a("s_lshl_b32 s59, s59, 8")
a("s_add_u32 s59, s59, s60")
a(f"s_lshl_b32 s60, s{sW}, 15")
a("s_add_u32 s59, s59, s60")
a(f"v_lshlrev_b32 v13, 10, v{vG}")
a(f"v_lshl_add_u32 v13, v{vC}, 4, v13")
a(f"s_lshl_b32 s60, s{sW}, 13")
a(f"s_add_u32 m0, s60, {L_K}")
dma(8, 13, "wo", 59, 4096)
a("s_lshl_b32 s65, s58, 9")
a(f"s_add_u32 s65, s65, {WS_ST}")
a("s_lshl_b32 s58, s58, 15")
a(f"s_lshl_b32 s60, s{sW}, 13")
a("s_add_u32 s58, s58, s60")
a(f"s_add_u32 s58, s58, {WS_OP}")
a("s_add_u32 s59, s58, 4096")
a(f"s_mul_i32 s60, s{sW}, {2*OL_STR}")
a(f"s_add_u32 s60, s60, {L_OL}")
a("v_lshl_add_u32 v13, v0, 2, s60")
a(f"s_lshl_b32 s60, s{sW}, 5")
a(f"s_add_u32 s60, s60, {L_CF}")
a("v_mov_b32 v14, s60")
for i in range(4): a(f"v_mov_b32 v{56+i}, 0")
a(f"s_cmp_lg_u32 s{sW}, 0")
a("s_cbranch_scc1 L_K_NOCF")
a("v_and_b32 v64, 31, v0")
a("v_lshlrev_b32 v65, 4, v64")
a("v_lshlrev_b32 v64, 2, v64")
a(f"v_add_u32 v64, {L_CF}, v64")
a("v_and_b32 v66, 7, v0")
a("v_lshlrev_b32 v66, 3, v66")
a(f"s_mov_b32 s60, {WS_ZF}")
Ls = a.newlabel("ST")
a.label(Ls)
a(f"buffer_load_dwordx4 v[68:71], v65, {R('ws')}, s65 offen sc1")
a(f"buffer_load_dword v67, v66, {R('ws')}, s60 offen sc1")
budget()
a("s_waitcnt vmcnt(0)")
a(f"v_cmp_eq_u32 s[56:57], s{sTAG}, v69")
a(f"v_cmp_eq_u32 vcc, s{sTAG}, v71")
a("s_and_b64 s[56:57], vcc, s[56:57]")
a(f"v_cmp_eq_u32 vcc, s{sTAG}, v67")
a("s_and_b64 vcc, vcc, s[56:57]")
a("s_cmp_eq_u64 vcc, -1")
a(f"s_cbranch_scc1 {Ls}_ok")
a("s_sleep 2")
a(f"s_branch {Ls}")
a.label(f"{Ls}_ok")
a(f"v_max_f32_dpp v72, v68, v68 quad_perm:[1,0,3,2] {DPPM}")
a(f"v_max_f32_dpp v72, v72, v72 quad_perm:[2,3,0,1] {DPPM}")
a("v_sub_f32 v72, v68, v72")
a(f"v_mul_f32 v72, {LOG2E}, v72")
a("v_exp_f32 v72, v72")
a("v_mul_f32 v73, v72, v70")
a(f"v_add_f32_dpp v73, v73, v73 quad_perm:[1,0,3,2] {DPPM}")
a(f"v_add_f32_dpp v73, v73, v73 quad_perm:[2,3,0,1] {DPPM}")
rcp_nr(74, 73, 75)
a("v_mul_f32 v72, v72, v74")
a("ds_write_b32 v64, v72")
a(f"ds_write_b32 v{vSC}, v{vONE} offset:{F_CF-SC}")
a.label("L_K_NOCF")
a("s_waitcnt vmcnt(0)")
set_flag(F_W)
stamp(4)
lds_wait1(F_CF, 48)
a("ds_read_b128 v[48:51], v14")
a("ds_read_b128 v[52:55], v14 offset:16")
lds_wait4(F_V, 60, minval=9)
stamp(5)
vD = 16
def ld(i): a(f"buffer_load_dwordx4 v[{vD+i*4}:{vD+i*4+3}], v{vL16}, {R('ws')}, {'s58' if i < 4 else 's59'} offen offset:{(i%4)*1024} sc1")
def cons(i):
    bb = i // 4
    a(f"v_fmac_f32 v{56+bb*2}, v{48+i}, v{vD+i*4}")
    a(f"v_fmac_f32 v{57+bb*2}, v{48+i}, v{vD+i*4+2}")
masked_gather(8, ld, lambda i: [vD+i*4+1, vD+i*4+3], cons, SL_POLL)
a("v_cvt_pk_bf16_f32 v56, v56, v57")
a("v_cvt_pk_bf16_f32 v58, v58, v59")
a("ds_write_b32 v13, v56")
a(f"ds_write_b32 v13, v58 offset:{OL_STR}")
set_flag(F_C)
stamp(6)
a(f"s_cmp_lg_u32 s{sS}, 0")
a("s_cbranch_scc1 L_FIN")

srd("b2"); srd("out")
a("v_and_b32 v13, 7, v0")
a("v_lshlrev_b32 v14, 2, v13")
a(f"s_lshl_b32 s58, s{sHKV}, 7")
a(f"s_lshl_b32 s59, s{sW}, 5")
a("s_add_u32 s58, s58, s59")
a(f"s_lshl_b32 s59, s{sB}, 10")
a("s_add_u32 s59, s59, s58")
a(f"buffer_load_dword v15, v14, {R('b2')}, s58 offen")
a("s_lshl_b32 s60, s63, 2")
a(f"s_add_u32 s60, s60, s{sW}")
a("s_lshl_b32 s60, s60, 12")
a(f"s_add_u32 s60, s60, {WS_OUTP}")
a("v_lshlrev_b32 v16, 3, v13")
a("v_and_b32 v17, 31, v0")
a("v_lshlrev_b32 v17, 4, v17")
a("v_mov_b32 v18, 0")
a("v_mov_b32 v19, 0")
a("v_mov_b32 v20, 1.0")
a("v_cmp_gt_u32 vcc, 32, v0")
a("v_cndmask_b32 v20, 0, v20, vcc")
a("s_waitcnt vmcnt(0)")
unpack(15, 22, 23)
vD = 24
def ld(i):
    if i < 3: a(f"buffer_load_dwordx4 v[{vD+i*4}:{vD+i*4+3}], v{vL16}, {R('ws')}, s60 offen offset:{i*1024} sc1")
    elif i == 3: a(f"buffer_load_dwordx4 v[{vD+12}:{vD+15}], v17, {R('ws')}, s60 offen offset:3072 sc1")
    else: a(f"buffer_load_dwordx2 v[40:41], v16, {R('ws')}, s60 offen offset:{NMLP*128} sc1")
def tg(i): return [vD+i*4+1, vD+i*4+3] if i < 4 else [41]
def cons(i):
    if i < 3:
        a(f"v_add_f32 v18, v18, v{vD+i*4}")
        a(f"v_add_f32 v19, v19, v{vD+i*4+2}")
    elif i == 3:
        a(f"v_fmac_f32 v18, v20, v{vD+12}")
        a(f"v_fmac_f32 v19, v20, v{vD+14}")
    else:
        unpack(40, 42, 43)
masked_gather(5, ld, tg, cons, SL_RED)
stamp(9)
a(f"v_add_f32_dpp v18, v18, v18 row_ror:8 {DPPM}")
a(f"v_add_f32_dpp v19, v19, v19 row_ror:8 {DPPM}")
for sw in ("16", "32"):
    a("v_mov_b32 v24, v18")
    a("v_mov_b32 v25, v19")
    a(f"v_permlane{sw}_swap_b32 v18, v24")
    a(f"v_permlane{sw}_swap_b32 v19, v25")
    a("v_add_f32 v18, v18, v24")
    a("v_add_f32 v19, v19, v25")
rnd2(18, 19, 24)
a("v_add_f32 v18, v18, v22")
a("v_add_f32 v19, v19, v23")
rnd2(18, 19, 24)
a("v_add_f32 v18, v18, v42")
a("v_add_f32 v19, v19, v43")
a("v_cvt_pk_bf16_f32 v18, v18, v19")
a("s_mov_b64 exec, 0xff")
a(f"buffer_store_dword v18, v14, {R('out')}, s59 offen")
a("s_mov_b64 exec, -1")
stamp(10)
a("s_cmp_lg_u32 s2, 0")
a("s_cbranch_scc1 L_FIN")
a(f"s_cmp_lg_u32 s{sW}, 0")
a("s_cbranch_scc1 L_FIN")
a(f"v_mov_b32 v34, s{sTAG}")
a("s_mov_b64 exec, 1")
a(f"buffer_store_dword v34, v{vZ}, {R('ws')}, 0 offen sc1")
a("s_mov_b64 exec, -1")
a("s_branch L_FIN")

a.label("L_VW")
a("s_setprio 3")
a(f"s_cmp_lg_u32 s{sAW}, 0")
a("s_cbranch_scc1 L_V_NZ")
a(f"v_lshl_add_u32 v13, v0, 2, v{vSC}")
a("v_mov_b32 v14, 1.0")
a(f"v_cmp_eq_u32 vcc, {(C_ONE-SC)//4}, v0")
a("v_cndmask_b32 v14, 0, v14, vcc")
a("ds_write_b32 v13, v14")
a(f"ds_write_b32 v13, v{vZ} offset:256")
a(f"ds_write_b32 v13, v{vZ} offset:512")
a.label("L_V_NZ")
a(f"s_lshl_b32 s59, s{sHKV}, 10")
a(f"s_lshl_b32 s60, s{sB}, 7")
a("s_add_u32 s59, s59, s60")
a(f"s_lshl_b32 s60, s{sS}, 20")
a("s_add_u32 s59, s59, s60")
a(f"s_lshl_b32 s60, s{sAW}, 18")
a("s_add_u32 s59, s59, s60")
a("v_lshrrev_b32 v13, 3, v0")
a("v_lshlrev_b32 v13, 13, v13")
a("v_and_b32 v14, 7, v0")
a("v_lshl_add_u32 v13, v14, 4, v13")
a(f"s_lshl_b32 s60, s{sAW}, 12")
a(f"s_add_u32 m0, s60, {L_WQ}")
a("v_lshrrev_b32 v15, 5, v0")
a("v_lshlrev_b32 v15, 10, v15")
a("v_and_b32 v14, 31, v0")
a("v_lshl_add_u32 v15, v14, 3, v15")
a(f"s_lshl_b32 s60, s{sS}, 8")
a("v_add_u32 v15, s60, v15")
a(f"s_lshl_b32 s60, s{sAW}, 11")
a(f"s_lshl_b32 s61, s{sW}, 10")
a("s_waitcnt lgkmcnt(0)")
if STAMPS:
    a("v_mov_b32 v240, s92")
DBGV = int(opts.get("dbgv", 0))
if DBGV: stamp(5)
srd("x"); srd("wq"); srd("ws")
a(f"buffer_load_dwordx4 v[16:19], v{vL16}, {R('x')}, s60 offen")
a(f"buffer_load_dwordx4 v[20:23], v{vL16}, {R('x')}, s60 offen offset:1024")
a(f"buffer_load_dwordx2 v[64:65], v15, {R('x')}, s60 offen")
a(f"buffer_load_dword v6, v{vZ}, {R('ws')}, 0 offen sc1")
dma(4, 13, "wq", 59, 65536)
a(f"buffer_load_dwordx4 v[{vX}:{vX+3}], v{vL16}, {R('x')}, s61 offen")
if DBGV: stamp(6)
a("s_barrier")
srd("v")
a(f"s_mul_i32 s60, s{sAW}, {2*Y_STR}")
a(f"s_add_u32 s60, s60, {L_Y}")
a("v_lshrrev_b32 v15, 5, v0")
a(f"v_mul_u32_u24 v15, {Y_STR}, v15")
a("v_and_b32 v14, 31, v0")
a("v_lshl_add_u32 v15, v14, 3, v15")
a("v_add_u32 v15, s60, v15")
trA_addr(70, 128, 14)
a(f"s_lshl_b32 s60, s{sAW}, 5")
a(f"s_add_u32 s60, s60, {L_WQ}")
a("v_add_u32 v70, s60, v70")
B_addr(71, L_Y, Y_STR, 14)
a("v_and_b32 v72, 7, v0")
a("v_lshlrev_b32 v72, 17, v72")
a(f"v_lshl_add_u32 v72, v{vG}, 5, v72")
a("v_bfe_u32 v14, v0, 3, 1")
a("v_lshl_add_u32 v72, v14, 4, v72")
a(f"s_lshl_b32 s61, s{sHKV}, 2")
a(f"s_add_u32 s61, s61, s{sS}")
a("s_lshl_b32 s61, s61, 12")
a(f"s_lshl_b32 s60, s{sB}, 9")
a("s_add_u32 s61, s61, s60")
a(f"s_lshl_b32 s60, s{sAW}, 7")
a("s_add_u32 s61, s61, s60")
a(f"s_add_u32 s61, s61, {WS_QP}")
a("s_mov_b32 s100, 0xff00ff00"); a("s_mov_b32 s101, 0xff00ff00")
a("s_mov_b32 s98, 0"); a("s_mov_b32 s99, -1")
a(f"s_and_b32 s60, s{sAW}, 1")
a("s_lshl_b32 s60, s60, 3")
a(f"v_lshlrev_b32 v13, 1, v{vG}")
a("v_or_b32 v13, s60, v13")
a(f"v_xor_b32 v13, v13, v{vC}")
a("v_lshlrev_b32 v13, 4, v13")
a(f"v_lshl_add_u32 v13, v{vG}, 8, v13")
a(f"s_lshl_b32 s60, s{sAW}, 11")
a("s_add_u32 s59, s58, s60")
if DBGV: stamp(7)
a("s_waitcnt vmcnt(7)")
if DBGV: stamp(10)
def st0():
    for i in range(4): unpack(16+i, 24+2*i, 25+2*i)
    row_stats(24, 40, 55)
def st1():
    for i in range(4): unpack(20+i, 32+2*i, 33+2*i)
    row_stats(32, 52, 94)
A_, B_ = capture(st0), capture(st1)
for x_, y_ in zip(A_, B_):
    a.items += [x_, y_]
a("v_cndmask_b32 v40, v40, v52, s[98:99]")
a("v_cndmask_b32 v41, v41, v53, s[98:99]")
rnd2(40, 41, 42)
sd_of(41, 42)
rcp_nr(42, 41, 43)
a("s_waitcnt vmcnt(6)")
unpack(64, 66, 67); unpack(65, 68, 69)
for i in range(4):
    a(f"v_sub_f32 v{66+i}, v{66+i}, v40")
rnd2(66, 67, 44); rnd2(68, 69, 45)
for i in range(4):
    a(f"v_mul_f32 v{44+i}, v{66+i}, v42")
for i in range(4):
    a(f"v_fma_f32 v{66+i}, -v{44+i}, v41, v{66+i}")
for i in range(4):
    a(f"v_fma_f32 v{66+i}, v{66+i}, v42, v{44+i}")
a("v_cvt_pk_bf16_f32 v44, v66, v67")
a("v_cvt_pk_bf16_f32 v45, v68, v69")
a("ds_write_b64 v15, v[44:45]")
if DBGV: stamp(11)
a("s_waitcnt vmcnt(5)")
a("v_add_u32 v6, 1, v6")
a(f"v_readfirstlane_b32 s{sTAG}, v6")
a(f"ds_write_b32 v{vSC}, v6 offset:{F_TAG-SC}")
a(f"ds_write_b32 v{vSC}, v{vONE} offset:{F_TRDY-SC}")
a(f"v_mov_b32 v53, s{sTAG}")
a(f"v_mov_b32 v55, s{sTAG}")
a("s_waitcnt vmcnt(0)")
set_flag(F_LN1)
stamp(1)
lds_wait4(F_LN1, 16)
for kk in range(4):
    a(f"ds_read_b128 v[{16+kk*4}:{19+kk*4}], v71 offset:{kk*64}")
    for hh in range(2):
        a(f"ds_read_b64_tr_b16 v[{32+kk*4+hh*2}:{33+kk*4+hh*2}], v70 offset:{kk*4096+hh*512}")
for kk in range(4):
    a(f"s_waitcnt lgkmcnt({(3-kk)*3})")
    c = "0" if kk == 0 else "v[56:59]"
    a(f"v_mfma_f32_16x16x32_bf16 v[56:59], v[{32+kk*4}:{35+kk*4}], v[{16+kk*4}:{19+kk*4}], {c}")
a(f"s_lshl_b32 s60, s{sAW}, 11")
a(f"s_add_u32 m0, s60, {L_V}")
a("v_cndmask_b32 v52, v56, v58, s[100:101]")
a("v_cndmask_b32 v54, v57, v59, s[100:101]")
a(f"buffer_store_dwordx4 v[52:55], v72, {R('ws')}, s61 offen sc1")
set_flag(F_Q)
stamp(2)
a("s_setprio 1")
a(f"s_cmp_lg_u32 s{sW}, 5")
a("s_cbranch_scc1 L_V_NOZ")
a("s_and_b32 s60, s2, 31")
a("s_cmp_lg_u32 s60, 24")
a("s_cbranch_scc1 L_V_NOZ")
for i in range(4): a(f"v_mov_b32 v{16+i}, 0")
a(f"s_mul_i32 s60, s{sB}, 3072")
a(f"s_add_u32 s60, s60, {WS_HACC}")
for j in range(3):
    a(f"buffer_store_dwordx4 v[16:19], v{vL16}, {R('ws')}, s60 offen offset:{j*1024} sc1")
a(f"s_lshl_b32 s60, s{sB}, 3")
a(f"s_add_u32 s60, s60, {WS_ZF}")
a("s_waitcnt vmcnt(0)")
a("s_mov_b64 exec, 1")
a(f"buffer_store_dword v53, v{vZ}, {R('ws')}, s60 offen sc1")
a("s_mov_b64 exec, -1")
a.label("L_V_NOZ")
step = lambda i: 1024 if i % 2 == 0 else 7168
if QFL:
    a(f"s_cmp_lg_u32 s{sAW}, 0")
    a("s_cbranch_scc1 L_V_NOQF")
    a("s_setprio 3")
    a(f"s_lshl_b32 s60, s{sHKV}, 12")
    a(f"s_add_u32 s60, s60, {WS_QF}")
    a("s_lshr_b32 s61, s2, 3")
    a("s_lshl_b32 s61, s61, 7")
    a("s_add_u32 s61, s61, s60")
    a("v_and_b32 v20, 31, v0")
    a("v_lshlrev_b32 v20, 7, v20")
    lds_wait4(F_Q, 16)
    a("s_mov_b64 exec, 1")
    a(f"buffer_store_dword v53, v{vZ}, {R('ws')}, s61 offen sc1")
    a("s_mov_b64 exec, -1")
    a(f"s_sleep {SL_Q}")
    a.label("L_V_QF")
    a(f"buffer_load_dword v21, v20, {R('ws')}, s60 offen sc1")
    budget()
    a("s_waitcnt vmcnt(0)")
    a(f"v_cmp_eq_u32 vcc, s{sTAG}, v21")
    a("s_cmp_eq_u64 vcc, -1")
    a("s_cbranch_scc0 L_V_QF")
    a(f"ds_write_b32 v{vSC}, v{vONE} offset:{F_QGO-SC}")
    a("s_setprio 1")
    a.label("L_V_NOQF")
lds_wait4(F_KI, 16)
dma(16, 13, "v", 59, step, step)
stamp(3)
vPR, vOPA, vTR = 120, 121, 122
a("v_and_b32 v15, 3, v0")
a(f"v_mul_u32_u24 v{vPR}, {P_STR}, v15")
a(f"v_add_u32 v{vPR}, {L_P}, v{vPR}")
a(f"v_lshl_add_u32 v{vPR}, v{vG}, 4, v{vPR}")
a(f"s_lshl_b32 s60, s{sHKV}, 2")
a(f"v_add_u32 v{vOPA}, s60, v15")
a("s_lshr_b32 s60, s2, 3")
a(f"v_lshlrev_b32 v{vOPA}, 5, v{vOPA}")
a(f"v_add_u32 v{vOPA}, s60, v{vOPA}")
a(f"v_lshlrev_b32 v{vOPA}, 10, v{vOPA}")
a("v_bfe_u32 v15, v0, 3, 1")
a(f"v_lshl_add_u32 v{vOPA}, v15, 7, v{vOPA}")
a(f"v_lshl_add_u32 v{vOPA}, v{vG}, 5, v{vOPA}")
a("v_bfe_u32 v15, v0, 2, 1")
a(f"v_lshl_add_u32 v{vOPA}, v15, 4, v{vOPA}")
a("v_bfe_u32 v14, v0, 2, 2")
a(f"v_and_b32 v15, 1, v{vG}")
a("v_lshl_add_u32 v15, v15, 2, v14")
a("v_lshlrev_b32 v15, 1, v15")
a("v_bfe_u32 v16, v0, 1, 1")
a("v_xor_b32 v15, v15, v16")
a(f"v_lshl_add_u32 v14, v{vG}, 3, v14")
a("v_lshlrev_b32 v14, 8, v14")
a("v_and_b32 v16, 1, v0")
a("v_lshl_add_u32 v14, v16, 3, v14")
for dt in range(2):
    a(f"s_lshl_b32 s60, s{sAW}, 2")
    if dt: a("s_add_u32 s60, s60, 2")
    a("v_xor_b32 v16, s60, v15")
    a(f"v_lshl_add_u32 v{vTR+dt}, v16, 4, v14")
a("s_mov_b32 s94, 0x00f000f0"); a("s_mov_b32 s95, 0x00f000f0")
a("s_mov_b32 s96, 0x0f000f00"); a("s_mov_b32 s97, 0x0f000f00")
a("s_mov_b32 s98, 0xf000f000"); a("s_mov_b32 s99, 0xf000f000")
a(f"s_lshl_b32 s60, s{sAW}, 8")
a(f"s_add_u32 s60, s60, {WS_OP}")
a(f"v_mov_b32 v105, s{sTAG}")
a(f"v_mov_b32 v107, s{sTAG}")
lds_wait4(F_B, 16, sleep=1)
vP = 16
for kk in range(8):
    a(f"ds_read_b128 v[{vP+kk*4}:{vP+kk*4+3}], v{vPR} offset:{kk*64}")
stamp(9)
vA = 48
vO = 96
def pv_reads(kk):
    base = vA + (kk % 6)*8
    for dt in range(2):
        for hh in range(2):
            r = base + dt*4 + hh*2
            a(f"ds_read_b64_tr_b16 v[{r}:{r+1}], v{vTR+dt} offset:{kk*8192 + hh*1024}")
def pv_mfma(kk, dt):
    base = vA + (kk % 6)*8
    c = "0" if kk == 0 else f"v[{vO+dt*4}:{vO+dt*4+3}]"
    a(f"v_mfma_f32_16x16x32_bf16 v[{vO+dt*4}:{vO+dt*4+3}], v[{base+dt*4}:{base+dt*4+3}], v[{vP+kk*4}:{vP+kk*4+3}], {c}")
for grp in ([0,1,2,3,4], [5,6], [7]):
    last = grp[-1]
    a(f"v_mov_b32 v14, {last+1}")
    a(f"s_waitcnt vmcnt({14-2*last})")
    set_flag(F_V, 14)
    lds_wait4(F_V, 108, minval=last+1)
    pend = list(grp)
    issued = []
    for kk in pend[:3]:
        pv_reads(kk); issued.append(kk)
    for idx, kk in enumerate(pend):
        after = len(issued) - 1 - idx
        for dt in range(2):
            a(f"s_waitcnt lgkmcnt({after*4 + 2 - 2*dt})")
            pv_mfma(kk, dt)
        if idx + 3 < len(pend):
            pv_reads(pend[idx+3]); issued.append(pend[idx+3])
a("v_mov_b32 v14, 9")
a(f"v_cndmask_b32 v104, v{vO}, v{vO+2}, s[94:95]")
a(f"v_cndmask_b32 v106, v{vO+1}, v{vO+3}, s[94:95]")
a(f"v_cndmask_b32 v104, v104, v{vO+4}, s[96:97]")
a(f"v_cndmask_b32 v106, v106, v{vO+5}, s[96:97]")
a(f"v_cndmask_b32 v104, v104, v{vO+6}, s[98:99]")
a(f"v_cndmask_b32 v106, v106, v{vO+7}, s[98:99]")
a(f"buffer_store_dwordx4 v[104:107], v{vOPA}, {R('ws')}, s60 offen sc1")
stamp(4)
a(f"s_cmp_ge_u32 s{sS}, 2")
a("s_cbranch_scc1 L_V_NOTWO")

a(f"s_lshl_b32 s58, s{sB}, 1")
a(f"s_add_u32 s58, s58, s{sS}")
a("s_lshl_b32 s64, s58, 3")
a(f"s_add_u32 s64, s64, s{sHKV}")
a("s_lshl_b32 s64, s64, 7")
a(f"s_add_u32 s64, s64, {WS_FL}")
a("s_lshr_b32 s63, s58, 2")
a("s_lshl_b32 s63, s63, 2")
a(f"s_add_u32 s63, s63, s{sAW}")
trA_addr(13, 256, 15)
a(f"s_lshl_b32 s60, s{sAW}, 6")
a(f"s_add_u32 s60, s60, {L_K}")
a("v_add_u32 v13, s60, v13")
a("s_waitcnt vmcnt(0)")
set_flag(F_V, 14)
B_addr(14, L_OL, OL_STR, 15)
a(f"s_mul_i32 s60, s{sAW}, {8*RL_STR}")
a(f"s_add_u32 s60, s60, {L_RL}")
a("v_and_b32 v15, 7, v0")
a(f"v_mul_u32_u24 v15, {RL_STR}, v15")
a("v_bfe_u32 v16, v0, 3, 1")
a("v_lshl_add_u32 v15, v16, 6, v15")
a(f"v_lshl_add_u32 v15, v{vG}, 4, v15")
a("v_add_u32 v15, s60, v15")
a("v_bfe_u32 v16, v0, 2, 2")
a("v_and_b32 v17, 3, v0")
a(f"v_mul_u32_u24 v18, {RL_STR}, v{vG}")
a("v_lshl_add_u32 v18, v16, 5, v18")
a("v_lshl_add_u32 v18, v17, 2, v18")
a("v_add_u32 v18, s60, v18")
a(f"v_mov_b32 v19, {C_ONE}")
a(f"v_mov_b32 v20, {C_ZERO}")
a("v_cmp_eq_u32 s[56:57], 3, v17")
a("v_cmp_eq_u32 s[58:59], 2, v17")
for j in range(3):
    for bh in range(2):
        r = 24 + j*2 + bh
        a(f"v_add_u32 v{r}, {j*12 + bh*4*RL_STR}, v18")
        a(f"v_cndmask_b32 v{r}, v{r}, v19, s[56:57]")
        if j == 2:
            a(f"v_cndmask_b32 v{r}, v{r}, v20, s[58:59]")
a(f"v_mul_u32_u24 v21, 3072, v{vG}")
a("v_and_b32 v22, 15, v0")
a("v_lshl_add_u32 v21, v22, 2, v21")
a("s_lshl_b32 s63, s63, 6")
a(f"s_add_u32 s63, s63, {WS_HACC}")
a("s_add_u32 s61, s63, 12288")
lds_wait4(F_W, 32)
vA = 32
for nt_ in range(2):
    for kk in range(4):
        for hh in range(2):
            r = vA + (nt_*4+kk)*4 + hh*2
            a(f"ds_read_b64_tr_b16 v[{r}:{r+1}], v13 offset:{kk*8192 + hh*1024 + nt_*32}")
    a("s_waitcnt lgkmcnt(0)")
stamp(10)
lds_wait4(F_C, 64)
stamp(5)
vB = 64
for kk in range(4):
    a(f"ds_read_b128 v[{vB+kk*4}:{vB+kk*4+3}], v14 offset:{kk*64}")
for kk in range(4):
    a(f"s_waitcnt lgkmcnt({3-kk})")
    for nt_ in range(2):
        c = "0" if kk == 0 else f"v[{80+nt_*4}:{83+nt_*4}]"
        r = vA + (nt_*4+kk)*4
        a(f"v_mfma_f32_16x16x32_bf16 v[{80+nt_*4}:{83+nt_*4}], v[{r}:{r+3}], v[{vB+kk*4}:{vB+kk*4+3}], {c}")
for i in range(4):
    a(f"v_cndmask_b32 v{88+i}, v{80+i}, v{84+i}, s[100:101]")
a("ds_write_b128 v15, v[88:91]")
for r in range(6):
    a(f"ds_read_b32 v{92+r}, v{24+r}")
for j in range(3):
    for bh in range(2):
        r = j*2 + bh
        a(f"s_waitcnt lgkmcnt({5-r})")
        a(f"buffer_atomic_add_f32 v{92+r}, v21, {R('ws')}, {'s63' if bh == 0 else 's61'} offen offset:{j*1024}")
a(f"s_cmp_lg_u32 s{sAW}, 3")
a("s_cbranch_scc1 L_V_NOFL")
a("s_mov_b64 exec, 1")
a(f"buffer_store_dword v105, v{vZ}, {R('ws')}, s64 offen sc1")
a("s_mov_b64 exec, -1")
a.label("L_V_NOFL")
stamp(6)
if STAMPS:
    a("s_waitcnt vmcnt(0)")
    stamp(7)
a("s_branch L_FIN")


def mlp_decode():
    a(f"s_lshl_b32 s62, s{sB}, 1")
    a(f"s_add_u32 s62, s62, s{sS}")
    a("s_sub_u32 s62, s62, 2")
    a("s_lshr_b32 s63, s62, 2")
    a("s_lshl_b32 s63, s63, 3")
    a(f"s_add_u32 s63, s63, s{sHKV}")
    a("s_and_b32 s62, s62, 3")

def w2_common():
    trA_addr(13, 1024, 16)
    a(f"s_lshl_b32 s60, s{sW}, 7")
    a("v_add_u32 v13, s60, v13")
    a("v_add_u32 v14, 32768, v13")
    a("v_and_b32 v16, 1, v0")
    a(f"v_lshlrev_b32 v{vSTO}, 17, v16")
    a("v_bfe_u32 v17, v0, 2, 2")
    a(f"v_lshl_add_u32 v{vSTO}, v17, 12, v{vSTO}")
    a(f"v_lshl_add_u32 v{vSTO}, v{vG}, 5, v{vSTO}")
    a("v_bfe_u32 v17, v0, 1, 1")
    a(f"v_lshl_add_u32 v{vSTO}, v17, 4, v{vSTO}")
    a(f"v_mul_u32_u24 v{vH1R}, {H1_STR}, v16")
    a(f"v_lshl_add_u32 v{vH1R}, v{vG}, 4, v{vH1R}")
    a(f"v_add_u32 v{vH1R}, {L_H1}, v{vH1R}")
    a("s_lshl_b32 s64, s62, 18")
    a(f"s_lshl_b32 s65, s{sW}, 14")
    a("s_add_u32 s64, s64, s65")
    a("s_lshl_b32 s65, s63, 7")
    a("s_add_u32 s64, s64, s65")
    a(f"s_add_u32 s64, s64, {WS_OUTP}")
    a("s_mov_b32 s94, 0xcccccccc"); a("s_mov_b32 s95, 0xcccccccc")
    a("s_mov_b32 s96, 0xf0f0f0f0"); a("s_mov_b32 s97, 0xf0f0f0f0")
    a("s_mov_b32 s98, 0xff00ff00"); a("s_mov_b32 s99, 0xff00ff00")
    a(f"v_mov_b32 v161, s{sTAG}")
    a(f"v_mov_b32 v163, s{sTAG}")
    lds_wait4(F_W2, 16, sleep=1)
    for nt_ in range(4):
        for kk in range(2):
            for hh in range(2):
                r = vA2 + (nt_*2+kk)*4 + hh*2
                a(f"ds_read_b64_tr_b16 v[{r}:{r+1}], v{13+kk} offset:{hh*4096 + nt_*32}")
        if nt_ % 2 == 1: a("s_waitcnt lgkmcnt(0)")
    stamp(10)

def flags_poll():
    zflag_wait(16)
    a("v_lshlrev_b32 v13, 7, v0")
    a(f"s_mov_b32 s58, {WS_FL}")
    a(f"s_mov_b32 s59, {WS_FL+8192}")
    Lf = a.newlabel("FL")
    a.label(Lf)
    a(f"buffer_load_dword v16, v13, {R('ws')}, s58 offen sc1")
    a(f"buffer_load_dword v17, v13, {R('ws')}, s59 offen sc1")
    budget()
    a("s_waitcnt vmcnt(0)")
    a(f"v_cmp_eq_u32 vcc, s{sTAG}, v16")
    a(f"v_cmp_eq_u32 s[56:57], s{sTAG}, v17")
    a("s_and_b64 vcc, vcc, s[56:57]")
    a("s_cmp_eq_u64 vcc, -1")
    a(f"s_cbranch_scc1 {Lf}_ok")
    a(f"s_sleep {SL_POLL}")
    a(f"s_branch {Lf}")
    a.label(f"{Lf}_ok")
    if SL_GO: a(f"s_sleep {SL_GO}")

def h_gather():
    Lh = a.newlabel("MH")
    a.label(Lh)
    for j in range(3):
        a(f"buffer_load_dwordx4 v[{24+j*4}:{27+j*4}], v{vL16}, {R('ws')}, s60 offen offset:{j*1024} sc1")
    budget()
    a("s_waitcnt vmcnt(2)")
    a("v_cmp_eq_f32 s[56:57], s61, v27")
    a("s_waitcnt vmcnt(1)")
    a("v_cmp_eq_f32 vcc, s61, v31")
    a("s_and_b64 s[56:57], s[56:57], vcc")
    a("s_waitcnt vmcnt(0)")
    a("v_cmp_eq_f32 vcc, s61, v35")
    a("s_and_b64 s[56:57], s[56:57], vcc")
    a("s_cmp_eq_u64 s[56:57], -1")
    a(f"s_cbranch_scc1 {Lh}_ok")
    a(f"s_sleep {SL_POLL+2}")
    a(f"s_branch {Lh}")
    a.label(f"{Lh}_ok")
    stamp(5)
    src = [24, 25, 26, 28, 29, 30, 32, 33]
    for i in range(0, 8, 2):
        a(f"v_cvt_pk_bf16_f32 v{36+i//2}, v{src[i]}, v{src[i+1]}")
    for i in range(4):
        unpack(36+i, 24+2*i, 25+2*i)
    for i in range(0, 8, 2):
        a(f"v_pk_add_f32 v[{24+i}:{25+i}], v[{24+i}:{25+i}], v[{16+i}:{17+i}]")
    for i in range(0, 8, 2):
        a(f"v_cvt_pk_bf16_f32 v{44+i//2}, v{24+i}, v{25+i}")

a.label("L_K_NOTWO")
mlp_decode()
a(f"s_cmp_lt_u32 s63, {NMLP}")
a("s_cbranch_scc1 L_K_MLP")
a(f"s_cmp_lg_u32 s2, {HPUB_ID}")
a("s_cbranch_scc1 L_FIN")
a("s_branch L_HPUB")
a.label("L_K_MLP")
srd("w1"); srd("b1"); srd("w2")
a("v_lshrrev_b32 v13, 3, v0")
a("v_mul_u32_u24 v13, 3584, v13")
a("v_and_b32 v16, 7, v0")
a("v_lshl_add_u32 v13, v16, 4, v13")
a("s_lshl_b32 s58, s63, 7")
a(f"s_lshl_b32 s60, s{sW}, 5")
a("s_add_u32 s60, s60, s58")
a(f"v_lshlrev_b32 v16, 3, v{vG}")
a(f"buffer_load_dwordx2 v[14:15], v16, {R('b1')}, s60 offen")
a(f"s_mul_i32 s59, s{sW}, {32*3584}")
a("s_add_u32 s58, s59, s58")
a(f"s_lshl_b32 s61, s{sW}, 12")
a(f"s_add_u32 s61, s61, {L_K}")
if W1AFTER: lds_wait4(F_V, 16, minval=9, sleep=2)
if SL_W: a(f"s_sleep {SL_W}")
for q in range(4):
    a(f"s_add_u32 s60, s62, {q}")
    a("s_and_b32 s60, s60, 3")
    a(f"s_mul_i32 s59, s60, {128*3584}")
    a("s_add_u32 s59, s59, s58")
    a("s_lshl_b32 s60, s60, 14")
    a("s_add_u32 m0, s60, s61")
    dma(4, 13, "w1", 59, 8*3584, pol=MLPP)
stamp(4)
trA_addr(13, 128, 16)
a(f"s_lshl_b32 s60, s{sW}, 5")
a(f"s_add_u32 s60, s60, {L_K}")
a("v_add_u32 v13, s60, v13")
a("v_mov_b32 v16, 2")
a("s_waitcnt vmcnt(0)")
set_flag(F_W, 16)
unpack(14, vB1, vB1+1); unpack(15, vB1+2, vB1+3)
lds_wait4(F_W, 16, sleep=1, minval=2)
for kk in range(16):
    for hh in range(2):
        a(f"ds_read_b64_tr_b16 v[{vA1+kk*4+hh*2}:{vA1+kk*4+hh*2+1}], v13 offset:{kk*4096+hh*512}")
    if kk % 4 == 3: a("s_waitcnt lgkmcnt(0)")
for i in range(4): a(f"v_mov_b32 v{16+i}, 0x3f803f80")
for kk in range(16):
    c = "0" if kk == 0 else f"v[{vCS}:{vCS+3}]"
    a(f"v_mfma_f32_16x16x32_bf16 v[{vCS}:{vCS+3}], v[{vA1+kk*4}:{vA1+kk*4+3}], v[16:19], {c}")
a("v_and_b32 v16, 1, v0")
a(f"v_mul_u32_u24 v{vYR}, {Y_STR}, v16")
a(f"v_lshl_add_u32 v{vYR}, v{vG}, 4, v{vYR}")
a(f"v_add_u32 v{vYR}, {L_Y}, v{vYR}")
a(f"v_mul_u32_u24 v{vH1W}, {H1_STR}, v16")
a(f"v_lshl_add_u32 v{vH1W}, v{vG}, 3, v{vH1W}")
a(f"s_lshl_b32 s60, s{sW}, 5")
a(f"s_add_u32 s60, s60, {L_H1}")
a(f"v_add_u32 v{vH1W}, s60, v{vH1W}")
a(f"v_lshlrev_b32 v{vABR}, 4, v16")
a(f"v_add_u32 v{vABR}, {L_AB}, v{vABR}")
k0 = 0.7978845608028654; k1 = 0.044715; l2e = 1.4426950408889634
a(f"s_mov_b32 s67, {f2u(-2*k0*k1*l2e):#x}")
a(f"v_mov_b32 v{vGC}, {f2u(-2*k0*l2e):#x}")
stamp(11)
w2_common()
a("s_setprio 2")
Ly = a.newlabel("WY")
a.label(Ly)
a(f"ds_read_b64 v[16:17], v{vSC} offset:{F_Y-SC}")
budget()
a("s_waitcnt lgkmcnt(0)")
a("v_and_b32 v16, v16, v17")
a("v_readfirstlane_b32 s54, v16")
a("s_cmp_eq_u32 s54, 0")
a(f"s_cbranch_scc1 {Ly}")
stamp(5)
vB = 164
Bq = [200+4*i for i in range(8)] + [164+4*i for i in range(7)] + [24]
for k2 in range(15):
    a(f"ds_read_b128 v[{Bq[k2]}:{Bq[k2]+3}], v{vYR} offset:{k2*64}")
for k2 in range(16):
    if k2 == 1:
        a(f"ds_read_b128 v[{Bq[15]}:{Bq[15]+3}], v{vYR} offset:{15*64}")
    a(f"s_waitcnt lgkmcnt({14 if k2 == 0 else 15-k2})")
    c = "0" if k2 == 0 else "v[16:19]"
    a(f"v_mfma_f32_16x16x32_bf16 v[16:19], v[{vA1+k2*4}:{vA1+k2*4+3}], v[{Bq[k2]}:{Bq[k2]+3}], {c}")
stamp(6)
Lab = a.newlabel("AB")
a.label(Lab)
a(f"ds_read_b96 v[20:22], v{vABR}")
budget()
a("s_waitcnt lgkmcnt(0)")
a("v_cmp_eq_u32 vcc, 1, v22")
a("s_cmp_eq_u64 vcc, -1")
a(f"s_cbranch_scc0 {Lab}")
for i in range(4):
    a(f"v_mul_f32 v{16+i}, v20, v{16+i}")
for i in range(4):
    a(f"v_fmac_f32 v{16+i}, v21, v{vCS+i}")
rnd2(16, 17, 20); rnd2(18, 19, 21)
for i in range(4):
    a(f"v_add_f32 v{16+i}, v{16+i}, v{vB1+i}")
rnd2(16, 17, 20); rnd2(18, 19, 21)
for i in range(4):
    a(f"v_mul_f32 v{20+i}, v{16+i}, v{16+i}")
for i in range(4):
    a(f"v_fma_f32 v{20+i}, v{20+i}, s67, v{vGC}")
for i in range(4):
    a(f"v_mul_f32 v{20+i}, v{20+i}, v{16+i}")
for i in range(4):
    a(f"v_exp_f32 v{20+i}, v{20+i}")
for i in range(4):
    a(f"v_add_f32 v{20+i}, 1.0, v{20+i}")
for i in range(4):
    a(f"v_rcp_f32 v{20+i}, v{20+i}")
for i in range(4):
    a(f"v_mul_f32 v{16+i}, v{16+i}, v{20+i}")
a("v_cvt_pk_bf16_f32 v16, v16, v17")
a("v_cvt_pk_bf16_f32 v17, v18, v19")
a(f"ds_write_b64 v{vH1W}, v[16:17]")
set_flag(F_D)
stamp(9)
a.label("L_MLP_W2")
lds_wait4(F_D, 20)
a(f"ds_read_b128 v[16:19], v{vH1R}")
a(f"ds_read_b128 v[20:23], v{vH1R} offset:64")
vO = 24
for kk in range(2):
    a(f"s_waitcnt lgkmcnt({1-kk})")
    for nt_ in range(4):
        r = vA2 + (nt_*2+kk)*4
        c = "0" if kk == 0 else f"v[{vO+nt_*4}:{vO+nt_*4+3}]"
        a(f"v_mfma_f32_16x16x32_bf16 v[{vO+nt_*4}:{vO+nt_*4+3}], v[{r}:{r+3}], v[{16+kk*4}:{19+kk*4}], {c}")
for nt_ in range(4):
    a(f"v_cndmask_b32 v{40+nt_*2}, v{vO+nt_*4}, v{vO+nt_*4+2}, s[94:95]")
    a(f"v_cndmask_b32 v{41+nt_*2}, v{vO+nt_*4+1}, v{vO+nt_*4+3}, s[94:95]")
for q in range(2):
    a(f"v_cndmask_b32 v{40+q*4}, v{40+q*4}, v{42+q*4}, s[96:97]")
    a(f"v_cndmask_b32 v{41+q*4}, v{41+q*4}, v{43+q*4}, s[96:97]")
a("v_cndmask_b32 v160, v40, v44, s[98:99]")
a("v_cndmask_b32 v162, v41, v45, s[98:99]")
a(f"buffer_store_dwordx4 v[160:163], v{vSTO}, {R('ws')}, s64 offen sc1")
stamp(7)
a("s_branch L_FIN")

a.label("L_V_NOTWO")
set_flag(F_V, 14)
mlp_decode()
a(f"s_cmp_lt_u32 s63, {NMLP}")
a("s_cbranch_scc1 L_V_MLP")
a(f"s_cmp_lg_u32 s2, {HPUB_ID}")
a("s_cbranch_scc1 L_FIN")
a("s_branch L_HPUB")
a.label("L_V_MLP")
srd("w2")
a("s_lshl_b32 s58, s63, 16")
a(f"s_lshl_b32 s61, s{sAW}, 12")
a("s_add_u32 s58, s58, s61")
a("s_lshl_b32 s60, s62, 1")
a(f"s_add_u32 s66, s60, s{sAW}")
a("s_and_b32 s66, s66, 7")
a("s_lshl_b32 s60, s66, 10")
a(f"buffer_load_dwordx4 v[{vX}:{vX+3}], v{vL16}, {R('x')}, s60 offen")
lds_wait4(F_V, 16, minval=9)
if SL_W: a(f"s_sleep {SL_W}")
for q in range(4):
    a(f"s_add_u32 s60, s62, {q}")
    a("s_and_b32 s60, s60, 3")
    a("s_lshl_b32 s60, s60, 14")
    a("s_add_u32 s59, s60, s58")
    a("s_add_u32 m0, s60, s61")
    dma(4, vL16, "w2", 59, 1024, pol=MLPP)
a("s_waitcnt vmcnt(0)")
set_flag(F_W2)
w2_common()
a(f"s_cmp_ge_u32 s{sAW}, 2")
a("s_cbranch_scc1 L_MLP_W2")
a("s_setprio 3")
flags_poll()
stamp(11)
a("s_mul_i32 s60, s66, 3072")
a(f"s_add_u32 s60, s60, {WS_HACC}")
a("s_mov_b32 s61, 0x42000000")
for i in range(4):
    unpack(vX+i, 16+2*i, 17+2*i)
a(f"s_mul_i32 s58, s{sAW}, {Y_STR}")
a(f"s_add_u32 s58, s58, {L_Y}")
a(f"v_add_u32 v13, s58, v{vL16}")
a(f"s_lshl_b32 s58, s{sAW}, 4")
a(f"v_add_u32 v14, s58, v{vSC}")
h_gather()
a("ds_write_b128 v13, v[44:47]")
set_flag(F_Y)
for i in range(4):
    unpack(44+i, 24+2*i, 25+2*i)
row_stats(24, 32)
a("v_mov_b32 v34, v32")
a("v_mov_b32 v35, v33")
rnd2(34, 35, 36)
sd_of(35, 36)
rcp_nr(36, 35, 37)
a("v_sub_f32 v32, v32, v34")
a("v_mul_f32 v32, v32, v36")
a("v_mul_f32 v33, v33, v36")
a("v_mul_f32 v33, v33, v36")
rnd2(32, 33, 37)
sd_of(33, 37)
rcp_nr(37, 33, 38)
a("v_mul_f32 v40, v36, v37")
a("v_fma_f32 v41, v32, v35, v34")
a("v_mul_f32 v41, -v41, v40")
a("v_mov_b32 v42, 1")
a(f"ds_write_b96 v14, v[40:42] offset:{L_AB-SC}")
stamp(6)
a("s_branch L_MLP_W2")

a.label("L_HPUB")
flags_poll()
a(f"s_mul_i32 s60, s{sW}, 3072")
a(f"s_add_u32 s60, s60, {WS_HACC}")
a("s_mov_b32 s61, 0x42000000")
for i in range(4):
    unpack(vX+i, 16+2*i, 17+2*i)
a("v_lshrrev_b32 v13, 1, v0")
a("v_lshlrev_b32 v13, 12, v13")
a("v_and_b32 v14, 1, v0")
a("v_lshl_add_u32 v13, v14, 5, v13")
a(f"s_lshl_b32 s62, s{sW}, 17")
a(f"s_add_u32 s62, s62, {WS_OUTP + NMLP*128}")
h_gather()
for i in range(4):
    a(f"v_mov_b32 v{24+2*i}, v{44+i}")
    a(f"v_mov_b32 v{25+2*i}, s{sTAG}")
a(f"buffer_store_dwordx4 v[24:27], v13, {R('ws')}, s62 offen sc1")
a(f"buffer_store_dwordx4 v[28:31], v13, {R('ws')}, s62 offen offset:16 sc1")

a.label("L_FIN")
if STAMPS:
    stamp(8)
    if CAL:
        cw, cs = map(int, CAL.split(":"))
        a(f"s_cmp_lg_u32 s2, {CALWG}")
        a("s_cbranch_scc1 L_END")
        a(f"s_cmp_lg_u32 s{sW}, {cw}")
        a("s_cbranch_scc1 L_END")
        a(f"v_readfirstlane_b32 s60, v{240+cs}")
        a("v_readfirstlane_b32 s61, v240")
        a("s_sub_u32 s60, s60, s61")
        a("s_lshl_b32 s60, s60, 1")
        a("s_add_u32 s60, s60, 4000")
        a.label("L_CAL")
        a("s_memrealtime s[90:91]")
        a("s_waitcnt lgkmcnt(0)")
        a("s_sub_u32 s62, s90, s61")
        a("s_cmp_lt_u32 s62, s60")
        a("s_cbranch_scc1 L_CAL")
        a("s_branch L_END")
    a("s_lshl_b32 s60, s2, 3")
    a(f"s_add_u32 s60, s60, s{sW}")
    a("s_mul_i32 s60, s60, 48")
    a(f"s_add_u32 s60, s60, {WS_STAMP}")
    a("s_mov_b64 exec, 1")
    for i in range(3):
        a(f"buffer_store_dwordx4 v[{240+4*i}:{243+4*i}], v{vZ}, {R('ws')}, s60 offen offset:{16*i}")
    if DBGST:
        a("v_not_b32 v252, v240")
        for i in range(13):
            a(f"global_atomic_umax v{vZ}, v{240+i}, s[86:87] offset:{4*i}")
a.label("L_END")
a("s_endpgm")

hdr = open("sequential_preLN__sliding_block_cached__mixer_channel_mlp__decode.s.ref").read().split("; Override launch")[0]
open(out, "w").write(wrap(a.text(), 256, 512, LDS_BYTES, vgpr=256, header_comment=hdr))
```

```python
import sys, struct
from asmgen import *

out = sys.argv[1]
opts = dict(kv.split("=") for kv in sys.argv[2:])
STAMPS = int(opts.get("stamps", 0))
DBGST = int(opts.get("dbgst", 0))
if DBGST: STAMPS = 1
CAL = opts.get("cal")
CALWG = int(opts.get("calwg", 0))
if CAL: STAMPS = 1
NT = "nt" if int(opts.get("nt", 1)) else ""
SL_GO = int(opts.get("sl_go", 0))
SL_POLL = int(opts.get("sl_poll", 2))
SL_RED = int(opts.get("sl_red", 4))
SL_Q = int(opts.get("sl_q", 20))
FLEARLY = int(opts.get("flearly", 0))
WOFILL = int(opts.get("wofill", 1))
SL_E1 = int(opts.get("sl_e1", 0))
QACK = int(opts.get("qack", 1))
THR = int(opts.get("thr", 4))
NVK = int(opts.get("nvk", 4))
E1F = int(opts.get("e1f", 0))
E3F = int(opts.get("e3f", 0))
SL_E3 = int(opts.get("sl_e3", 0))
SL_P1 = int(opts.get("sl_p1", 2))
SL_Q2 = int(opts.get("sl_q2", 14))
NK1 = int(opts.get("nk1", 8))
QFL = int(opts.get("qfl", 1))
PFP = opts.get("pfp", "nt")
if PFP == "none": PFP = ""
MLPP = opts.get("mlpp", "nt")
if MLPP == "none": MLPP = ""

def f2u(x): return struct.unpack("<I", struct.pack("<f", x))[0]

WS_ZF = 256
WS_ST = 4096
WS_HACC = 32768
WS_FL = 65536
WS_OF = 0x380000
WS_HF = 0x28000
WS_RF = 0x340000
WS_QP = 0x40000
WS_OP = 0x140000
WS_OUTP = 0x240000
WS_STAMP = 128 << 20
NMLP = 28
HPUB_ID = ((6*4+2)*8+4)
SL_W = int(opts.get("sl_w", 0))
SL_QW = int(opts.get("sl_qw", 8))
PF = int(opts.get("pf", 1))
PFPRIO = int(opts.get("pfprio", 0))
SL_WO = int(opts.get("sl_wo", 0))
NQ = int(opts.get("nq", 8))
NV1 = int(opts.get("nv1", 6))
CODEPF = int(opts.get("codepf", 1))
W1AFTER = int(opts.get("w1after", 1))

L_V = 0
L_K = 65536
L_WQ = 131072
L_QL = L_WQ
L_P = L_WQ + 1024; P_STR = 528
L_OL = L_WQ + 3200; OL_STR = 272
L_H1 = L_WQ + 5376; H1_STR = 144
L_RL = L_WQ + 6528; RL_STR = 144
SC = 147456
F_TAG = SC + 0
F_TRDY = SC + 4
F_GO = SC + 8
F_CF = SC + 12
F_LN1 = SC + 16
F_Q = SC + 32
F_A = SC + 48
F_B = SC + 64
F_V = SC + 80
F_W = SC + 96
F_C = SC + 112
F_D = SC + 128
F_W2 = SC + 144
F_KI = SC + 304
F_QGO = SC + 168
F_Y = SC + 512
F_WR = SC + 528
F_GI = SC + 544
F_VK = SC + 560
C_ONE = SC + 160
C_ZERO = SC + 164
L_AB = SC + 176
L_MX = SC + 320
L_SUM = SC + 384
L_CF = L_WQ + 12288
L_Y = SC + 640; Y_STR = 1040
LDS_BYTES = SC + 640 + 8*Y_STR
assert LDS_BYTES <= 163840

sW, sHKV, sB, sS, sAW = 3, 4, 5, 6, 7
SRD = dict(ws=8, k=12, v=16, x=20, wq=24, wo=28, w1=32, w2=36, b1=40, b2=44, out=48)
sTAG, sBUD = 52, 53
PTR = dict(x=64, k=66, v=68, wq=70, wo=72, bx=74, w1=76, b1=78, w2=80, b2=82, out=84, dbg=86, ws=88)
LOG2E = 0x3FB8AA3B
SCALE = 0x3DB504F3
DPPM = "row_mask:0xf bank_mask:0xf"

a = Asm()

def srd(name):
    d = SRD[name]; p = PTR[name]
    a(f"s_mov_b32 s{d}, s{p}")
    a(f"s_and_b32 s{d+1}, s{p+1}, 0xffff")
    a(f"s_mov_b32 s{d+2}, {SIZES[name]}")
    a(f"s_mov_b32 s{d+3}, 0x20000")
def R(name): d = SRD[name]; return f"s[{d}:{d+3}]"

def stamp(i):
    if not STAMPS: return
    if STAMPS == 2 and i != 8: return
    a("s_memrealtime s[90:91]")
    a("s_waitcnt lgkmcnt(0)")
    a(f"v_mov_b32 v{240+i}, s90")

def budget():
    a(f"s_sub_u32 s{sBUD}, s{sBUD}, 1")
    a("s_cbranch_scc1 L_END")

def set_flag(flag, val=None):
    a(f"ds_write_b32 v{vFL}, v{vONE if val is None else val} offset:{flag-SC}")

def lds_wait4(flag, vt, sleep=0, minval=None):
    L = a.newlabel("W4")
    a.label(L)
    a(f"ds_read_b128 v[{vt}:{vt+3}], v{vSC} offset:{flag-SC}")
    budget()
    a("s_waitcnt lgkmcnt(0)")
    a(f"v_min3_u32 v{vt}, v{vt}, v{vt+1}, v{vt+2}")
    a(f"v_min_u32 v{vt}, v{vt}, v{vt+3}")
    a(f"v_readfirstlane_b32 s54, v{vt}")
    if sleep: a(f"s_sleep {sleep}")
    a(f"s_cmp_lt_u32 s54, {1 if minval is None else minval}")
    a(f"s_cbranch_scc1 {L}")

def lds_wait1(flag, vt, sleep=0):
    L = a.newlabel("W1")
    a.label(L)
    a(f"ds_read_b32 v{vt}, v{vSC} offset:{flag-SC}")
    budget()
    a("s_waitcnt lgkmcnt(0)")
    a(f"v_readfirstlane_b32 s54, v{vt}")
    if sleep: a(f"s_sleep {sleep}")
    a("s_cmp_eq_u32 s54, 0")
    a(f"s_cbranch_scc1 {L}")

def rnd1(v, t):
    a(f"v_cvt_pk_bf16_f32 v{t}, v{v}, v{v}")
    a(f"v_lshlrev_b32 v{v}, 16, v{t}")
def rnd2(v0, v1, t):
    a(f"v_cvt_pk_bf16_f32 v{t}, v{v0}, v{v1}")
    a(f"v_lshlrev_b32 v{v0}, 16, v{t}")
    a(f"v_and_b32 v{v1}, 0xffff0000, v{t}")
def unpack(src, lo, hi):
    a(f"v_lshlrev_b32 v{lo}, 16, v{src}")
    a(f"v_and_b32 v{hi}, 0xffff0000, v{src}")

def wave_sum2(va, vb, sa, sb):
    for mod in ("quad_perm:[1,0,3,2]", "quad_perm:[2,3,0,1]", "row_half_mirror", "row_mirror"):
        a(f"v_add_f32_dpp v{va}, v{va}, v{va} {mod} {DPPM}")
        a(f"v_add_f32_dpp v{vb}, v{vb}, v{vb} {mod} {DPPM}")
    a(f"v_add_f32_dpp v{va}, v{va}, v{va} row_bcast:15 row_mask:0xa bank_mask:0xf")
    a(f"v_add_f32_dpp v{vb}, v{vb}, v{vb} row_bcast:15 row_mask:0xa bank_mask:0xf")
    a(f"v_add_f32_dpp v{va}, v{va}, v{va} row_bcast:31 row_mask:0xc bank_mask:0xf")
    a(f"v_add_f32_dpp v{vb}, v{vb}, v{vb} row_bcast:31 row_mask:0xc bank_mask:0xf")
    a(f"v_readlane_b32 s{sa}, v{va}, 63")
    a(f"v_readlane_b32 s{sb}, v{vb}, 63")

def row_stats(e, t, sg=55):
    a(f"v_readfirstlane_b32 s{sg}, v{e}")
    a(f"v_mov_b32 v{t+10}, s{sg}")
    a(f"v_mov_b32 v{t+11}, s{sg}")
    for i in range(0, 8, 2):
        a(f"v_pk_add_f32 v[{t+i}:{t+i+1}], v[{e+i}:{e+i+1}], v[{t+10}:{t+11}] neg_lo:[0,1] neg_hi:[0,1]")
    a(f"v_pk_add_f32 v[{t+8}:{t+9}], v[{t}:{t+1}], v[{t+2}:{t+3}]")
    a(f"v_pk_mul_f32 v[{t+10}:{t+11}], v[{t}:{t+1}], v[{t}:{t+1}]")
    a(f"v_pk_add_f32 v[{t}:{t+1}], v[{t+4}:{t+5}], v[{t+6}:{t+7}]")
    for i in (2, 4, 6):
        a(f"v_pk_fma_f32 v[{t+10}:{t+11}], v[{t+i}:{t+i+1}], v[{t+i}:{t+i+1}], v[{t+10}:{t+11}]")
    a(f"v_pk_add_f32 v[{t+8}:{t+9}], v[{t+8}:{t+9}], v[{t}:{t+1}]")
    a(f"v_add_f32 v{t+10}, v{t+10}, v{t+11}")
    a(f"v_add_f32 v{t+8}, v{t+8}, v{t+9}")
    wave_sum2(t+8, t+10, sg+1, sg+2)
    a(f"v_mov_b32 v{t+2}, 0x3b000000")
    a(f"v_mul_f32 v{t}, s{sg+1}, v{t+2}")
    a(f"v_mul_f32 v{t+1}, s{sg+2}, v{t+2}")
    a(f"v_fma_f32 v{t+1}, -v{t}, v{t}, v{t+1}")
    a(f"v_max_f32 v{t+1}, 0, v{t+1}")
    a(f"v_add_f32 v{t}, s{sg}, v{t}")

def sd_of(v, t):
    a(f"v_add_f32 v{v}, 0x3727c5ac, v{v}")
    rnd1(v, t)
    a(f"v_sqrt_f32 v{v}, v{v}")
    rnd1(v, t)

def rcp_nr(dst, src, t):
    a(f"v_rcp_f32 v{dst}, v{src}")
    a(f"v_fma_f32 v{t}, -v{src}, v{dst}, 1.0")
    a(f"v_fma_f32 v{dst}, v{t}, v{dst}, v{dst}")

def layernorm(e, t, last_pack):
    row_stats(e, t)
    rnd2(t, t+1, t+2)
    sd_of(t+1, t+2)
    rcp_nr(t+2, t+1, t+3)
    for i in range(8):
        a(f"v_sub_f32 v{e+i}, v{e+i}, v{t}")
    for i in range(0, 8, 2):
        rnd2(e+i, e+i+1, t+4+i//2)
    for i in range(8):
        a(f"v_mul_f32 v{t+4+i}, v{e+i}, v{t+2}")
    for i in range(8):
        a(f"v_fma_f32 v{e+i}, -v{t+4+i}, v{t+1}, v{e+i}")
    for i in range(8):
        a(f"v_fma_f32 v{e+i}, v{e+i}, v{t+2}, v{t+4+i}")
    for i in range(0, 8, 2):
        a(f"v_cvt_pk_bf16_f32 v{last_pack+i//2}, v{e+i}, v{e+i+1}")

def head_reduce(v, t, op):
    a(f"v_{op}_f32_dpp v{v}, v{v}, v{v} row_ror:4 {DPPM}")
    a(f"v_{op}_f32_dpp v{v}, v{v}, v{v} row_ror:8 {DPPM}")
    a(f"v_mov_b32 v{t}, v{v}")
    a(f"v_permlane16_swap_b32 v{v}, v{t}")
    a(f"v_{op}_f32 v{v}, v{v}, v{t}")
    a(f"v_mov_b32 v{t}, v{v}")
    a(f"v_permlane32_swap_b32 v{v}, v{t}")
    a(f"v_{op}_f32 v{v}, v{v}, v{t}")

def trA_addr(v, rowbytes, t):
    a(f"v_bfe_u32 v{v}, v0, 2, 2")
    a(f"v_lshl_add_u32 v{v}, v{vG}, 3, v{v}")
    a(f"v_mul_u32_u24 v{v}, {rowbytes}, v{v}")
    a(f"v_and_b32 v{t}, 3, v0")
    a(f"v_lshl_add_u32 v{v}, v{t}, 3, v{v}")
def B_addr(v, base, stride, t):
    a(f"v_and_b32 v{t}, 7, v0")
    a(f"v_mul_u32_u24 v{v}, {stride}, v{t}")
    a(f"v_lshl_add_u32 v{v}, v{vG}, 4, v{v}")
    a(f"v_add_u32 v{v}, {base}, v{v}")

def zflag_wait(vt):
    L = a.newlabel("ZF")
    a(f"v_and_b32 v{vt}, 7, v0")
    a(f"v_lshlrev_b32 v{vt}, 3, v{vt}")
    a(f"s_mov_b32 s60, {WS_ZF}")
    a.label(L)
    a(f"buffer_load_dword v{vt+1}, v{vt}, {R('ws')}, s60 offen sc1")
    budget()
    a("s_waitcnt vmcnt(0)")
    a(f"v_cmp_eq_u32 vcc, s{sTAG}, v{vt+1}")
    a("s_cmp_eq_u64 vcc, -1")
    a(f"s_cbranch_scc0 {L}")

def masked_gather(n, load, tags, consume, sleep):
    L = a.newlabel("MG")
    a(f"s_mov_b32 s62, {(1 << n) - 1}")
    a.label(L)
    for i in range(n):
        a(f"s_bitcmp1_b32 s62, {i}")
        a(f"s_cbranch_scc0 {L}_l{i}")
        load(i)
        a.label(f"{L}_l{i}")
    budget()
    a("s_waitcnt vmcnt(0)")
    for i in range(n):
        a(f"s_bitcmp1_b32 s62, {i}")
        a(f"s_cbranch_scc0 {L}_c{i}")
        t = tags(i)
        a(f"v_cmp_eq_u32 vcc, s{sTAG}, v{t[0]}")
        if len(t) > 1:
            a(f"v_cmp_eq_u32 s[56:57], s{sTAG}, v{t[1]}")
            a("s_and_b64 vcc, vcc, s[56:57]")
        a("s_cmp_eq_u64 vcc, -1")
        a(f"s_cbranch_scc0 {L}_c{i}")
        consume(i)
        a(f"s_bitset0_b32 s62, {i}")
        a.label(f"{L}_c{i}")
    a("s_cmp_eq_u32 s62, 0")
    a(f"s_cbranch_scc1 {L}_ok")
    if sleep: a(f"s_sleep {sleep}")
    a(f"s_branch {L}")
    a.label(f"{L}_ok")

def capture(fn):
    save = a.items; a.items = []
    fn()
    got = a.items; a.items = save
    return got

def dma(n, voff, srdname, soff, sstep, mstep=1024, pol=None):
    if pol is None: pol = NT
    for i in range(n):
        v = voff(i) if callable(voff) else voff
        a(f"buffer_load_dwordx4 v{v}, {R(srdname)}, s{soff} offen {pol} lds")
        if i < n-1:
            ms = mstep(i) if callable(mstep) else mstep
            ss = sstep(i) if callable(sstep) else sstep
            a(f"s_add_u32 m0, m0, {ms}")
            a(f"s_add_u32 s{soff}, s{soff}, {ss}")

vLANE, vZ, vG, vC, vSC, vONE = 0, 1, 2, 3, 4, 5
vFL = 7
vX = 8
vL16 = 12
vA1 = 64
vA2 = 128
vB1, vCS = 192, 196
vYR, vH1W, vH1R, vSTO, vABR, vGC = 232, 233, 234, 235, 236, 237


def tr_swz_addr(dst, rowbytes, slot_s, slot_add, t0, t1, base_s=None, base_imm=0):
    a(f"v_bfe_u32 v{t0}, v0, 2, 2")
    if rowbytes == 128:
        a(f"v_lshrrev_b32 v{t1}, 1, v{t0}")
        a(f"v_and_b32 v{dst}, 1, v{vG}")
        a(f"v_lshl_add_u32 v{t1}, v{dst}, 1, v{t1}")
    else:
        a(f"v_and_b32 v{t1}, 1, v{vG}")
        a(f"v_lshl_add_u32 v{t1}, v{t1}, 2, v{t0}")
    a(f"v_lshlrev_b32 v{t1}, 1, v{t1}")
    a(f"v_bfe_u32 v{dst}, v0, 1, 1")
    a(f"v_xor_b32 v{t1}, v{t1}, v{dst}")
    a(f"v_xor_b32 v{t1}, s{slot_s}, v{t1}")
    if slot_add: a(f"v_xor_b32 v{t1}, {slot_add*2}, v{t1}")
    a(f"v_lshl_add_u32 v{t0}, v{vG}, 3, v{t0}")
    a(f"v_mul_u32_u24 v{t0}, {rowbytes}, v{t0}")
    a(f"v_lshl_add_u32 v{t0}, v{t1}, 4, v{t0}")
    a(f"v_and_b32 v{t1}, 1, v0")
    a(f"v_lshl_add_u32 v{dst}, v{t1}, 3, v{t0}")
    if base_imm: a(f"v_add_u32 v{dst}, {base_imm}, v{dst}")

def src128(dst, stride, t):
    a(f"v_lshrrev_b32 v{dst}, 3, v0")
    a(f"v_mul_u32_u24 v{dst}, {stride}, v{dst}") if stride < (1 << 24) else None
    a(f"v_bfe_u32 v{t}, v0, 4, 1")
    a(f"v_lshlrev_b32 v{t}, 1, v{t}")
    a(f"v_and_b32 v{dst+1}, 7, v0")
    a(f"v_xor_b32 v{t}, v{t}, v{dst+1}")
    a(f"v_xor_b32 v{dst+1}, 4, v{t}")
    a(f"v_lshl_add_u32 v{dst+1}, v{dst+1}, 4, v{dst}")
    a(f"v_lshl_add_u32 v{dst}, v{t}, 4, v{dst}")
vWO = 200
if STAMPS:
    a("s_memrealtime s[92:93]")
a("s_cmp_ge_u32 s2, 256")
a("s_cbranch_scc1 L_END")
a("s_load_dwordx16 s[64:79], s[0:1], 0")
a("s_load_dwordx2 s[88:89], s[0:1], 96")
a("s_load_dwordx8 s[80:87], s[0:1], 64")
a("v_lshrrev_b32 v1, 6, v0")
a("v_and_b32 v0, 63, v0")
a(f"v_readfirstlane_b32 s{sW}, v1")
a(f"v_mov_b32 v{vZ}, 0")
a(f"v_lshrrev_b32 v{vG}, 4, v0")
a(f"v_and_b32 v{vC}, 15, v0")
a(f"v_mov_b32 v{vSC}, {SC}")
a(f"v_mov_b32 v{vONE}, 1")
a(f"s_and_b32 s{sHKV}, s2, 7")
a(f"s_lshr_b32 s{sB}, s2, 5")
a(f"s_bfe_u32 s{sS}, s2, 0x20003")
a(f"s_mov_b32 s{sBUD}, 400000")
a(f"s_and_b32 s{sAW}, s{sW}, 3")
a(f"s_lshl_b32 s60, s{sAW}, 2")
a(f"v_add_u32 v{vFL}, s60, v{vSC}")
a(f"v_lshlrev_b32 v{vL16}, 4, v0")
a(f"v_mov_b32 v{vSTO}, 0")
a(f"s_lshl_b32 s58, s{sB}, 3")
a(f"s_add_u32 s58, s58, s{sHKV}")
a("s_mov_b32 s63, s58")
a("s_lshl_b32 s58, s58, 20")
a(f"s_lshl_b32 s59, s{sS}, 16")
a("s_add_u32 s58, s58, s59")
a("s_add_u32 s58, s58, 786432")
for nm in ("ws", "x", "k", "wq"):
    a(f"s_mov_b32 s{SRD[nm]+2}, {SIZES[nm]}")
    a(f"s_mov_b32 s{SRD[nm]+3}, 0x20000")
def srd_lo(name):
    d = SRD[name]; p = PTR[name]
    a(f"s_mov_b32 s{d}, s{p}")
    a(f"s_and_b32 s{d+1}, s{p+1}, 0xffff")
if STAMPS:
    for i in range(12): a(f"v_mov_b32 v{240+i}, 0")
a(f"s_cmp_ge_u32 s{sW}, 4")
a("s_cbranch_scc1 L_VW")

a("s_setprio 2")
a(f"s_lshl_b32 s61, s{sW}, 10")
if WOFILL:
    a(f"s_cmp_lt_u32 s{sS}, 2")
    a("s_cbranch_scc1 L_K_WOF")
a(f"s_lshl_b32 s60, s{sW}, 14")
a("s_add_u32 s59, s60, s58")
a(f"s_add_u32 m0, s60, {L_K}")
for j in range(4):
    a(f"v_xor_b32 v{16+j}, {j*4}, v{vG}")
    a(f"v_xor_b32 v{16+j}, v{16+j}, v{vC}")
    a(f"v_lshlrev_b32 v{16+j}, 4, v{16+j}")
    a(f"v_lshl_add_u32 v{16+j}, v{vG}, 8, v{16+j}")
a("s_waitcnt lgkmcnt(0)")
srd_lo("k")
a("s_barrier")
dma(NK1, lambda i: 16 + (i & 3), "k", 59, 1024)
a("s_branch L_K_MAIN")
if WOFILL:
    a.label("L_K_WOF")
    a(f"s_lshl_b32 s62, s{sB}, 1")
    a(f"s_add_u32 s62, s62, s{sS}")
    a("s_lshr_b32 s59, s62, 2")
    a("s_and_b32 s60, s62, 3")
    a(f"s_lshl_b32 s62, s{sHKV}, 2")
    a("s_add_u32 s60, s60, s62")
    a("s_lshl_b32 s60, s60, 17")
    a("s_lshl_b32 s59, s59, 8")
    a("s_add_u32 s59, s59, s60")
    a(f"s_lshl_b32 s60, s{sW}, 15")
    a("s_add_u32 s59, s59, s60")
    a(f"s_lshl_b32 m0, s{sW}, 13")
    a(f"v_lshlrev_b32 v16, 1, v{vG}")
    a(f"v_xor_b32 v16, v16, v{vC}")
    a("v_xor_b32 v17, 8, v16")
    a("v_lshlrev_b32 v16, 4, v16")
    a("v_lshlrev_b32 v17, 4, v17")
    a(f"v_lshl_add_u32 v16, v{vG}, 10, v16")
    a(f"v_lshl_add_u32 v17, v{vG}, 10, v17")
    a("s_waitcnt lgkmcnt(0)")
    a(f"s_mov_b32 s{SRD['wq']}, s{PTR['wo']}")
    a(f"s_and_b32 s{SRD['wq']+1}, s{PTR['wo']+1}, 0xffff")
    a("s_barrier")
    dma(8, lambda i: 16 + ((i >> 1) & 1), "wq", 59, 4096)
    a("s_branch L_K_MAIN")

a.label("L_VW")
a("s_setprio 3")
a(f"s_cmp_lg_u32 s{sAW}, 0")
a("s_cbranch_scc1 L_V_NZ")
a(f"v_lshl_add_u32 v13, v0, 2, v{vSC}")
a("v_mov_b32 v14, 1.0")
a(f"v_cmp_eq_u32 vcc, {(C_ONE-SC)//4}, v0")
a("v_cndmask_b32 v14, 0, v14, vcc")
a("ds_write_b32 v13, v14")
a(f"ds_write_b32 v13, v{vZ} offset:256")
a(f"ds_write_b32 v13, v{vZ} offset:512")
a.label("L_V_NZ")
a(f"s_lshl_b32 s60, s{sAW}, 12")
a(f"s_add_u32 m0, s60, {L_WQ}")
a(f"s_lshl_b32 s59, s{sHKV}, 10")
a(f"s_lshl_b32 s60, s{sB}, 7")
a("s_add_u32 s59, s59, s60")
a(f"s_lshl_b32 s60, s{sS}, 20")
a("s_add_u32 s59, s59, s60")
a(f"s_lshl_b32 s60, s{sAW}, 18")
a("s_add_u32 s59, s59, s60")
src128(74, 8192, 14)
a("v_lshrrev_b32 v15, 5, v0")
a("v_lshlrev_b32 v15, 10, v15")
a("v_and_b32 v14, 31, v0")
a("v_lshl_add_u32 v15, v14, 3, v15")
a(f"s_lshl_b32 s60, s{sS}, 8")
a("v_add_u32 v15, s60, v15")
a(f"s_lshl_b32 s60, s{sAW}, 11")
a(f"s_lshl_b32 s61, s{sW}, 10")
a("s_waitcnt lgkmcnt(0)")
srd_lo("x"); srd_lo("wq")
a(f"buffer_load_dwordx4 v[16:19], v{vL16}, {R('x')}, s60 offen")
a(f"buffer_load_dwordx4 v[20:23], v{vL16}, {R('x')}, s60 offen offset:1024")
a(f"buffer_load_dwordx2 v[64:65], v15, {R('x')}, s60 offen")
dma(4, lambda i: 74 + (i & 1), "wq", 59, 65536)
srd_lo("ws")
a(f"buffer_load_dword v6, v{vZ}, {R('ws')}, 0 offen sc1")
a("s_barrier")
if STAMPS:
    a("v_mov_b32 v240, s92")
a(f"s_mul_i32 s60, s{sAW}, {2*Y_STR}")
a(f"s_add_u32 s60, s60, {L_Y}")
a("v_lshrrev_b32 v15, 5, v0")
a(f"v_mul_u32_u24 v15, {Y_STR}, v15")
a("v_and_b32 v14, 31, v0")
a("v_lshl_add_u32 v15, v14, 3, v15")
a("v_add_u32 v15, s60, v15")
a("s_mov_b32 s98, 0"); a("s_mov_b32 s99, -1")
a(f"s_lshl_b32 s60, s{sAW}, 1")
tr_swz_addr(70, 128, 60, 0, 14, 24, base_imm=L_WQ)
B_addr(71, L_Y, Y_STR, 14)
a("v_and_b32 v72, 7, v0")
a("v_lshlrev_b32 v72, 17, v72")
a(f"v_lshl_add_u32 v72, v{vG}, 5, v72")
a("v_bfe_u32 v14, v0, 3, 1")
a("v_lshl_add_u32 v72, v14, 4, v72")
a(f"s_lshl_b32 s62, s{sHKV}, 2")
a(f"s_add_u32 s62, s62, s{sS}")
a("s_lshl_b32 s62, s62, 12")
a(f"s_lshl_b32 s60, s{sB}, 9")
a("s_add_u32 s62, s62, s60")
a(f"s_lshl_b32 s60, s{sAW}, 7")
a("s_add_u32 s62, s62, s60")
a(f"s_add_u32 s62, s62, {WS_QP}")
a("s_mov_b32 s100, 0xff00ff00"); a("s_mov_b32 s101, 0xff00ff00")
a("s_waitcnt vmcnt(6)")
def st0():
    for i in range(4): unpack(16+i, 24+2*i, 25+2*i)
    row_stats(24, 40, 55)
def st1():
    for i in range(4): unpack(20+i, 32+2*i, 33+2*i)
    row_stats(32, 52, 94)
A_, B_ = capture(st0), capture(st1)
for x_, y_ in zip(A_, B_):
    a.items += [x_, y_]
a("v_cndmask_b32 v40, v40, v52, s[98:99]")
a("v_cndmask_b32 v41, v41, v53, s[98:99]")
rnd2(40, 41, 42)
sd_of(41, 42)
rcp_nr(42, 41, 43)
a("s_waitcnt vmcnt(5)")
unpack(64, 66, 67); unpack(65, 68, 69)
for i in range(4):
    a(f"v_sub_f32 v{66+i}, v{66+i}, v40")
rnd2(66, 67, 44); rnd2(68, 69, 45)
for i in range(4):
    a(f"v_mul_f32 v{44+i}, v{66+i}, v42")
for i in range(4):
    a(f"v_fma_f32 v{66+i}, -v{44+i}, v41, v{66+i}")
for i in range(4):
    a(f"v_fma_f32 v{66+i}, v{66+i}, v42, v{44+i}")
a("v_cvt_pk_bf16_f32 v44, v66, v67")
a("v_cvt_pk_bf16_f32 v45, v68, v69")
a("ds_write_b64 v15, v[44:45]")
a("s_waitcnt vmcnt(1)")
set_flag(F_LN1)
a("s_waitcnt vmcnt(0)")
a("v_add_u32 v53, 1, v6")
a("v_add_u32 v55, 1, v6")
a(f"v_readfirstlane_b32 s{sTAG}, v53")
stamp(1)
lds_wait4(F_LN1, 16)
for kk in range(4):
    a(f"ds_read_b128 v[{16+kk*4}:{19+kk*4}], v71 offset:{kk*64}")
    for hh in range(2):
        a(f"ds_read_b64_tr_b16 v[{32+kk*4+hh*2}:{33+kk*4+hh*2}], v70 offset:{kk*4096+hh*512}")
for kk in range(4):
    a(f"s_waitcnt lgkmcnt({(3-kk)*3})")
    c = "0" if kk == 0 else "v[56:59]"
    a(f"v_mfma_f32_16x16x32_bf16 v[56:59], v[{32+kk*4}:{35+kk*4}], v[{16+kk*4}:{19+kk*4}], {c}")
a(f"ds_write_b32 v{vSC}, v53 offset:{F_TAG-SC}")
a("v_cndmask_b32 v52, v56, v58, s[100:101]")
a("v_cndmask_b32 v54, v57, v59, s[100:101]")
a(f"buffer_store_dwordx4 v[52:55], v72, {R('ws')}, s62 offen sc1")
a("s_lshl_b32 s59, s63, 14")
a(f"s_lshl_b32 s60, s{sAW}, 10")
a("s_add_u32 s59, s59, s60")
a(f"s_add_u32 s64, s59, {WS_QP}")
for i in range(1, 4): a(f"s_add_u32 s{64+i}, s{63+i}, 4096")
a(f"s_lshl_b32 s60, s{sAW}, 8")
a(f"s_add_u32 s60, s60, {L_QL}")
a("v_lshl_add_u32 v73, v0, 2, s60")
if QACK: a("s_waitcnt vmcnt(0)")
set_flag(F_Q)
stamp(2)
lds_wait4(F_Q, 16)
a(f"s_sleep {SL_Q}")
a.label("L_QG")
for i in range(4):
    a(f"buffer_load_dwordx4 v[{32+i*4}:{35+i*4}], v{vL16}, {R('ws')}, s{64+i} offen sc1")
set_flag(F_GI)
budget()
a("s_waitcnt vmcnt(0)")
a(f"v_cmp_eq_u32 s[56:57], s{sTAG}, v33")
for r in (3, 5, 7, 9, 11, 13, 15):
    a(f"v_cmp_eq_u32 vcc, s{sTAG}, v{32+r}")
    a("s_and_b64 s[56:57], s[56:57], vcc")
a("s_cmp_eq_u64 s[56:57], -1")
a("s_cbranch_scc0 L_QG")
a("v_add_f32 v48, v32, v36")
a("v_add_f32 v49, v34, v38")
a("v_add_f32 v50, v40, v44")
a("v_add_f32 v51, v42, v46")
a("v_pk_add_f32 v[48:49], v[48:49], v[50:51]")
a("v_cvt_pk_bf16_f32 v48, v48, v49")
a("ds_write_b32 v73, v48")
a("v_mov_b32 v14, 2")
set_flag(F_Q, 14)
stamp(5)
a("s_setprio 1")
a(f"buffer_load_dwordx4 v[{vX}:{vX+3}], v{vL16}, {R('x')}, s61 offen")
srd("v")
a(f"s_and_b32 s60, s{sAW}, 1")
a("s_lshl_b32 s60, s60, 3")
a(f"v_lshlrev_b32 v13, 1, v{vG}")
a("v_or_b32 v13, s60, v13")
a(f"v_xor_b32 v13, v13, v{vC}")
a("v_lshlrev_b32 v13, 4, v13")
a(f"v_lshl_add_u32 v13, v{vG}, 8, v13")
a(f"s_lshl_b32 s60, s{sAW}, 11")
a(f"s_add_u32 s60, s60, {NVK*8192}")
a("s_add_u32 s59, s58, s60")
a(f"s_add_u32 m0, s60, {L_V}")
if WOFILL:
    a(f"s_cmp_ge_u32 s{sS}, 2")
    a("s_cbranch_scc1 L_V_NOWOR")
    a(f"s_lshl_b32 s60, s{sAW}, 2")
    tr_swz_addr(70, 256, 60, 0, 14, 16)
    tr_swz_addr(71, 256, 60, 1, 14, 16)
    lds_wait4(F_W, 16, sleep=1)
    for nt_ in range(2):
        for kk in range(4):
            for hh in range(2):
                r = vWO + (nt_*4+kk)*4 + hh*2
                a(f"ds_read_b64_tr_b16 v[{r}:{r+1}], v{70+nt_} offset:{kk*8192 + hh*1024}")
        a("s_waitcnt lgkmcnt(0)")
    set_flag(F_WR)
    lds_wait4(F_WR, 16)
    a.label("L_V_NOWOR")
a(f"s_cmp_lg_u32 s{sW}, 5")
a("s_cbranch_scc1 L_V_NOZ")
a("s_and_b32 s60, s2, 31")
a("s_cmp_lg_u32 s60, 24")
a("s_cbranch_scc1 L_V_NOZ")
for i in range(4): a(f"v_mov_b32 v{16+i}, 0")
a(f"s_mul_i32 s60, s{sB}, 3072")
a(f"s_add_u32 s60, s60, {WS_HACC}")
for j in range(3):
    a(f"buffer_store_dwordx4 v[16:19], v{vL16}, {R('ws')}, s60 offen offset:{j*1024} sc1")
a(f"s_lshl_b32 s60, s{sB}, 3")
a(f"s_add_u32 s60, s60, {WS_ZF}")
a("s_waitcnt vmcnt(0)")
a("s_mov_b64 exec, 1")
a(f"buffer_store_dword v53, v{vZ}, {R('ws')}, s60 offen sc1")
a("s_mov_b64 exec, -1")
a.label("L_V_NOZ")
step = lambda i: 1024 if i % 2 == 0 else 7168
lds_wait4(F_KI, 16, sleep=1)
dma(16-2*NVK, 13, "v", 59, step, step)
stamp(3)
vPR, vOPA, vTR = 120, 121, 122
a("v_and_b32 v15, 3, v0")
a(f"v_mul_u32_u24 v{vPR}, {P_STR}, v15")
a(f"v_add_u32 v{vPR}, {L_P}, v{vPR}")
a(f"v_lshl_add_u32 v{vPR}, v{vG}, 4, v{vPR}")
a(f"s_lshl_b32 s60, s{sHKV}, 2")
a(f"v_add_u32 v{vOPA}, s60, v15")
a("s_lshr_b32 s60, s2, 3")
a(f"v_lshlrev_b32 v{vOPA}, 5, v{vOPA}")
a(f"v_add_u32 v{vOPA}, s60, v{vOPA}")
a(f"v_lshlrev_b32 v{vOPA}, 10, v{vOPA}")
a("v_bfe_u32 v15, v0, 3, 1")
a(f"v_lshl_add_u32 v{vOPA}, v15, 7, v{vOPA}")
a(f"v_lshl_add_u32 v{vOPA}, v{vG}, 5, v{vOPA}")
a("v_bfe_u32 v15, v0, 2, 1")
a(f"v_lshl_add_u32 v{vOPA}, v15, 4, v{vOPA}")
a("v_bfe_u32 v14, v0, 2, 2")
a(f"v_and_b32 v15, 1, v{vG}")
a("v_lshl_add_u32 v15, v15, 2, v14")
a("v_lshlrev_b32 v15, 1, v15")
a("v_bfe_u32 v16, v0, 1, 1")
a("v_xor_b32 v15, v15, v16")
a(f"v_lshl_add_u32 v14, v{vG}, 3, v14")
a("v_lshlrev_b32 v14, 8, v14")
a("v_and_b32 v16, 1, v0")
a("v_lshl_add_u32 v14, v16, 3, v14")
for dt in range(2):
    a(f"s_lshl_b32 s60, s{sAW}, 2")
    if dt: a("s_add_u32 s60, s60, 2")
    a("v_xor_b32 v16, s60, v15")
    a(f"v_lshl_add_u32 v{vTR+dt}, v16, 4, v14")
a("s_mov_b32 s94, 0x00f000f0"); a("s_mov_b32 s95, 0x00f000f0")
a("s_mov_b32 s96, 0x0f000f00"); a("s_mov_b32 s97, 0x0f000f00")
a("s_mov_b32 s98, 0xf000f000"); a("s_mov_b32 s99, 0xf000f000")
a(f"s_lshl_b32 s60, s{sAW}, 8")
a(f"s_add_u32 s60, s60, {WS_OP}")
a(f"v_mov_b32 v105, s{sTAG}")
a(f"v_mov_b32 v107, s{sTAG}")
a(f"s_lshl_b32 s61, s{sHKV}, 5")
a("s_lshr_b32 s62, s2, 3")
a("s_add_u32 s61, s61, s62")
a("s_lshl_b32 s61, s61, 7")
a(f"s_add_u32 s61, s61, {WS_OF}")
a(f"s_lshl_b32 s62, s{sAW}, 15")
a("s_add_u32 s61, s61, s62")
lds_wait4(F_B, 16, sleep=1)
vP = 16
for kk in range(8):
    a(f"ds_read_b128 v[{vP+kk*4}:{vP+kk*4+3}], v{vPR} offset:{kk*64}")
stamp(9)
vA = 48
vO = 96
def pv_reads(kk):
    base = vA + (kk % 6)*8
    for dt in range(2):
        for hh in range(2):
            r = base + dt*4 + hh*2
            a(f"ds_read_b64_tr_b16 v[{r}:{r+1}], v{vTR+dt} offset:{kk*8192 + hh*1024}")
def pv_mfma(kk, dt):
    base = vA + (kk % 6)*8
    c = "0" if kk == 0 else f"v[{vO+dt*4}:{vO+dt*4+3}]"
    a(f"v_mfma_f32_16x16x32_bf16 v[{vO+dt*4}:{vO+dt*4+3}], v[{base+dt*4}:{base+dt*4+3}], v[{vP+kk*4}:{vP+kk*4+3}], {c}")
extra = 0
for gi, grp in enumerate((list(range(NVK)), list(range(NVK, 7)), [7])):
    last = grp[-1]
    if gi == 0:
        lds_wait4(F_VK, 108)
    else:
        a(f"v_mov_b32 v14, {last+1}")
        a(f"s_waitcnt vmcnt({14-2*last+extra})")
        set_flag(F_V, 14)
        lds_wait4(F_V, 108, minval=last+1)
    if E1F and gi == E1F:
        a("s_mov_b64 exec, 1")
        a(f"buffer_store_dword v105, v{vZ}, {R('ws')}, s61 offen sc1")
        a("s_mov_b64 exec, -1")
        extra = 1
    pend = list(grp)
    issued = []
    for kk in pend[:3]:
        pv_reads(kk); issued.append(kk)
    for idx, kk in enumerate(pend):
        after = len(issued) - 1 - idx
        for dt in range(2):
            a(f"s_waitcnt lgkmcnt({after*4 + 2 - 2*dt})")
            pv_mfma(kk, dt)
        if idx + 3 < len(pend):
            pv_reads(pend[idx+3]); issued.append(pend[idx+3])
a("v_mov_b32 v14, 9")
a(f"v_cndmask_b32 v104, v{vO}, v{vO+2}, s[94:95]")
a(f"v_cndmask_b32 v106, v{vO+1}, v{vO+3}, s[94:95]")
a(f"v_cndmask_b32 v104, v104, v{vO+4}, s[96:97]")
a(f"v_cndmask_b32 v106, v106, v{vO+5}, s[96:97]")
a(f"v_cndmask_b32 v104, v104, v{vO+6}, s[98:99]")
a(f"v_cndmask_b32 v106, v106, v{vO+7}, s[98:99]")
a(f"buffer_store_dwordx4 v[104:107], v{vOPA}, {R('ws')}, s60 offen sc1")
stamp(4)
a(f"s_cmp_ge_u32 s{sS}, 2")
a("s_cbranch_scc1 L_V_NOTWO")

a(f"s_lshl_b32 s58, s{sB}, 1")
a(f"s_add_u32 s58, s58, s{sS}")
a("s_lshl_b32 s64, s58, 3")
a(f"s_add_u32 s64, s64, s{sHKV}")
a("s_lshl_b32 s64, s64, 7")
a(f"s_add_u32 s64, s64, {WS_FL}")
a("s_lshr_b32 s63, s58, 2")
a("s_lshl_b32 s63, s63, 2")
a(f"s_add_u32 s63, s63, s{sAW}")
a("s_waitcnt vmcnt(0)")
set_flag(F_V, 14)
B_addr(14, L_OL, OL_STR, 15)
a(f"s_mul_i32 s60, s{sAW}, {8*RL_STR}")
a(f"s_add_u32 s60, s60, {L_RL}")
a("v_and_b32 v15, 7, v0")
a(f"v_mul_u32_u24 v15, {RL_STR}, v15")
a("v_bfe_u32 v16, v0, 3, 1")
a("v_lshl_add_u32 v15, v16, 6, v15")
a(f"v_lshl_add_u32 v15, v{vG}, 4, v15")
a("v_add_u32 v15, s60, v15")
a("v_bfe_u32 v16, v0, 2, 2")
a("v_and_b32 v17, 3, v0")
a(f"v_mul_u32_u24 v18, {RL_STR}, v{vG}")
a("v_lshl_add_u32 v18, v16, 5, v18")
a("v_lshl_add_u32 v18, v17, 2, v18")
a("v_add_u32 v18, s60, v18")
a(f"v_mov_b32 v19, {C_ONE}")
a(f"v_mov_b32 v20, {C_ZERO}")
a("v_cmp_eq_u32 s[56:57], 3, v17")
a("v_cmp_eq_u32 s[58:59], 2, v17")
for j in range(3):
    for bh in range(2):
        r = 24 + j*2 + bh
        a(f"v_add_u32 v{r}, {j*12 + bh*4*RL_STR}, v18")
        a(f"v_cndmask_b32 v{r}, v{r}, v19, s[56:57]")
        if j == 2:
            a(f"v_cndmask_b32 v{r}, v{r}, v20, s[58:59]")
a(f"v_mul_u32_u24 v21, 3072, v{vG}")
a("v_and_b32 v22, 15, v0")
a("v_lshl_add_u32 v21, v22, 2, v21")
a("s_lshl_b32 s63, s63, 6")
a(f"s_add_u32 s63, s63, {WS_HACC}")
a("s_add_u32 s61, s63, 12288")
vA = vWO
if not WOFILL:
    a(f"s_lshl_b32 s60, s{sAW}, 2")
    tr_swz_addr(70, 256, 60, 0, 30, 31, base_imm=L_K)
    tr_swz_addr(71, 256, 60, 1, 30, 31, base_imm=L_K)
    lds_wait4(F_W, 32)
    for nt_ in range(2):
        for kk in range(4):
            for hh in range(2):
                r = vWO + (nt_*4+kk)*4 + hh*2
                a(f"ds_read_b64_tr_b16 v[{r}:{r+1}], v{70+nt_} offset:{kk*8192 + hh*1024}")
        a("s_waitcnt lgkmcnt(0)")
stamp(10)
lds_wait4(F_C, 64)
stamp(5)
vB = 64
for kk in range(4):
    a(f"ds_read_b128 v[{vB+kk*4}:{vB+kk*4+3}], v14 offset:{kk*64}")
for kk in range(4):
    a(f"s_waitcnt lgkmcnt({3-kk})")
    for nt_ in range(2):
        c = "0" if kk == 0 else f"v[{80+nt_*4}:{83+nt_*4}]"
        r = vA + (nt_*4+kk)*4
        a(f"v_mfma_f32_16x16x32_bf16 v[{80+nt_*4}:{83+nt_*4}], v[{r}:{r+3}], v[{vB+kk*4}:{vB+kk*4+3}], {c}")
for i in range(4):
    a(f"v_cndmask_b32 v{88+i}, v{80+i}, v{84+i}, s[100:101]")
a("ds_write_b128 v15, v[88:91]")
for r in range(6):
    a(f"ds_read_b32 v{92+r}, v{24+r}")
for j in range(3):
    for bh in range(2):
        r = j*2 + bh
        a(f"s_waitcnt lgkmcnt({5-r})")
        a(f"buffer_atomic_add_f32 v{92+r}, v21, {R('ws')}, {'s63' if bh == 0 else 's61'} offen offset:{j*1024}")
a(f"s_cmp_lg_u32 s{sAW}, {99 if FLEARLY else 3}")
a("s_cbranch_scc1 L_V_NOFL")
a("s_mov_b64 exec, 1")
a(f"buffer_store_dword v105, v{vZ}, {R('ws')}, s64 offen sc1")
a("s_mov_b64 exec, -1")
a.label("L_V_NOFL")
stamp(6)
if STAMPS == 1:
    a("s_waitcnt vmcnt(0)")
    stamp(7)
a("s_branch L_FIN")


a.label("L_K_MAIN")
if STAMPS:
    a("v_mov_b32 v240, s92")
srd_lo("k"); srd_lo("x"); srd_lo("ws"); srd("v")
a(f"buffer_load_dwordx4 v[{vX}:{vX+3}], v{vL16}, {R('x')}, s61 offen")
if CODEPF:
    a("s_getpc_b64 s[68:69]")
    a.label("L_PCREF")
    a("s_sub_u32 s68, s68, L_PCREF-L_VW")
    a("s_subb_u32 s69, s69, 0")
    a("s_and_b32 s68, s68, 0xfffffff0")
    a("s_lshr_b32 s60, s2, 3")
    a("s_lshl_b32 s60, s60, 2")
    a(f"s_add_u32 s60, s60, s{sW}")
    a(f"s_cmp_ge_u32 s60, CODE_KB")
    a("s_cbranch_scc1 L_K_NOCP")
    a("s_lshl_b32 s60, s60, 10")
    a(f"v_add_u32 v14, s60, v{vL16}")
    a("global_load_dwordx4 v[20:23], v14, s[68:69]")
    a.label("L_K_NOCP")
vQA, vMXA, vMXW, vPW, vSTA, vQW = 120, 121, 122, 123, 124, 125
vKR = 126
a("v_and_b32 v15, 3, v0")
a(f"v_lshlrev_b32 v{vQA}, 8, v15")
a(f"v_lshl_add_u32 v{vQA}, v{vG}, 4, v{vQA}")
a(f"v_add_u32 v{vQA}, {L_QL}, v{vQA}")
a(f"v_lshl_add_u32 v{vMXA}, v15, 4, v{vSC}")
a(f"s_lshl_b32 s60, s{sW}, 2")
a(f"v_add_u32 v{vMXW}, s60, v{vMXA}")
a(f"v_mul_u32_u24 v14, {P_STR}, v15")
a(f"v_add_u32 v14, {L_P}, v14")
a(f"v_bfe_u32 v{vPW}, v0, 2, 2")
a(f"v_lshlrev_b32 v{vPW}, 5, v{vPW}")
a(f"v_lshl_add_u32 v{vPW}, v{vG}, 3, v{vPW}")
a(f"s_lshl_b32 s60, s{sW}, 7")
a(f"v_add3_u32 v{vPW}, v{vPW}, s60, v14")
a(f"s_lshl_b32 s60, s{sHKV}, 2")
a(f"v_add_u32 v{vSTA}, s60, v15")
a("s_lshr_b32 s60, s2, 3")
a(f"v_lshlrev_b32 v{vSTA}, 5, v{vSTA}")
a(f"v_add_u32 v{vSTA}, s60, v{vSTA}")
a(f"v_lshlrev_b32 v{vSTA}, 4, v{vSTA}")
a(f"s_lshl_b32 s60, s{sW}, 8")
a(f"s_add_u32 s60, s60, {L_QL}")
a(f"v_lshl_add_u32 v{vQW}, v0, 2, s60")
a(f"s_lshl_b32 s60, s{sW}, 14")
a(f"s_add_u32 s60, s60, {L_K}")
for kk in range(4):
    a(f"v_xor_b32 v{vKR+kk}, {kk*4}, v{vG}")
    a(f"v_xor_b32 v{vKR+kk}, v{vKR+kk}, v{vC}")
    a(f"v_lshlrev_b32 v{vKR+kk}, 4, v{vKR+kk}")
    a(f"v_lshl_add_u32 v{vKR+kk}, v{vC}, 8, v{vKR+kk}")
    a(f"v_add_u32 v{vKR+kk}, s60, v{vKR+kk}")
a("s_mov_b32 s94, 0x00f000f0"); a("s_mov_b32 s95, 0x00f000f0")
a("s_mov_b32 s96, 0x0f000f00"); a("s_mov_b32 s97, 0x0f000f00")
a("s_mov_b32 s98, 0xf000f000"); a("s_mov_b32 s99, 0xf000f000")
a("s_lshl_b32 s59, s63, 14")
a(f"s_lshl_b32 s60, s{sW}, 10")
a("s_add_u32 s59, s59, s60")
a(f"s_add_u32 s64, s59, {WS_QP}")
for i in range(1, 4): a(f"s_add_u32 s{64+i}, s{63+i}, 4096")
for j in range(4):
    a(f"v_xor_b32 v{16+j}, {j*4}, v{vG}")
    a(f"v_xor_b32 v{16+j}, v{16+j}, v{vC}")
    a(f"v_lshlrev_b32 v{16+j}, 4, v{16+j}")
    a(f"v_lshl_add_u32 v{16+j}, v{vG}, 8, v{16+j}")
a(f"s_lshl_b32 s60, s{sW}, 14")
a("s_add_u32 s68, s60, s58")
a(f"s_add_u32 m0, s60, {L_K}")
a(f"s_add_u32 s68, s68, {NK1*1024}")
a(f"s_add_u32 m0, m0, {NK1*1024}")
a(f"s_and_b32 s60, s{sW}, 1")
a("s_lshl_b32 s60, s60, 3")
a(f"v_lshlrev_b32 v13, 1, v{vG}")
a("v_or_b32 v13, s60, v13")
a(f"v_xor_b32 v13, v13, v{vC}")
a("v_lshlrev_b32 v13, 4, v13")
a(f"v_lshl_add_u32 v13, v{vG}, 8, v13")
a(f"s_lshl_b32 s61, s{sW}, 11")
a("s_add_u32 s69, s58, s61")
NTOT = 16 + 2*NVK
def stream_item(i):
    if i < 16:
        a(f"buffer_load_dwordx4 v{16 + (i & 3)}, {R('k')}, s68 offen {NT} lds")
        if i < 15:
            a("s_add_u32 m0, m0, 1024")
            a("s_add_u32 s68, s68, 1024")
        else:
            a("s_mov_b32 m0, s61")
    else:
        j = i - 16
        a(f"buffer_load_dwordx4 v13, {R('v')}, s69 offen {NT} lds")
        st_ = 1024 if j % 2 == 0 else 7168
        a(f"s_add_u32 m0, m0, {st_}")
        a(f"s_add_u32 s69, s69, {st_}")
for i in range(NK1, NTOT):
    a(f"ds_read_b128 v[24:27], v{vSC} offset:{F_GI-SC}")
    a(f"s_waitcnt vmcnt({THR}) lgkmcnt(0)")
    a("v_and_b32 v24, v24, v25")
    a("v_and_b32 v26, v26, v27")
    a("v_and_b32 v24, v24, v26")
    a("v_readfirstlane_b32 s54, v24")
    a("s_cmp_lg_u32 s54, 0")
    a(f"s_cbranch_scc1 L_KF{i}")
    stream_item(i)
a("s_branch L_KFE")
for i in range(NK1, NTOT):
    a.label(f"L_KF{i}")
    stream_item(i)
a.label("L_KFE")
set_flag(F_KI)
stamp(1)
vK = 132
lds_wait4(F_Q, 56, minval=2, sleep=1)
a(f"ds_read_b32 v14, v{vSC} offset:{F_TAG-SC}")
stamp(2)
a("s_setprio 3")
vQ = 80
for kk in range(4):
    a(f"ds_read_b128 v[{vQ+kk*4}:{vQ+kk*4+3}], v{vQA} offset:{kk*64}")
vS = 96
a("s_waitcnt lgkmcnt(4)")
a(f"v_readfirstlane_b32 s{sTAG}, v14")
for t in range(4):
    a(f"s_waitcnt vmcnt({(3-t)*4 + 2*NVK})")
    for kk in range(4):
        r = vK + (t*4+kk)*4
        a(f"ds_read_b128 v[{r}:{r+3}], v{vKR+kk} offset:{t*4096}")
    for kk in range(4):
        a(f"s_waitcnt lgkmcnt({3-kk})")
        r = vK + (t*4+kk)*4
        c = "0" if kk == 0 else f"v[{vS+t*4}:{vS+t*4+3}]"
        a(f"v_mfma_f32_16x16x32_bf16 v[{vS+t*4}:{vS+t*4+3}], v[{r}:{r+3}], v[{vQ+kk*4}:{vQ+kk*4+3}], {c}")
vE = 112
for i in range(4):
    a(f"v_cndmask_b32 v{vE+i}, v{vS+i}, v{vS+4+i}, s[94:95]")
for i in range(4):
    a(f"v_cndmask_b32 v{vE+i}, v{vE+i}, v{vS+8+i}, s[96:97]")
for i in range(4):
    a(f"v_cndmask_b32 v{vE+i}, v{vE+i}, v{vS+12+i}, s[98:99]")
rnd2(vE, vE+1, 116); rnd2(vE+2, vE+3, 117)
a(f"s_mov_b32 s55, {SCALE}")
for i in range(4):
    a(f"v_mul_f32 v{vE+i}, s55, v{vE+i}")
rnd2(vE, vE+1, 116); rnd2(vE+2, vE+3, 117)
vM, vL = 118, 119
a(f"v_max_f32 v{vM}, v{vE}, v{vE+1}")
a(f"v_max3_f32 v{vM}, v{vM}, v{vE+2}, v{vE+3}")
head_reduce(vM, 119, "max")
a(f"ds_write_b32 v{vMXW}, v{vM} offset:{L_MX-SC}")
set_flag(F_A)
lds_wait4(F_A, 56)
a(f"ds_read_b128 v[56:59], v{vMXA} offset:{L_MX-SC}")
a("s_waitcnt lgkmcnt(0)")
a(f"v_max3_f32 v{vM}, v56, v57, v58")
a(f"v_max_f32 v{vM}, v{vM}, v59")
a(f"s_mov_b32 s55, {LOG2E}")
for i in range(4):
    a(f"v_sub_f32 v{vE+i}, v{vE+i}, v{vM}")
for i in range(4):
    a(f"v_mul_f32 v{vE+i}, s55, v{vE+i}")
for i in range(4):
    a(f"v_exp_f32 v{vE+i}, v{vE+i}")
a(f"v_add_f32 v{vL}, v{vE}, v{vE+1}")
a(f"v_add_f32 v56, v{vE+2}, v{vE+3}")
a(f"v_add_f32 v{vL}, v{vL}, v56")
a(f"v_cvt_pk_bf16_f32 v116, v{vE}, v{vE+1}")
a(f"v_cvt_pk_bf16_f32 v117, v{vE+2}, v{vE+3}")
a(f"ds_write_b64 v{vPW}, v[116:117]")
head_reduce(vL, 56, "add")
a(f"ds_write_b32 v{vMXW}, v{vL} offset:{L_SUM-SC}")
set_flag(F_B)
lds_wait4(F_B, 56)
a(f"ds_read_b128 v[56:59], v{vMXA} offset:{L_SUM-SC}")
a("s_waitcnt lgkmcnt(0)")
a(f"v_add_f32 v{vL}, v56, v57")
a("v_add_f32 v58, v58, v59")
a(f"v_add_f32 v58, v{vL}, v58")
a(f"v_mov_b32 v56, v{vM}")
a(f"v_mov_b32 v57, s{sTAG}")
a(f"v_mov_b32 v59, s{sTAG}")
a(f"s_lshl_b64 s[56:57], 1, s{sW}")
a(f"s_mov_b32 s61, {WS_ST}")
a("s_mov_b64 exec, s[56:57]")
a(f"buffer_store_dwordx4 v[56:59], v{vSTA}, {R('ws')}, s61 offen sc1")
a("s_mov_b64 exec, -1")
stamp(3)
a("s_waitcnt vmcnt(1)")
set_flag(F_VK)
a("s_setprio 0")
a(f"s_cmp_ge_u32 s{sS}, 2")
a("s_cbranch_scc1 L_K_NOTWO")

if not WOFILL:
    a(f"s_lshl_b32 s62, s{sB}, 1")
    a(f"s_add_u32 s62, s62, s{sS}")
    a("s_lshr_b32 s59, s62, 2")
    a("s_and_b32 s60, s62, 3")
    a(f"s_lshl_b32 s62, s{sHKV}, 2")
    a("s_add_u32 s60, s60, s62")
    a("s_lshl_b32 s60, s60, 17")
    a("s_lshl_b32 s59, s59, 8")
    a("s_add_u32 s59, s59, s60")
    a(f"s_lshl_b32 s60, s{sW}, 15")
    a("s_add_u32 s59, s59, s60")
    a(f"s_lshl_b32 s60, s{sW}, 13")
    a(f"s_add_u32 m0, s60, {L_K}")
    a(f"v_lshlrev_b32 v16, 1, v{vG}")
    a(f"v_xor_b32 v16, v16, v{vC}")
    a("v_xor_b32 v17, 8, v16")
    a("v_lshlrev_b32 v16, 4, v16")
    a("v_lshlrev_b32 v17, 4, v17")
    a(f"v_lshl_add_u32 v16, v{vG}, 10, v16")
    a(f"v_lshl_add_u32 v17, v{vG}, 10, v17")
    a(f"s_mov_b32 s{SRD['wq']}, s{PTR['wo']}")
    a(f"s_and_b32 s{SRD['wq']+1}, s{PTR['wo']+1}, 0xffff")
    dma(8, lambda i: 16 + ((i >> 1) & 1), "wq", 59, 4096)
a(f"s_lshl_b32 s58, s{sB}, 1")
a(f"s_add_u32 s58, s58, s{sS}")
a("s_and_b32 s58, s58, 3")
a(f"s_lshl_b32 s60, s{sHKV}, 2")
a("s_add_u32 s58, s58, s60")
a("s_setprio 3")
a("s_lshl_b32 s65, s58, 9")
a(f"s_add_u32 s65, s65, {WS_ST}")
a("s_lshl_b32 s58, s58, 15")
a(f"s_lshl_b32 s60, s{sW}, 13")
a("s_add_u32 s58, s58, s60")
a(f"s_add_u32 s58, s58, {WS_OP}")
a("s_add_u32 s59, s58, 4096")
a(f"s_mul_i32 s60, s{sW}, {2*OL_STR}")
a(f"s_add_u32 s60, s60, {L_OL}")
a("v_lshl_add_u32 v13, v0, 2, s60")
a(f"s_lshl_b32 s60, s{sW}, 5")
a(f"s_add_u32 s60, s60, {L_CF}")
a("v_mov_b32 v14, s60")
for i in range(4): a(f"v_mov_b32 v{56+i}, 0")
a(f"s_cmp_lg_u32 s{sW}, 0")
a("s_cbranch_scc1 L_K_NOCF")
a("v_and_b32 v64, 31, v0")
a("v_lshlrev_b32 v65, 4, v64")
a("v_lshlrev_b32 v64, 2, v64")
a(f"v_add_u32 v64, {L_CF}, v64")
a("v_and_b32 v66, 7, v0")
a("v_lshlrev_b32 v66, 3, v66")
a(f"s_mov_b32 s60, {WS_ZF}")
Ls = a.newlabel("ST")
a.label(Ls)
a(f"buffer_load_dwordx4 v[68:71], v65, {R('ws')}, s65 offen sc1")
a(f"buffer_load_dword v67, v66, {R('ws')}, s60 offen sc1")
budget()
a("s_waitcnt vmcnt(0)")
a(f"v_cmp_eq_u32 s[56:57], s{sTAG}, v69")
a(f"v_cmp_eq_u32 vcc, s{sTAG}, v71")
a("s_and_b64 s[56:57], vcc, s[56:57]")
a(f"v_cmp_eq_u32 vcc, s{sTAG}, v67")
a("s_and_b64 vcc, vcc, s[56:57]")
a("s_cmp_eq_u64 vcc, -1")
a(f"s_cbranch_scc1 {Ls}_ok")
a("s_sleep 8")
a(f"s_branch {Ls}")
a.label(f"{Ls}_ok")
a(f"v_max_f32_dpp v72, v68, v68 quad_perm:[1,0,3,2] {DPPM}")
a(f"v_max_f32_dpp v72, v72, v72 quad_perm:[2,3,0,1] {DPPM}")
a("v_sub_f32 v72, v68, v72")
a(f"v_mul_f32 v72, {LOG2E}, v72")
a("v_exp_f32 v72, v72")
a("v_mul_f32 v73, v72, v70")
a(f"v_add_f32_dpp v73, v73, v73 quad_perm:[1,0,3,2] {DPPM}")
a(f"v_add_f32_dpp v73, v73, v73 quad_perm:[2,3,0,1] {DPPM}")
rcp_nr(74, 73, 75)
a("v_mul_f32 v72, v72, v74")
a("ds_write_b32 v64, v72")
a(f"ds_write_b32 v{vSC}, v{vONE} offset:{F_CF-SC}")
a.label("L_K_NOCF")
if not WOFILL:
    a("s_waitcnt vmcnt(0)")
    set_flag(F_W)
stamp(4)
lds_wait1(F_CF, 48)
a("ds_read_b128 v[48:51], v14")
a("ds_read_b128 v[52:55], v14 offset:16")
lds_wait4(F_V, 60, minval=(7 if E1F else 9))
if SL_E1: a(f"s_sleep {SL_E1}")
stamp(5)
vD = 16
def ld(i): a(f"buffer_load_dwordx4 v[{vD+i*4}:{vD+i*4+3}], v{vL16}, {R('ws')}, {'s58' if i < 4 else 's59'} offen offset:{(i%4)*1024} sc1")
def cons(i):
    bb = i // 4
    a(f"v_fmac_f32 v{56+bb*2}, v{48+i}, v{vD+i*4}")
    a(f"v_fmac_f32 v{57+bb*2}, v{48+i}, v{vD+i*4+2}")
if not E1F:
    masked_gather(8, ld, lambda i: [vD+i*4+1, vD+i*4+3], cons, SL_P1)
else:
    a("v_and_b32 v15, 7, v0")
    a("v_lshlrev_b32 v15, 7, v15")
    a(f"s_lshl_b32 s61, s{sHKV}, 12")
    a(f"s_lshl_b32 s60, s{sW}, 10")
    a("s_add_u32 s61, s61, s60")
    a(f"s_add_u32 s61, s61, {WS_OF}")
    a("s_mov_b32 s62, 0xff")
    a.label("L_E1")
    a(f"buffer_load_dword v60, v15, {R('ws')}, s61 offen sc1")
    budget()
    a("s_waitcnt vmcnt(0)")
    a(f"v_cmp_eq_u32 vcc, s{sTAG}, v60")
    a("s_and_b32 s60, vcc_lo, s62")
    a("s_cbranch_scc1 L_E1_GO")
    if SL_P1: a(f"s_sleep {SL_P1}")
    a("s_branch L_E1")
    a.label("L_E1_GO")
    for i in range(8):
        a(f"s_bitcmp1_b32 s60, {i}")
        a(f"s_cbranch_scc0 L_E1_l{i}")
        ld(i)
        a.label(f"L_E1_l{i}")
    a("s_waitcnt vmcnt(0)")
    for i in range(8):
        a(f"s_bitcmp1_b32 s60, {i}")
        a(f"s_cbranch_scc0 L_E1_c{i}")
        a(f"v_cmp_eq_u32 vcc, s{sTAG}, v{vD+i*4+1}")
        a(f"v_cmp_eq_u32 s[56:57], s{sTAG}, v{vD+i*4+3}")
        a("s_and_b64 vcc, vcc, s[56:57]")
        a("s_cmp_eq_u64 vcc, -1")
        a(f"s_cbranch_scc0 L_E1_c{i}")
        cons(i)
        a(f"s_bitset0_b32 s62, {i}")
        a.label(f"L_E1_c{i}")
    a("s_cmp_lg_u32 s62, 0")
    a("s_cbranch_scc1 L_E1")
a("v_cvt_pk_bf16_f32 v56, v56, v57")
a("v_cvt_pk_bf16_f32 v58, v58, v59")
a("ds_write_b32 v13, v56")
a(f"ds_write_b32 v13, v58 offset:{OL_STR}")
set_flag(F_C)
if FLEARLY:
    a(f"s_cmp_lg_u32 s{sW}, 3")
    a("s_cbranch_scc1 L_K_NOFL")
    lds_wait4(F_C, 60)
    a(f"s_lshl_b32 s60, s{sB}, 1")
    a(f"s_add_u32 s60, s60, s{sS}")
    a("s_lshl_b32 s60, s60, 3")
    a(f"s_add_u32 s60, s60, s{sHKV}")
    a("s_lshl_b32 s60, s60, 7")
    a(f"s_add_u32 s60, s60, {WS_FL}")
    a(f"v_mov_b32 v60, s{sTAG}")
    a("s_mov_b64 exec, 1")
    a(f"buffer_store_dword v60, v{vZ}, {R('ws')}, s60 offen sc1")
    a("s_mov_b64 exec, -1")
    a.label("L_K_NOFL")
stamp(6)
a(f"s_cmp_lg_u32 s{sS}, 0")
a("s_cbranch_scc1 L_FIN")

srd("b2"); srd("out")
a("v_and_b32 v13, 7, v0")
a("v_lshlrev_b32 v14, 2, v13")
a(f"s_lshl_b32 s58, s{sHKV}, 7")
a(f"s_lshl_b32 s59, s{sW}, 5")
a("s_add_u32 s58, s58, s59")
a(f"s_lshl_b32 s59, s{sB}, 10")
a("s_add_u32 s59, s59, s58")
a(f"buffer_load_dword v15, v14, {R('b2')}, s58 offen")
a("s_lshl_b32 s60, s63, 2")
a(f"s_add_u32 s60, s60, s{sW}")
a("s_lshl_b32 s60, s60, 12")
a(f"s_add_u32 s60, s60, {WS_OUTP}")
a("v_lshlrev_b32 v16, 3, v13")
a("v_and_b32 v17, 31, v0")
a("v_lshlrev_b32 v17, 4, v17")
a("v_mov_b32 v18, 0")
a("v_mov_b32 v19, 0")
a("v_mov_b32 v20, 1.0")
a("v_cmp_gt_u32 vcc, 32, v0")
a("v_cndmask_b32 v20, 0, v20, vcc")
a("s_waitcnt vmcnt(0)")
unpack(15, 22, 23)
vD = 24
def ld(i):
    if i < 3: a(f"buffer_load_dwordx4 v[{vD+i*4}:{vD+i*4+3}], v{vL16}, {R('ws')}, s60 offen offset:{i*1024} sc1")
    elif i == 3: a(f"buffer_load_dwordx4 v[{vD+12}:{vD+15}], v17, {R('ws')}, s60 offen offset:3072 sc1")
    else: a(f"buffer_load_dwordx2 v[40:41], v16, {R('ws')}, s60 offen offset:{NMLP*128} sc1")
def tg(i): return [vD+i*4+1, vD+i*4+3] if i < 4 else [41]
def cons(i):
    if i < 3:
        a(f"v_add_f32 v18, v18, v{vD+i*4}")
        a(f"v_add_f32 v19, v19, v{vD+i*4+2}")
    elif i == 3:
        a(f"v_fmac_f32 v18, v20, v{vD+12}")
        a(f"v_fmac_f32 v19, v20, v{vD+14}")
    else:
        unpack(40, 42, 43)
if E3F:
    a(f"s_lshr_b32 s61, s{sB}, 1")
    a("s_lshl_b32 s61, s61, 12")
    a(f"s_add_u32 s61, s61, {WS_RF}")
    a(f"v_min_u32 v44, {NMLP-1}, v0")
    a("v_lshlrev_b32 v44, 7, v44")
    a.label("L_RF")
    a(f"buffer_load_dword v45, v44, {R('ws')}, s61 offen sc1")
    budget()
    a("s_waitcnt vmcnt(0)")
    a(f"v_cmp_eq_u32 vcc, s{sTAG}, v45")
    a("s_cmp_eq_u64 vcc, -1")
    a("s_cbranch_scc1 L_RF_OK")
    if SL_RED: a(f"s_sleep {SL_RED}")
    a("s_branch L_RF")
    a.label("L_RF_OK")
    if SL_E3: a(f"s_sleep {SL_E3}")
    stamp(11)
masked_gather(5, ld, tg, cons, 1 if E3F else SL_RED)
stamp(9)
a(f"v_add_f32_dpp v18, v18, v18 row_ror:8 {DPPM}")
a(f"v_add_f32_dpp v19, v19, v19 row_ror:8 {DPPM}")
for sw in ("16", "32"):
    a("v_mov_b32 v24, v18")
    a("v_mov_b32 v25, v19")
    a(f"v_permlane{sw}_swap_b32 v18, v24")
    a(f"v_permlane{sw}_swap_b32 v19, v25")
    a("v_add_f32 v18, v18, v24")
    a("v_add_f32 v19, v19, v25")
rnd2(18, 19, 24)
a("v_add_f32 v18, v18, v22")
a("v_add_f32 v19, v19, v23")
rnd2(18, 19, 24)
a("v_add_f32 v18, v18, v42")
a("v_add_f32 v19, v19, v43")
a("v_cvt_pk_bf16_f32 v18, v18, v19")
a("s_mov_b64 exec, 0xff")
a(f"buffer_store_dword v18, v14, {R('out')}, s59 offen")
a("s_mov_b64 exec, -1")
stamp(10)
a("s_cmp_lg_u32 s2, 0")
a("s_cbranch_scc1 L_FIN")
a(f"s_cmp_lg_u32 s{sW}, 0")
a("s_cbranch_scc1 L_FIN")
a(f"v_mov_b32 v34, s{sTAG}")
a("s_mov_b64 exec, 1")
a(f"buffer_store_dword v34, v{vZ}, {R('ws')}, 0 offen sc1")
a("s_mov_b64 exec, -1")
a("s_branch L_FIN")

def mlp_decode():
    a(f"s_lshl_b32 s62, s{sB}, 1")
    a(f"s_add_u32 s62, s62, s{sS}")
    a("s_sub_u32 s62, s62, 2")
    a("s_lshr_b32 s63, s62, 2")
    a("s_lshl_b32 s63, s63, 3")
    a(f"s_add_u32 s63, s63, s{sHKV}")
    a("s_and_b32 s62, s62, 3")

def w2_common():
    a(f"s_lshl_b32 s60, s{sW}, 3")
    for nt_ in range(4):
        tr_swz_addr(20+nt_, 1024, 60, nt_, 16, 17)
    a("v_and_b32 v16, 1, v0")
    a(f"v_lshlrev_b32 v{vSTO}, 17, v16")
    a("v_bfe_u32 v17, v0, 2, 2")
    a(f"v_lshl_add_u32 v{vSTO}, v17, 12, v{vSTO}")
    a(f"v_lshl_add_u32 v{vSTO}, v{vG}, 5, v{vSTO}")
    a("v_bfe_u32 v17, v0, 1, 1")
    a(f"v_lshl_add_u32 v{vSTO}, v17, 4, v{vSTO}")
    a(f"v_mul_u32_u24 v{vH1R}, {H1_STR}, v16")
    a(f"v_lshl_add_u32 v{vH1R}, v{vG}, 4, v{vH1R}")
    a(f"v_add_u32 v{vH1R}, {L_H1}, v{vH1R}")
    a("s_lshl_b32 s64, s62, 18")
    a(f"s_lshl_b32 s65, s{sW}, 14")
    a("s_add_u32 s64, s64, s65")
    a("s_lshl_b32 s65, s63, 7")
    a("s_add_u32 s64, s64, s65")
    a(f"s_add_u32 s64, s64, {WS_OUTP}")
    a("s_lshl_b32 s65, s62, 5")
    a("s_add_u32 s65, s65, s63")
    a("s_lshl_b32 s65, s65, 7")
    a(f"s_add_u32 s65, s65, {WS_RF}")
    a("s_mov_b32 s94, 0xcccccccc"); a("s_mov_b32 s95, 0xcccccccc")
    a("s_mov_b32 s96, 0xf0f0f0f0"); a("s_mov_b32 s97, 0xf0f0f0f0")
    a("s_mov_b32 s98, 0xff00ff00"); a("s_mov_b32 s99, 0xff00ff00")
    a(f"v_mov_b32 v161, s{sTAG}")
    a(f"v_mov_b32 v163, s{sTAG}")
    lds_wait4(F_W2, 16, sleep=1)
    for nt_ in range(4):
        for kk in range(2):
            for hh in range(2):
                r = vA2 + (nt_*2+kk)*4 + hh*2
                a(f"ds_read_b64_tr_b16 v[{r}:{r+1}], v{20+nt_} offset:{kk*32768 + hh*4096}")
        if nt_ % 2 == 1: a("s_waitcnt lgkmcnt(0)")
    stamp(10)

def flags_poll():
    zflag_wait(16)
    a("v_lshlrev_b32 v13, 7, v0")
    a(f"s_mov_b32 s58, {WS_FL}")
    a(f"s_mov_b32 s59, {WS_FL+8192}")
    Lf = a.newlabel("FL")
    a.label(Lf)
    a(f"buffer_load_dword v16, v13, {R('ws')}, s58 offen sc1")
    a(f"buffer_load_dword v17, v13, {R('ws')}, s59 offen sc1")
    budget()
    a("s_waitcnt vmcnt(0)")
    a(f"v_cmp_eq_u32 vcc, s{sTAG}, v16")
    a(f"v_cmp_eq_u32 s[56:57], s{sTAG}, v17")
    a("s_and_b64 vcc, vcc, s[56:57]")
    a("s_cmp_eq_u64 vcc, -1")
    a(f"s_cbranch_scc1 {Lf}_ok")
    a(f"s_sleep {SL_POLL}")
    a(f"s_branch {Lf}")
    a.label(f"{Lf}_ok")
    if SL_GO: a(f"s_sleep {SL_GO}")

def h_gather():
    Lh = a.newlabel("MH")
    a.label(Lh)
    for j in range(3):
        a(f"buffer_load_dwordx4 v[{24+j*4}:{27+j*4}], v{vL16}, {R('ws')}, s60 offen offset:{j*1024} sc1")
    budget()
    a("s_waitcnt vmcnt(2)")
    a("v_cmp_eq_f32 s[56:57], s61, v27")
    a("s_waitcnt vmcnt(1)")
    a("v_cmp_eq_f32 vcc, s61, v31")
    a("s_and_b64 s[56:57], s[56:57], vcc")
    a("s_waitcnt vmcnt(0)")
    a("v_cmp_eq_f32 vcc, s61, v35")
    a("s_and_b64 s[56:57], s[56:57], vcc")
    a("s_cmp_eq_u64 s[56:57], -1")
    a(f"s_cbranch_scc1 {Lh}_ok")
    a(f"s_sleep {SL_POLL+2}")
    a(f"s_branch {Lh}")
    a.label(f"{Lh}_ok")
    stamp(5)
    src = [24, 25, 26, 28, 29, 30, 32, 33]
    for i in range(0, 8, 2):
        a(f"v_cvt_pk_bf16_f32 v{36+i//2}, v{src[i]}, v{src[i+1]}")
    for i in range(4):
        unpack(36+i, 24+2*i, 25+2*i)
    for i in range(0, 8, 2):
        a(f"v_pk_add_f32 v[{24+i}:{25+i}], v[{24+i}:{25+i}], v[{16+i}:{17+i}]")
    for i in range(0, 8, 2):
        a(f"v_cvt_pk_bf16_f32 v{44+i//2}, v{24+i}, v{25+i}")

a.label("L_K_NOTWO")
mlp_decode()
a(f"s_cmp_lt_u32 s63, {NMLP}")
a("s_cbranch_scc1 L_K_MLP")
a(f"s_cmp_lg_u32 s2, {HPUB_ID}")
a("s_cbranch_scc1 L_FIN")
a("s_branch L_HPUB")
a.label("L_K_MLP")
srd("w1"); srd("b1")
src128(20, 3584, 16)
a("s_lshl_b32 s58, s63, 7")
a(f"s_lshl_b32 s60, s{sW}, 5")
a("s_add_u32 s60, s60, s58")
a(f"v_lshlrev_b32 v16, 3, v{vG}")
a(f"buffer_load_dwordx2 v[14:15], v16, {R('b1')}, s60 offen")
a(f"s_mul_i32 s59, s{sW}, {32*3584}")
a("s_add_u32 s58, s59, s58")
a(f"s_lshl_b32 s61, s{sW}, 12")
a(f"s_add_u32 s61, s61, {L_K}")
if W1AFTER: lds_wait4(F_V, 16, minval=9, sleep=2)
if SL_W: a(f"s_sleep {SL_W}")
for q in range(4):
    a(f"s_add_u32 s60, s62, {q}")
    a("s_and_b32 s60, s60, 3")
    a(f"s_mul_i32 s59, s60, {128*3584}")
    a("s_add_u32 s59, s59, s58")
    a("s_lshl_b32 s60, s60, 14")
    a("s_add_u32 m0, s60, s61")
    dma(4, lambda i: 20 + (i & 1), "w1", 59, 8*3584, pol=MLPP)
stamp(4)
a("v_and_b32 v16, 1, v0")
a(f"v_mul_u32_u24 v{vYR}, {Y_STR}, v16")
a(f"v_lshl_add_u32 v{vYR}, v{vG}, 4, v{vYR}")
a(f"v_add_u32 v{vYR}, {L_Y}, v{vYR}")
a(f"v_mul_u32_u24 v{vH1W}, {H1_STR}, v16")
a(f"v_lshl_add_u32 v{vH1W}, v{vG}, 3, v{vH1W}")
a(f"s_lshl_b32 s60, s{sW}, 5")
a(f"s_add_u32 s60, s60, {L_H1}")
a(f"v_add_u32 v{vH1W}, s60, v{vH1W}")
a(f"v_lshlrev_b32 v{vABR}, 4, v16")
a(f"v_add_u32 v{vABR}, {L_AB}, v{vABR}")
k0 = 0.7978845608028654; k1 = 0.044715; l2e = 1.4426950408889634
a(f"s_mov_b32 s67, {f2u(-2*k0*k1*l2e):#x}")
a(f"v_mov_b32 v{vGC}, {f2u(-2*k0*l2e):#x}")
a(f"s_lshl_b32 s60, s{sW}, 1")
tr_swz_addr(13, 128, 60, 0, 16, 17, base_imm=L_K)
w2_common()
a("v_mov_b32 v16, 2")
for i in range(4): a(f"v_mov_b32 v{24+i}, 0x3f803f80")
a("s_waitcnt vmcnt(0)")
if int(opts.get("dbgw", 0)): stamp(2)
set_flag(F_W, 16)
unpack(14, vB1, vB1+1); unpack(15, vB1+2, vB1+3)
lds_wait4(F_W, 16, minval=2)
def w1rd(kk):
    for hh in range(2):
        a(f"ds_read_b64_tr_b16 v[{vA1+kk*4+hh*2}:{vA1+kk*4+hh*2+1}], v13 offset:{kk*4096+hh*512}")
for kk in range(7): w1rd(kk)
for kk in range(16):
    a(f"s_waitcnt lgkmcnt({12 if kk < 10 else (15-kk)*2})")
    c = "0" if kk == 0 else f"v[{vCS}:{vCS+3}]"
    a(f"v_mfma_f32_16x16x32_bf16 v[{vCS}:{vCS+3}], v[{vA1+kk*4}:{vA1+kk*4+3}], v[24:27], {c}")
    if kk + 7 < 16: w1rd(kk+7)
stamp(11)
a("s_setprio 2")
Ly = a.newlabel("WY")
a.label(Ly)
a(f"ds_read_b64 v[16:17], v{vSC} offset:{F_Y-SC}")
budget()
a("s_waitcnt lgkmcnt(0)")
a("v_and_b32 v16, v16, v17")
a("v_readfirstlane_b32 s54, v16")
a("s_cmp_eq_u32 s54, 0")
a(f"s_cbranch_scc1 {Ly}")
stamp(5)
if E3F == 1:
    a(f"s_cmp_lg_u32 s{sW}, 0")
    a("s_cbranch_scc1 L_E3F")
    a("s_mov_b64 exec, 1")
    a(f"buffer_store_dword v161, v{vZ}, {R('ws')}, s65 offen sc1")
    a("s_mov_b64 exec, -1")
    a.label("L_E3F")
vB = 164
Bq = [200+4*i for i in range(8)] + [164+4*i for i in range(7)] + [24]
for k2 in range(15):
    a(f"ds_read_b128 v[{Bq[k2]}:{Bq[k2]+3}], v{vYR} offset:{k2*64}")
for k2 in range(16):
    if k2 == 1:
        a(f"ds_read_b128 v[{Bq[15]}:{Bq[15]+3}], v{vYR} offset:{15*64}")
    a(f"s_waitcnt lgkmcnt({14 if k2 == 0 else 15-k2})")
    c = "0" if k2 == 0 else "v[16:19]"
    a(f"v_mfma_f32_16x16x32_bf16 v[16:19], v[{vA1+k2*4}:{vA1+k2*4+3}], v[{Bq[k2]}:{Bq[k2]+3}], {c}")
stamp(6)
if E3F == 2:
    a(f"s_cmp_lg_u32 s{sW}, 0")
    a("s_cbranch_scc1 L_E3F")
    a("s_mov_b64 exec, 1")
    a(f"buffer_store_dword v161, v{vZ}, {R('ws')}, s65 offen sc1")
    a("s_mov_b64 exec, -1")
    a.label("L_E3F")
Lab = a.newlabel("AB")
a.label(Lab)
a(f"ds_read_b96 v[20:22], v{vABR}")
budget()
a("s_waitcnt lgkmcnt(0)")
a("v_cmp_eq_u32 vcc, 1, v22")
a("s_cmp_eq_u64 vcc, -1")
a(f"s_cbranch_scc0 {Lab}")
for i in range(4):
    a(f"v_mul_f32 v{16+i}, v20, v{16+i}")
for i in range(4):
    a(f"v_fmac_f32 v{16+i}, v21, v{vCS+i}")
rnd2(16, 17, 20); rnd2(18, 19, 21)
for i in range(4):
    a(f"v_add_f32 v{16+i}, v{16+i}, v{vB1+i}")
rnd2(16, 17, 20); rnd2(18, 19, 21)
for i in range(4):
    a(f"v_mul_f32 v{20+i}, v{16+i}, v{16+i}")
for i in range(4):
    a(f"v_fma_f32 v{20+i}, v{20+i}, s67, v{vGC}")
for i in range(4):
    a(f"v_mul_f32 v{20+i}, v{20+i}, v{16+i}")
for i in range(4):
    a(f"v_exp_f32 v{20+i}, v{20+i}")
for i in range(4):
    a(f"v_add_f32 v{20+i}, 1.0, v{20+i}")
for i in range(4):
    a(f"v_rcp_f32 v{20+i}, v{20+i}")
for i in range(4):
    a(f"v_mul_f32 v{16+i}, v{16+i}, v{20+i}")
a("v_cvt_pk_bf16_f32 v16, v16, v17")
a("v_cvt_pk_bf16_f32 v17, v18, v19")
a(f"ds_write_b64 v{vH1W}, v[16:17]")
set_flag(F_D)
if E3F == 3:
    a(f"s_cmp_lg_u32 s{sW}, 0")
    a("s_cbranch_scc1 L_E3F")
    a("s_mov_b64 exec, 1")
    a(f"buffer_store_dword v161, v{vZ}, {R('ws')}, s65 offen sc1")
    a("s_mov_b64 exec, -1")
    a.label("L_E3F")
stamp(9)
a.label("L_MLP_W2")
lds_wait4(F_D, 20)
a(f"ds_read_b128 v[16:19], v{vH1R}")
a(f"ds_read_b128 v[20:23], v{vH1R} offset:64")
vO = 24
for kk in range(2):
    a(f"s_waitcnt lgkmcnt({1-kk})")
    for nt_ in range(4):
        r = vA2 + (nt_*2+kk)*4
        c = "0" if kk == 0 else f"v[{vO+nt_*4}:{vO+nt_*4+3}]"
        a(f"v_mfma_f32_16x16x32_bf16 v[{vO+nt_*4}:{vO+nt_*4+3}], v[{r}:{r+3}], v[{16+kk*4}:{19+kk*4}], {c}")
for nt_ in range(4):
    a(f"v_cndmask_b32 v{40+nt_*2}, v{vO+nt_*4}, v{vO+nt_*4+2}, s[94:95]")
    a(f"v_cndmask_b32 v{41+nt_*2}, v{vO+nt_*4+1}, v{vO+nt_*4+3}, s[94:95]")
for q in range(2):
    a(f"v_cndmask_b32 v{40+q*4}, v{40+q*4}, v{42+q*4}, s[96:97]")
    a(f"v_cndmask_b32 v{41+q*4}, v{41+q*4}, v{43+q*4}, s[96:97]")
a("v_cndmask_b32 v160, v40, v44, s[98:99]")
a("v_cndmask_b32 v162, v41, v45, s[98:99]")
a(f"buffer_store_dwordx4 v[160:163], v{vSTO}, {R('ws')}, s64 offen sc1")
stamp(7)
a("s_branch L_FIN")

a.label("L_V_NOTWO")
set_flag(F_V, 14)
mlp_decode()
a(f"s_cmp_lt_u32 s63, {NMLP}")
a("s_cbranch_scc1 L_V_MLP")
a(f"s_cmp_lg_u32 s2, {HPUB_ID}")
a("s_cbranch_scc1 L_FIN")
a("s_branch L_HPUB")
a.label("L_V_MLP")
srd("w2")
a("s_lshl_b32 s58, s63, 16")
a(f"s_lshl_b32 s61, s{sAW}, 12")
a("s_add_u32 s58, s58, s61")
a("s_lshl_b32 s60, s62, 1")
a(f"s_add_u32 s66, s60, s{sAW}")
a("s_and_b32 s66, s66, 7")
a("s_lshl_b32 s60, s66, 10")
a(f"buffer_load_dwordx4 v[{vX}:{vX+3}], v{vL16}, {R('x')}, s60 offen")
a(f"s_lshr_b32 s60, s{sAW}, 1")
a("s_lshl_b32 s60, s60, 3")
for i in range(4):
    a(f"v_xor_b32 v{20+i}, {i*2}, v0")
    a(f"v_xor_b32 v{20+i}, s60, v{20+i}")
    a(f"v_lshlrev_b32 v{20+i}, 4, v{20+i}")
lds_wait4(F_V, 16, minval=9)
if int(opts.get("dbgw", 0)): stamp(3)
if SL_W: a(f"s_sleep {SL_W}")
for q in range(4):
    a(f"s_add_u32 s60, s62, {q}")
    a("s_and_b32 s60, s60, 3")
    a("s_lshl_b32 s60, s60, 14")
    a("s_add_u32 s59, s60, s58")
    a("s_add_u32 m0, s60, s61")
    dma(4, lambda i: 20 + i, "w2", 59, 1024, pol=MLPP)
if int(opts.get("dbgw", 0)): stamp(1)
a("s_waitcnt vmcnt(0)")
if int(opts.get("dbgw", 0)): stamp(2)
set_flag(F_W2)
w2_common()
a(f"s_cmp_ge_u32 s{sAW}, 2")
a("s_cbranch_scc1 L_MLP_W2")
a("s_setprio 3")
flags_poll()
stamp(11)
a("s_mul_i32 s60, s66, 3072")
a(f"s_add_u32 s60, s60, {WS_HACC}")
a("s_mov_b32 s61, 0x42000000")
for i in range(4):
    unpack(vX+i, 16+2*i, 17+2*i)
a(f"s_mul_i32 s58, s{sAW}, {Y_STR}")
a(f"s_add_u32 s58, s58, {L_Y}")
a(f"v_add_u32 v13, s58, v{vL16}")
a(f"s_lshl_b32 s58, s{sAW}, 4")
a(f"v_add_u32 v14, s58, v{vSC}")
h_gather()
a("ds_write_b128 v13, v[44:47]")
set_flag(F_Y)
for i in range(4):
    unpack(44+i, 24+2*i, 25+2*i)
row_stats(24, 32)
a("v_mov_b32 v34, v32")
a("v_mov_b32 v35, v33")
rnd2(34, 35, 36)
sd_of(35, 36)
rcp_nr(36, 35, 37)
a("v_sub_f32 v32, v32, v34")
a("v_mul_f32 v32, v32, v36")
a("v_mul_f32 v33, v33, v36")
a("v_mul_f32 v33, v33, v36")
rnd2(32, 33, 37)
sd_of(33, 37)
rcp_nr(37, 33, 38)
a("v_mul_f32 v40, v36, v37")
a("v_fma_f32 v41, v32, v35, v34")
a("v_mul_f32 v41, -v41, v40")
a("v_mov_b32 v42, 1")
a(f"ds_write_b96 v14, v[40:42] offset:{L_AB-SC}")
stamp(6)
a("s_branch L_MLP_W2")

a.label("L_HPUB")
flags_poll()
a(f"s_mul_i32 s60, s{sW}, 3072")
a(f"s_add_u32 s60, s60, {WS_HACC}")
a("s_mov_b32 s61, 0x42000000")
for i in range(4):
    unpack(vX+i, 16+2*i, 17+2*i)
a("v_lshrrev_b32 v13, 1, v0")
a("v_lshlrev_b32 v13, 12, v13")
a("v_and_b32 v14, 1, v0")
a("v_lshl_add_u32 v13, v14, 5, v13")
a(f"s_lshl_b32 s62, s{sW}, 17")
a(f"s_add_u32 s62, s62, {WS_OUTP + NMLP*128}")
h_gather()
for i in range(4):
    a(f"v_mov_b32 v{24+2*i}, v{44+i}")
    a(f"v_mov_b32 v{25+2*i}, s{sTAG}")
a(f"buffer_store_dwordx4 v[24:27], v13, {R('ws')}, s62 offen sc1")
a(f"buffer_store_dwordx4 v[28:31], v13, {R('ws')}, s62 offen offset:16 sc1")

a.label("L_FIN")
a("s_waitcnt vmcnt(0)")
if STAMPS:
    stamp(8)
    if CAL:
        cw, cs = map(int, CAL.split(":"))
        a(f"s_cmp_lg_u32 s2, {CALWG}")
        a("s_cbranch_scc1 L_END")
        a(f"s_cmp_lg_u32 s{sW}, {cw}")
        a("s_cbranch_scc1 L_END")
        a(f"v_readfirstlane_b32 s60, v{240+cs}")
        a("v_readfirstlane_b32 s61, v240")
        a("s_sub_u32 s60, s60, s61")
        a("s_lshl_b32 s60, s60, 1")
        a("s_add_u32 s60, s60, 4000")
        a.label("L_CAL")
        a("s_memrealtime s[90:91]")
        a("s_waitcnt lgkmcnt(0)")
        a("s_sub_u32 s62, s90, s61")
        a("s_cmp_lt_u32 s62, s60")
        a("s_cbranch_scc1 L_CAL")
        a("s_branch L_END")
    a("s_lshl_b32 s60, s2, 3")
    a(f"s_add_u32 s60, s60, s{sW}")
    a("s_mul_i32 s60, s60, 48")
    a(f"s_add_u32 s60, s60, {WS_STAMP}")
    a("s_mov_b64 exec, 1")
    for i in range(3):
        a(f"buffer_store_dwordx4 v[{240+4*i}:{243+4*i}], v{vZ}, {R('ws')}, s60 offen offset:{16*i}")
    if DBGST:
        a("v_not_b32 v252, v240")
        for i in range(13):
            a(f"global_atomic_umax v{vZ}, v{240+i}, s[86:87] offset:{4*i}")
a.label("L_END")
a("s_endpgm")

hdr = open("sequential_preLN__sliding_block_cached__mixer_channel_mlp__decode.s.ref").read().split("; Override launch")[0]
txt = a.text().replace("CODE_KB", "(L_END-L_VW)/1024")
open(out, "w").write(wrap(txt, 256, 512, LDS_BYTES, vgpr=256, header_comment=hdr))
```

```python
import sys, struct
from asmgen import *

out = sys.argv[1]
opts = dict(kv.split("=") for kv in sys.argv[2:])
STAMPS = int(opts.get("stamps", 0))
DBGST = int(opts.get("dbgst", 0))
if DBGST: STAMPS = 1
CAL = opts.get("cal")
CALWG = int(opts.get("calwg", 0))
if CAL: STAMPS = 1
NT = "nt" if int(opts.get("nt", 1)) else ""
SL_GO = int(opts.get("sl_go", 0))
SL_POLL = int(opts.get("sl_poll", 2))
SL_RED = int(opts.get("sl_red", 4))
SL_Q = int(opts.get("sl_q", 20))
FLEARLY = int(opts.get("flearly", 0))
WOFILL = int(opts.get("wofill", 1))
SL_E1 = int(opts.get("sl_e1", 0))
QACK = int(opts.get("qack", 1))
THR = int(opts.get("thr", 4))
NVK = int(opts.get("nvk", 4))
E1F = int(opts.get("e1f", 0))
E3F = int(opts.get("e3f", 0))
SL_E3 = int(opts.get("sl_e3", 0))
SL_P1 = int(opts.get("sl_p1", 2))
SL_Q2 = int(opts.get("sl_q2", 14))
NK1 = int(opts.get("nk1", 8))
QFL = int(opts.get("qfl", 1))
PFP = opts.get("pfp", "nt")
if PFP == "none": PFP = ""
MLPP = opts.get("mlpp", "nt")
if MLPP == "none": MLPP = ""

def f2u(x): return struct.unpack("<I", struct.pack("<f", x))[0]

WS_ZF = 256
WS_ST = 4096
WS_HACC = 32768
WS_FL = 65536
WS_OF = 0x380000
WS_HF = 0x28000
WS_RF = 0x340000
WS_QP = 0x40000
WS_OP = 0x140000
WS_OUTP = 0x240000
WS_STAMP = 128 << 20
NMLP = 28
HPUB_ID = ((6*4+2)*8+4)
SL_W = int(opts.get("sl_w", 0))
SL_QW = int(opts.get("sl_qw", 8))
PF = int(opts.get("pf", 1))
PFPRIO = int(opts.get("pfprio", 0))
SL_WO = int(opts.get("sl_wo", 0))
NQ = int(opts.get("nq", 8))
NV1 = int(opts.get("nv1", 6))
CODEPF = int(opts.get("codepf", 1))
W1AFTER = int(opts.get("w1after", 1))

L_V = 0
L_K = 65536
L_WQ = 131072
L_QL = L_WQ
L_P = L_WQ + 1024; P_STR = 528
L_OL = L_WQ + 3200; OL_STR = 272
L_H1 = L_WQ + 5376; H1_STR = 144
L_RL = L_WQ + 6528; RL_STR = 144
SC = 147456
F_TAG = SC + 0
F_TRDY = SC + 4
F_GO = SC + 8
F_CF = SC + 12
F_LN1 = SC + 16
F_Q = SC + 32
F_A = SC + 48
F_B = SC + 64
F_V = SC + 80
F_W = SC + 96
F_C = SC + 112
F_D = SC + 128
F_W2 = SC + 144
F_KI = SC + 304
F_QGO = SC + 168
F_Y = SC + 512
F_WR = SC + 528
F_GI = SC + 544
F_VK = SC + 560
C_ONE = SC + 160
C_ZERO = SC + 164
L_AB = SC + 176
L_MX = SC + 320
L_SUM = SC + 384
L_CF = L_WQ + 12288
L_Y = SC + 640; Y_STR = 1040
LDS_BYTES = SC + 640 + 8*Y_STR
assert LDS_BYTES <= 163840

sW, sHKV, sB, sS, sAW = 3, 4, 5, 6, 7
SRD = dict(ws=8, k=12, v=16, x=20, wq=24, wo=28, w1=32, w2=36, b1=40, b2=44, out=48)
sTAG, sBUD = 52, 53
PTR = dict(x=64, k=66, v=68, wq=70, wo=72, bx=74, w1=76, b1=78, w2=80, b2=82, out=84, dbg=86, ws=88)
LOG2E = 0x3FB8AA3B
SCALE = 0x3DB504F3
DPPM = "row_mask:0xf bank_mask:0xf"

a = Asm()

def srd(name):
    d = SRD[name]; p = PTR[name]
    a(f"s_mov_b32 s{d}, s{p}")
    a(f"s_and_b32 s{d+1}, s{p+1}, 0xffff")
    a(f"s_mov_b32 s{d+2}, {SIZES[name]}")
    a(f"s_mov_b32 s{d+3}, 0x20000")
def R(name): d = SRD[name]; return f"s[{d}:{d+3}]"

def stamp(i):
    if not STAMPS: return
    if STAMPS == 2 and i != 8: return
    a("s_memrealtime s[90:91]")
    a("s_waitcnt lgkmcnt(0)")
    a(f"v_mov_b32 v{240+i}, s90")

def budget():
    a(f"s_sub_u32 s{sBUD}, s{sBUD}, 1")
    a("s_cbranch_scc1 L_END")

def set_flag(flag, val=None):
    a(f"ds_write_b32 v{vFL}, v{vONE if val is None else val} offset:{flag-SC}")

def lds_wait4(flag, vt, sleep=0, minval=None):
    L = a.newlabel("W4")
    a.label(L)
    a(f"ds_read_b128 v[{vt}:{vt+3}], v{vSC} offset:{flag-SC}")
    budget()
    a("s_waitcnt lgkmcnt(0)")
    a(f"v_min3_u32 v{vt}, v{vt}, v{vt+1}, v{vt+2}")
    a(f"v_min_u32 v{vt}, v{vt}, v{vt+3}")
    a(f"v_readfirstlane_b32 s54, v{vt}")
    if sleep: a(f"s_sleep {sleep}")
    a(f"s_cmp_lt_u32 s54, {1 if minval is None else minval}")
    a(f"s_cbranch_scc1 {L}")

def lds_wait1(flag, vt, sleep=0):
    L = a.newlabel("W1")
    a.label(L)
    a(f"ds_read_b32 v{vt}, v{vSC} offset:{flag-SC}")
    budget()
    a("s_waitcnt lgkmcnt(0)")
    a(f"v_readfirstlane_b32 s54, v{vt}")
    if sleep: a(f"s_sleep {sleep}")
    a("s_cmp_eq_u32 s54, 0")
    a(f"s_cbranch_scc1 {L}")

def rnd1(v, t):
    a(f"v_cvt_pk_bf16_f32 v{t}, v{v}, v{v}")
    a(f"v_lshlrev_b32 v{v}, 16, v{t}")
def rnd2(v0, v1, t):
    a(f"v_cvt_pk_bf16_f32 v{t}, v{v0}, v{v1}")
    a(f"v_lshlrev_b32 v{v0}, 16, v{t}")
    a(f"v_and_b32 v{v1}, 0xffff0000, v{t}")
def unpack(src, lo, hi):
    a(f"v_lshlrev_b32 v{lo}, 16, v{src}")
    a(f"v_and_b32 v{hi}, 0xffff0000, v{src}")

def wave_sum2(va, vb, sa, sb):
    for mod in ("quad_perm:[1,0,3,2]", "quad_perm:[2,3,0,1]", "row_half_mirror", "row_mirror"):
        a(f"v_add_f32_dpp v{va}, v{va}, v{va} {mod} {DPPM}")
        a(f"v_add_f32_dpp v{vb}, v{vb}, v{vb} {mod} {DPPM}")
    a(f"v_add_f32_dpp v{va}, v{va}, v{va} row_bcast:15 row_mask:0xa bank_mask:0xf")
    a(f"v_add_f32_dpp v{vb}, v{vb}, v{vb} row_bcast:15 row_mask:0xa bank_mask:0xf")
    a(f"v_add_f32_dpp v{va}, v{va}, v{va} row_bcast:31 row_mask:0xc bank_mask:0xf")
    a(f"v_add_f32_dpp v{vb}, v{vb}, v{vb} row_bcast:31 row_mask:0xc bank_mask:0xf")
    a(f"v_readlane_b32 s{sa}, v{va}, 63")
    a(f"v_readlane_b32 s{sb}, v{vb}, 63")

def row_stats(e, t, sg=55):
    a(f"v_readfirstlane_b32 s{sg}, v{e}")
    a(f"v_mov_b32 v{t+10}, s{sg}")
    a(f"v_mov_b32 v{t+11}, s{sg}")
    for i in range(0, 8, 2):
        a(f"v_pk_add_f32 v[{t+i}:{t+i+1}], v[{e+i}:{e+i+1}], v[{t+10}:{t+11}] neg_lo:[0,1] neg_hi:[0,1]")
    a(f"v_pk_add_f32 v[{t+8}:{t+9}], v[{t}:{t+1}], v[{t+2}:{t+3}]")
    a(f"v_pk_mul_f32 v[{t+10}:{t+11}], v[{t}:{t+1}], v[{t}:{t+1}]")
    a(f"v_pk_add_f32 v[{t}:{t+1}], v[{t+4}:{t+5}], v[{t+6}:{t+7}]")
    for i in (2, 4, 6):
        a(f"v_pk_fma_f32 v[{t+10}:{t+11}], v[{t+i}:{t+i+1}], v[{t+i}:{t+i+1}], v[{t+10}:{t+11}]")
    a(f"v_pk_add_f32 v[{t+8}:{t+9}], v[{t+8}:{t+9}], v[{t}:{t+1}]")
    a(f"v_add_f32 v{t+10}, v{t+10}, v{t+11}")
    a(f"v_add_f32 v{t+8}, v{t+8}, v{t+9}")
    wave_sum2(t+8, t+10, sg+1, sg+2)
    a(f"v_mov_b32 v{t+2}, 0x3b000000")
    a(f"v_mul_f32 v{t}, s{sg+1}, v{t+2}")
    a(f"v_mul_f32 v{t+1}, s{sg+2}, v{t+2}")
    a(f"v_fma_f32 v{t+1}, -v{t}, v{t}, v{t+1}")
    a(f"v_max_f32 v{t+1}, 0, v{t+1}")
    a(f"v_add_f32 v{t}, s{sg}, v{t}")

def sd_of(v, t):
    a(f"v_add_f32 v{v}, 0x3727c5ac, v{v}")
    rnd1(v, t)
    a(f"v_sqrt_f32 v{v}, v{v}")
    rnd1(v, t)

def rcp_nr(dst, src, t):
    a(f"v_rcp_f32 v{dst}, v{src}")
    a(f"v_fma_f32 v{t}, -v{src}, v{dst}, 1.0")
    a(f"v_fma_f32 v{dst}, v{t}, v{dst}, v{dst}")

def layernorm(e, t, last_pack):
    row_stats(e, t)
    rnd2(t, t+1, t+2)
    sd_of(t+1, t+2)
    rcp_nr(t+2, t+1, t+3)
    for i in range(8):
        a(f"v_sub_f32 v{e+i}, v{e+i}, v{t}")
    for i in range(0, 8, 2):
        rnd2(e+i, e+i+1, t+4+i//2)
    for i in range(8):
        a(f"v_mul_f32 v{t+4+i}, v{e+i}, v{t+2}")
    for i in range(8):
        a(f"v_fma_f32 v{e+i}, -v{t+4+i}, v{t+1}, v{e+i}")
    for i in range(8):
        a(f"v_fma_f32 v{e+i}, v{e+i}, v{t+2}, v{t+4+i}")
    for i in range(0, 8, 2):
        a(f"v_cvt_pk_bf16_f32 v{last_pack+i//2}, v{e+i}, v{e+i+1}")

def head_reduce(v, t, op):
    a(f"v_{op}_f32_dpp v{v}, v{v}, v{v} row_ror:4 {DPPM}")
    a(f"v_{op}_f32_dpp v{v}, v{v}, v{v} row_ror:8 {DPPM}")
    a(f"v_mov_b32 v{t}, v{v}")
    a(f"v_permlane16_swap_b32 v{v}, v{t}")
    a(f"v_{op}_f32 v{v}, v{v}, v{t}")
    a(f"v_mov_b32 v{t}, v{v}")
    a(f"v_permlane32_swap_b32 v{v}, v{t}")
    a(f"v_{op}_f32 v{v}, v{v}, v{t}")

def trA_addr(v, rowbytes, t):
    a(f"v_bfe_u32 v{v}, v0, 2, 2")
    a(f"v_lshl_add_u32 v{v}, v{vG}, 3, v{v}")
    a(f"v_mul_u32_u24 v{v}, {rowbytes}, v{v}")
    a(f"v_and_b32 v{t}, 3, v0")
    a(f"v_lshl_add_u32 v{v}, v{t}, 3, v{v}")
def B_addr(v, base, stride, t):
    a(f"v_and_b32 v{t}, 7, v0")
    a(f"v_mul_u32_u24 v{v}, {stride}, v{t}")
    a(f"v_lshl_add_u32 v{v}, v{vG}, 4, v{v}")
    a(f"v_add_u32 v{v}, {base}, v{v}")

def zflag_wait(vt):
    L = a.newlabel("ZF")
    a(f"v_and_b32 v{vt}, 7, v0")
    a(f"v_lshlrev_b32 v{vt}, 3, v{vt}")
    a(f"s_mov_b32 s60, {WS_ZF}")
    a.label(L)
    a(f"buffer_load_dword v{vt+1}, v{vt}, {R('ws')}, s60 offen sc1")
    budget()
    a("s_waitcnt vmcnt(0)")
    a(f"v_cmp_eq_u32 vcc, s{sTAG}, v{vt+1}")
    a("s_cmp_eq_u64 vcc, -1")
    a(f"s_cbranch_scc0 {L}")

def masked_gather(n, load, tags, consume, sleep):
    L = a.newlabel("MG")
    a(f"s_mov_b32 s62, {(1 << n) - 1}")
    a.label(L)
    for i in range(n):
        a(f"s_bitcmp1_b32 s62, {i}")
        a(f"s_cbranch_scc0 {L}_l{i}")
        load(i)
        a.label(f"{L}_l{i}")
    budget()
    a("s_waitcnt vmcnt(0)")
    for i in range(n):
        a(f"s_bitcmp1_b32 s62, {i}")
        a(f"s_cbranch_scc0 {L}_c{i}")
        t = tags(i)
        a(f"v_cmp_eq_u32 vcc, s{sTAG}, v{t[0]}")
        if len(t) > 1:
            a(f"v_cmp_eq_u32 s[56:57], s{sTAG}, v{t[1]}")
            a("s_and_b64 vcc, vcc, s[56:57]")
        a("s_cmp_eq_u64 vcc, -1")
        a(f"s_cbranch_scc0 {L}_c{i}")
        consume(i)
        a(f"s_bitset0_b32 s62, {i}")
        a.label(f"{L}_c{i}")
    a("s_cmp_eq_u32 s62, 0")
    a(f"s_cbranch_scc1 {L}_ok")
    if sleep: a(f"s_sleep {sleep}")
    a(f"s_branch {L}")
    a.label(f"{L}_ok")

def capture(fn):
    save = a.items; a.items = []
    fn()
    got = a.items; a.items = save
    return got

def dma(n, voff, srdname, soff, sstep, mstep=1024, pol=None):
    if pol is None: pol = NT
    for i in range(n):
        v = voff(i) if callable(voff) else voff
        a(f"buffer_load_dwordx4 v{v}, {R(srdname)}, s{soff} offen {pol} lds")
        if i < n-1:
            ms = mstep(i) if callable(mstep) else mstep
            ss = sstep(i) if callable(sstep) else sstep
            a(f"s_add_u32 m0, m0, {ms}")
            a(f"s_add_u32 s{soff}, s{soff}, {ss}")

vLANE, vZ, vG, vC, vSC, vONE = 0, 1, 2, 3, 4, 5
vFL = 7
vX = 8
vL16 = 12
vA1 = 64
vA2 = 128
vB1, vCS = 192, 196
vYR, vH1W, vH1R, vSTO, vABR, vGC = 232, 233, 234, 235, 236, 237


def tr_swz_addr(dst, rowbytes, slot_s, slot_add, t0, t1, base_s=None, base_imm=0):
    a(f"v_bfe_u32 v{t0}, v0, 2, 2")
    if rowbytes == 128:
        a(f"v_lshrrev_b32 v{t1}, 1, v{t0}")
        a(f"v_and_b32 v{dst}, 1, v{vG}")
        a(f"v_lshl_add_u32 v{t1}, v{dst}, 1, v{t1}")
    else:
        a(f"v_and_b32 v{t1}, 1, v{vG}")
        a(f"v_lshl_add_u32 v{t1}, v{t1}, 2, v{t0}")
    a(f"v_lshlrev_b32 v{t1}, 1, v{t1}")
    a(f"v_bfe_u32 v{dst}, v0, 1, 1")
    a(f"v_xor_b32 v{t1}, v{t1}, v{dst}")
    a(f"v_xor_b32 v{t1}, s{slot_s}, v{t1}")
    if slot_add: a(f"v_xor_b32 v{t1}, {slot_add*2}, v{t1}")
    a(f"v_lshl_add_u32 v{t0}, v{vG}, 3, v{t0}")
    a(f"v_mul_u32_u24 v{t0}, {rowbytes}, v{t0}")
    a(f"v_lshl_add_u32 v{t0}, v{t1}, 4, v{t0}")
    a(f"v_and_b32 v{t1}, 1, v0")
    a(f"v_lshl_add_u32 v{dst}, v{t1}, 3, v{t0}")
    if base_imm: a(f"v_add_u32 v{dst}, {base_imm}, v{dst}")

def src128(dst, stride, t):
    a(f"v_lshrrev_b32 v{dst}, 3, v0")
    a(f"v_mul_u32_u24 v{dst}, {stride}, v{dst}") if stride < (1 << 24) else None
    a(f"v_bfe_u32 v{t}, v0, 4, 1")
    a(f"v_lshlrev_b32 v{t}, 1, v{t}")
    a(f"v_and_b32 v{dst+1}, 7, v0")
    a(f"v_xor_b32 v{t}, v{t}, v{dst+1}")
    a(f"v_xor_b32 v{dst+1}, 4, v{t}")
    a(f"v_lshl_add_u32 v{dst+1}, v{dst+1}, 4, v{dst}")
    a(f"v_lshl_add_u32 v{dst}, v{t}, 4, v{dst}")
vWO = 200
if STAMPS:
    a("s_memrealtime s[92:93]")
a("s_cmp_ge_u32 s2, 256")
a("s_cbranch_scc1 L_END")
a("s_load_dwordx16 s[64:79], s[0:1], 0")
a("s_load_dwordx2 s[88:89], s[0:1], 96")
a("s_load_dwordx8 s[80:87], s[0:1], 64")
a("v_lshrrev_b32 v1, 6, v0")
a("v_and_b32 v0, 63, v0")
a(f"v_readfirstlane_b32 s{sW}, v1")
a(f"v_mov_b32 v{vZ}, 0")
a(f"v_lshrrev_b32 v{vG}, 4, v0")
a(f"v_and_b32 v{vC}, 15, v0")
a(f"v_mov_b32 v{vSC}, {SC}")
a(f"v_mov_b32 v{vONE}, 1")
a(f"s_and_b32 s{sHKV}, s2, 7")
a(f"s_lshr_b32 s{sB}, s2, 5")
a(f"s_bfe_u32 s{sS}, s2, 0x20003")
a(f"s_mov_b32 s{sBUD}, 400000")
a(f"s_and_b32 s{sAW}, s{sW}, 3")
a(f"s_lshl_b32 s60, s{sAW}, 2")
a(f"v_add_u32 v{vFL}, s60, v{vSC}")
a(f"v_lshlrev_b32 v{vL16}, 4, v0")
a(f"v_mov_b32 v{vSTO}, 0")
a(f"s_lshl_b32 s58, s{sB}, 3")
a(f"s_add_u32 s58, s58, s{sHKV}")
a("s_mov_b32 s63, s58")
a("s_lshl_b32 s58, s58, 20")
a(f"s_lshl_b32 s59, s{sS}, 16")
a("s_add_u32 s58, s58, s59")
a("s_add_u32 s58, s58, 786432")
for nm in ("ws", "x", "k", "wq"):
    a(f"s_mov_b32 s{SRD[nm]+2}, {SIZES[nm]}")
    a(f"s_mov_b32 s{SRD[nm]+3}, 0x20000")
def srd_lo(name):
    d = SRD[name]; p = PTR[name]
    a(f"s_mov_b32 s{d}, s{p}")
    a(f"s_and_b32 s{d+1}, s{p+1}, 0xffff")
if STAMPS:
    for i in range(12): a(f"v_mov_b32 v{240+i}, 0")
a(f"s_cmp_ge_u32 s{sW}, 4")
a("s_cbranch_scc1 L_VW")

a("s_setprio 2")
a(f"s_lshl_b32 s61, s{sW}, 10")
if WOFILL:
    a(f"s_cmp_lt_u32 s{sS}, 2")
    a("s_cbranch_scc1 L_K_WOF")
a(f"s_lshl_b32 s60, s{sW}, 14")
a("s_add_u32 s59, s60, s58")
a(f"s_add_u32 m0, s60, {L_K}")
for j in range(4):
    a(f"v_xor_b32 v{16+j}, {j*4}, v{vG}")
    a(f"v_xor_b32 v{16+j}, v{16+j}, v{vC}")
    a(f"v_lshlrev_b32 v{16+j}, 4, v{16+j}")
    a(f"v_lshl_add_u32 v{16+j}, v{vG}, 8, v{16+j}")
a("s_waitcnt lgkmcnt(0)")
srd_lo("k")
a("s_barrier")
dma(NK1, lambda i: 16 + (i & 3), "k", 59, 1024)
a("s_branch L_K_MAIN")
if WOFILL:
    a.label("L_K_WOF")
    a(f"s_lshl_b32 s62, s{sB}, 1")
    a(f"s_add_u32 s62, s62, s{sS}")
    a("s_lshr_b32 s59, s62, 2")
    a("s_and_b32 s60, s62, 3")
    a(f"s_lshl_b32 s62, s{sHKV}, 2")
    a("s_add_u32 s60, s60, s62")
    a("s_lshl_b32 s60, s60, 17")
    a("s_lshl_b32 s59, s59, 8")
    a("s_add_u32 s59, s59, s60")
    a(f"s_lshl_b32 s60, s{sW}, 15")
    a("s_add_u32 s59, s59, s60")
    a(f"s_lshl_b32 m0, s{sW}, 13")
    a(f"v_lshlrev_b32 v16, 1, v{vG}")
    a(f"v_xor_b32 v16, v16, v{vC}")
    a("v_xor_b32 v17, 8, v16")
    a("v_lshlrev_b32 v16, 4, v16")
    a("v_lshlrev_b32 v17, 4, v17")
    a(f"v_lshl_add_u32 v16, v{vG}, 10, v16")
    a(f"v_lshl_add_u32 v17, v{vG}, 10, v17")
    a("s_waitcnt lgkmcnt(0)")
    a(f"s_mov_b32 s{SRD['wq']}, s{PTR['wo']}")
    a(f"s_and_b32 s{SRD['wq']+1}, s{PTR['wo']+1}, 0xffff")
    a("s_barrier")
    dma(8, lambda i: 16 + ((i >> 1) & 1), "wq", 59, 4096)
    a("s_branch L_K_MAIN")

a.label("L_VW")
a("s_setprio 3")
a(f"s_cmp_lg_u32 s{sAW}, 0")
a("s_cbranch_scc1 L_V_NZ")
a(f"v_lshl_add_u32 v13, v0, 2, v{vSC}")
a("v_mov_b32 v14, 1.0")
a(f"v_cmp_eq_u32 vcc, {(C_ONE-SC)//4}, v0")
a("v_cndmask_b32 v14, 0, v14, vcc")
a("ds_write_b32 v13, v14")
a(f"ds_write_b32 v13, v{vZ} offset:256")
a(f"ds_write_b32 v13, v{vZ} offset:512")
a.label("L_V_NZ")
a(f"s_lshl_b32 s60, s{sAW}, 12")
a(f"s_add_u32 m0, s60, {L_WQ}")
a(f"s_lshl_b32 s59, s{sHKV}, 10")
a(f"s_lshl_b32 s60, s{sB}, 7")
a("s_add_u32 s59, s59, s60")
a(f"s_lshl_b32 s60, s{sS}, 20")
a("s_add_u32 s59, s59, s60")
a(f"s_lshl_b32 s60, s{sAW}, 18")
a("s_add_u32 s59, s59, s60")
src128(74, 8192, 14)
a("v_lshrrev_b32 v15, 5, v0")
a("v_lshlrev_b32 v15, 10, v15")
a("v_and_b32 v14, 31, v0")
a("v_lshl_add_u32 v15, v14, 3, v15")
a(f"s_lshl_b32 s60, s{sS}, 8")
a("v_add_u32 v15, s60, v15")
a(f"s_lshl_b32 s60, s{sAW}, 11")
a(f"s_lshl_b32 s61, s{sW}, 10")
a("s_waitcnt lgkmcnt(0)")
srd_lo("x"); srd_lo("wq")
a(f"buffer_load_dwordx4 v[16:19], v{vL16}, {R('x')}, s60 offen")
a(f"buffer_load_dwordx4 v[20:23], v{vL16}, {R('x')}, s60 offen offset:1024")
a(f"buffer_load_dwordx2 v[64:65], v15, {R('x')}, s60 offen")
dma(4, lambda i: 74 + (i & 1), "wq", 59, 65536)
srd_lo("ws")
a(f"buffer_load_dword v6, v{vZ}, {R('ws')}, 0 offen sc1")
a("s_barrier")
if STAMPS:
    a("v_mov_b32 v240, s92")
a(f"s_mul_i32 s60, s{sAW}, {2*Y_STR}")
a(f"s_add_u32 s60, s60, {L_Y}")
a("v_lshrrev_b32 v15, 5, v0")
a(f"v_mul_u32_u24 v15, {Y_STR}, v15")
a("v_and_b32 v14, 31, v0")
a("v_lshl_add_u32 v15, v14, 3, v15")
a("v_add_u32 v15, s60, v15")
a("s_mov_b32 s98, 0"); a("s_mov_b32 s99, -1")
a(f"s_lshl_b32 s60, s{sAW}, 1")
tr_swz_addr(70, 128, 60, 0, 14, 24, base_imm=L_WQ)
B_addr(71, L_Y, Y_STR, 14)
a("v_and_b32 v72, 7, v0")
a("v_lshlrev_b32 v72, 17, v72")
a(f"v_lshl_add_u32 v72, v{vG}, 5, v72")
a("v_bfe_u32 v14, v0, 3, 1")
a("v_lshl_add_u32 v72, v14, 4, v72")
a(f"s_lshl_b32 s62, s{sHKV}, 2")
a(f"s_add_u32 s62, s62, s{sS}")
a("s_lshl_b32 s62, s62, 12")
a(f"s_lshl_b32 s60, s{sB}, 9")
a("s_add_u32 s62, s62, s60")
a(f"s_lshl_b32 s60, s{sAW}, 7")
a("s_add_u32 s62, s62, s60")
a(f"s_add_u32 s62, s62, {WS_QP}")
a("s_mov_b32 s100, 0xff00ff00"); a("s_mov_b32 s101, 0xff00ff00")
a("s_waitcnt vmcnt(6)")
def st0():
    for i in range(4): unpack(16+i, 24+2*i, 25+2*i)
    row_stats(24, 40, 55)
def st1():
    for i in range(4): unpack(20+i, 32+2*i, 33+2*i)
    row_stats(32, 52, 94)
A_, B_ = capture(st0), capture(st1)
for x_, y_ in zip(A_, B_):
    a.items += [x_, y_]
a("v_cndmask_b32 v40, v40, v52, s[98:99]")
a("v_cndmask_b32 v41, v41, v53, s[98:99]")
rnd2(40, 41, 42)
sd_of(41, 42)
rcp_nr(42, 41, 43)
a("s_waitcnt vmcnt(5)")
unpack(64, 66, 67); unpack(65, 68, 69)
for i in range(4):
    a(f"v_sub_f32 v{66+i}, v{66+i}, v40")
rnd2(66, 67, 44); rnd2(68, 69, 45)
for i in range(4):
    a(f"v_mul_f32 v{44+i}, v{66+i}, v42")
for i in range(4):
    a(f"v_fma_f32 v{66+i}, -v{44+i}, v41, v{66+i}")
for i in range(4):
    a(f"v_fma_f32 v{66+i}, v{66+i}, v42, v{44+i}")
a("v_cvt_pk_bf16_f32 v44, v66, v67")
a("v_cvt_pk_bf16_f32 v45, v68, v69")
a("ds_write_b64 v15, v[44:45]")
a("s_waitcnt vmcnt(1)")
set_flag(F_LN1)
a("s_waitcnt vmcnt(0)")
a("v_add_u32 v53, 1, v6")
a("v_add_u32 v55, 1, v6")
a(f"v_readfirstlane_b32 s{sTAG}, v53")
stamp(1)
lds_wait4(F_LN1, 16)
for kk in range(4):
    a(f"ds_read_b128 v[{16+kk*4}:{19+kk*4}], v71 offset:{kk*64}")
    for hh in range(2):
        a(f"ds_read_b64_tr_b16 v[{32+kk*4+hh*2}:{33+kk*4+hh*2}], v70 offset:{kk*4096+hh*512}")
for kk in range(4):
    a(f"s_waitcnt lgkmcnt({(3-kk)*3})")
    c = "0" if kk == 0 else "v[56:59]"
    a(f"v_mfma_f32_16x16x32_bf16 v[56:59], v[{32+kk*4}:{35+kk*4}], v[{16+kk*4}:{19+kk*4}], {c}")
a(f"ds_write_b32 v{vSC}, v53 offset:{F_TAG-SC}")
a("v_cndmask_b32 v52, v56, v58, s[100:101]")
a("v_cndmask_b32 v54, v57, v59, s[100:101]")
a(f"buffer_store_dwordx4 v[52:55], v72, {R('ws')}, s62 offen sc1")
a("s_lshl_b32 s59, s63, 14")
a(f"s_lshl_b32 s60, s{sAW}, 10")
a("s_add_u32 s59, s59, s60")
a(f"s_add_u32 s64, s59, {WS_QP}")
for i in range(1, 4): a(f"s_add_u32 s{64+i}, s{63+i}, 4096")
a(f"s_lshl_b32 s60, s{sAW}, 8")
a(f"s_add_u32 s60, s60, {L_QL}")
a("v_lshl_add_u32 v73, v0, 2, s60")
if QACK: a("s_waitcnt vmcnt(0)")
set_flag(F_Q)
stamp(2)
lds_wait4(F_Q, 16)
a(f"s_sleep {SL_Q}")
a.label("L_QG")
for i in range(4):
    a(f"buffer_load_dwordx4 v[{32+i*4}:{35+i*4}], v{vL16}, {R('ws')}, s{64+i} offen sc1")
set_flag(F_GI)
budget()
a("s_waitcnt vmcnt(0)")
a(f"v_cmp_eq_u32 s[56:57], s{sTAG}, v33")
for r in (3, 5, 7, 9, 11, 13, 15):
    a(f"v_cmp_eq_u32 vcc, s{sTAG}, v{32+r}")
    a("s_and_b64 s[56:57], s[56:57], vcc")
a("s_cmp_eq_u64 s[56:57], -1")
a("s_cbranch_scc0 L_QG")
a("v_add_f32 v48, v32, v36")
a("v_add_f32 v49, v34, v38")
a("v_add_f32 v50, v40, v44")
a("v_add_f32 v51, v42, v46")
a("v_pk_add_f32 v[48:49], v[48:49], v[50:51]")
a("v_cvt_pk_bf16_f32 v48, v48, v49")
a("ds_write_b32 v73, v48")
a("v_mov_b32 v14, 2")
set_flag(F_Q, 14)
stamp(5)
a("s_setprio 1")
a(f"buffer_load_dwordx4 v[{vX}:{vX+3}], v{vL16}, {R('x')}, s61 offen")
srd("v")
a(f"s_and_b32 s60, s{sAW}, 1")
a("s_lshl_b32 s60, s60, 3")
a(f"v_lshlrev_b32 v13, 1, v{vG}")
a("v_or_b32 v13, s60, v13")
a(f"v_xor_b32 v13, v13, v{vC}")
a("v_lshlrev_b32 v13, 4, v13")
a(f"v_lshl_add_u32 v13, v{vG}, 8, v13")
a(f"s_lshl_b32 s60, s{sAW}, 11")
a(f"s_add_u32 s60, s60, {NVK*8192}")
a("s_add_u32 s59, s58, s60")
a(f"s_add_u32 m0, s60, {L_V}")
if WOFILL:
    a(f"s_cmp_ge_u32 s{sS}, 2")
    a("s_cbranch_scc1 L_V_NOWOR")
    a(f"s_lshl_b32 s60, s{sAW}, 2")
    tr_swz_addr(70, 256, 60, 0, 14, 16)
    tr_swz_addr(71, 256, 60, 1, 14, 16)
    lds_wait4(F_W, 16, sleep=1)
    for nt_ in range(2):
        for kk in range(4):
            for hh in range(2):
                r = vWO + (nt_*4+kk)*4 + hh*2
                a(f"ds_read_b64_tr_b16 v[{r}:{r+1}], v{70+nt_} offset:{kk*8192 + hh*1024}")
        a("s_waitcnt lgkmcnt(0)")
    set_flag(F_WR)
    lds_wait4(F_WR, 16)
    a.label("L_V_NOWOR")
a(f"s_cmp_lg_u32 s{sW}, 5")
a("s_cbranch_scc1 L_V_NOZ")
a("s_and_b32 s60, s2, 31")
a("s_cmp_lg_u32 s60, 24")
a("s_cbranch_scc1 L_V_NOZ")
for i in range(4): a(f"v_mov_b32 v{16+i}, 0")
a(f"s_mul_i32 s60, s{sB}, 3072")
a(f"s_add_u32 s60, s60, {WS_HACC}")
for j in range(3):
    a(f"buffer_store_dwordx4 v[16:19], v{vL16}, {R('ws')}, s60 offen offset:{j*1024} sc1")
a(f"s_lshl_b32 s60, s{sB}, 3")
a(f"s_add_u32 s60, s60, {WS_ZF}")
a("s_waitcnt vmcnt(0)")
a("s_mov_b64 exec, 1")
a(f"buffer_store_dword v53, v{vZ}, {R('ws')}, s60 offen sc1")
a("s_mov_b64 exec, -1")
a.label("L_V_NOZ")
step = lambda i: 1024 if i % 2 == 0 else 7168
lds_wait4(F_KI, 16, sleep=1)
dma(16-2*NVK, 13, "v", 59, step, step)
stamp(3)
vPR, vOPA, vTR = 120, 121, 122
a("v_and_b32 v15, 3, v0")
a(f"v_mul_u32_u24 v{vPR}, {P_STR}, v15")
a(f"v_add_u32 v{vPR}, {L_P}, v{vPR}")
a(f"v_lshl_add_u32 v{vPR}, v{vG}, 4, v{vPR}")
a(f"s_lshl_b32 s60, s{sHKV}, 2")
a(f"v_add_u32 v{vOPA}, s60, v15")
a("s_lshr_b32 s60, s2, 3")
a(f"v_lshlrev_b32 v{vOPA}, 5, v{vOPA}")
a(f"v_add_u32 v{vOPA}, s60, v{vOPA}")
a(f"v_lshlrev_b32 v{vOPA}, 10, v{vOPA}")
a("v_bfe_u32 v15, v0, 3, 1")
a(f"v_lshl_add_u32 v{vOPA}, v15, 7, v{vOPA}")
a(f"v_lshl_add_u32 v{vOPA}, v{vG}, 5, v{vOPA}")
a("v_bfe_u32 v15, v0, 2, 1")
a(f"v_lshl_add_u32 v{vOPA}, v15, 4, v{vOPA}")
a("v_bfe_u32 v14, v0, 2, 2")
a(f"v_and_b32 v15, 1, v{vG}")
a("v_lshl_add_u32 v15, v15, 2, v14")
a("v_lshlrev_b32 v15, 1, v15")
a("v_bfe_u32 v16, v0, 1, 1")
a("v_xor_b32 v15, v15, v16")
a(f"v_lshl_add_u32 v14, v{vG}, 3, v14")
a("v_lshlrev_b32 v14, 8, v14")
a("v_and_b32 v16, 1, v0")
a("v_lshl_add_u32 v14, v16, 3, v14")
for dt in range(2):
    a(f"s_lshl_b32 s60, s{sAW}, 2")
    if dt: a("s_add_u32 s60, s60, 2")
    a("v_xor_b32 v16, s60, v15")
    a(f"v_lshl_add_u32 v{vTR+dt}, v16, 4, v14")
a("s_mov_b32 s94, 0x00f000f0"); a("s_mov_b32 s95, 0x00f000f0")
a("s_mov_b32 s96, 0x0f000f00"); a("s_mov_b32 s97, 0x0f000f00")
a("s_mov_b32 s98, 0xf000f000"); a("s_mov_b32 s99, 0xf000f000")
a(f"s_lshl_b32 s60, s{sAW}, 8")
a(f"s_add_u32 s60, s60, {WS_OP}")
a(f"v_mov_b32 v105, s{sTAG}")
a(f"v_mov_b32 v107, s{sTAG}")
a(f"s_lshl_b32 s61, s{sHKV}, 5")
a("s_lshr_b32 s62, s2, 3")
a("s_add_u32 s61, s61, s62")
a("s_lshl_b32 s61, s61, 7")
a(f"s_add_u32 s61, s61, {WS_OF}")
a(f"s_lshl_b32 s62, s{sAW}, {2 if E1F == 3 else 15}")
a("s_add_u32 s61, s61, s62")
lds_wait4(F_B, 16, sleep=1)
vP = 16
for kk in range(8):
    a(f"ds_read_b128 v[{vP+kk*4}:{vP+kk*4+3}], v{vPR} offset:{kk*64}")
stamp(9)
vA = 48
vO = 96
def pv_reads(kk):
    base = vA + (kk % 6)*8
    for dt in range(2):
        for hh in range(2):
            r = base + dt*4 + hh*2
            a(f"ds_read_b64_tr_b16 v[{r}:{r+1}], v{vTR+dt} offset:{kk*8192 + hh*1024}")
def pv_mfma(kk, dt):
    base = vA + (kk % 6)*8
    c = "0" if kk == 0 else f"v[{vO+dt*4}:{vO+dt*4+3}]"
    a(f"v_mfma_f32_16x16x32_bf16 v[{vO+dt*4}:{vO+dt*4+3}], v[{base+dt*4}:{base+dt*4+3}], v[{vP+kk*4}:{vP+kk*4+3}], {c}")
extra = 0
for gi, grp in enumerate((list(range(NVK)), list(range(NVK, 7)), [7])):
    last = grp[-1]
    if gi == 0:
        lds_wait4(F_VK, 108)
    else:
        a(f"v_mov_b32 v14, {last+1}")
        a(f"s_waitcnt vmcnt({14-2*last+extra})")
        set_flag(F_V, 14)
        lds_wait4(F_V, 108, minval=last+1)
    if E1F and gi == E1F:
        a("s_mov_b64 exec, 1")
        a(f"buffer_store_dword v105, v{vZ}, {R('ws')}, s61 offen sc1")
        a("s_mov_b64 exec, -1")
        extra = 1
    pend = list(grp)
    issued = []
    for kk in pend[:3]:
        pv_reads(kk); issued.append(kk)
    for idx, kk in enumerate(pend):
        after = len(issued) - 1 - idx
        for dt in range(2):
            a(f"s_waitcnt lgkmcnt({after*4 + 2 - 2*dt})")
            pv_mfma(kk, dt)
        if idx + 3 < len(pend):
            pv_reads(pend[idx+3]); issued.append(pend[idx+3])
a("v_mov_b32 v14, 9")
a(f"v_cndmask_b32 v104, v{vO}, v{vO+2}, s[94:95]")
a(f"v_cndmask_b32 v106, v{vO+1}, v{vO+3}, s[94:95]")
a(f"v_cndmask_b32 v104, v104, v{vO+4}, s[96:97]")
a(f"v_cndmask_b32 v106, v106, v{vO+5}, s[96:97]")
a(f"v_cndmask_b32 v104, v104, v{vO+6}, s[98:99]")
a(f"v_cndmask_b32 v106, v106, v{vO+7}, s[98:99]")
a(f"buffer_store_dwordx4 v[104:107], v{vOPA}, {R('ws')}, s60 offen sc1")
if E1F == 3:
    a("s_mov_b64 exec, 1")
    a(f"buffer_store_dword v105, v{vZ}, {R('ws')}, s61 offen sc1")
    a("s_mov_b64 exec, -1")
stamp(4)
a(f"s_cmp_ge_u32 s{sS}, 2")
a("s_cbranch_scc1 L_V_NOTWO")

a(f"s_lshl_b32 s58, s{sB}, 1")
a(f"s_add_u32 s58, s58, s{sS}")
a("s_lshl_b32 s64, s58, 3")
a(f"s_add_u32 s64, s64, s{sHKV}")
a("s_lshl_b32 s64, s64, 7")
a(f"s_add_u32 s64, s64, {WS_FL}")
a("s_lshr_b32 s63, s58, 2")
a("s_lshl_b32 s63, s63, 2")
a(f"s_add_u32 s63, s63, s{sAW}")
a("s_waitcnt vmcnt(0)")
set_flag(F_V, 14)
B_addr(14, L_OL, OL_STR, 15)
a(f"s_mul_i32 s60, s{sAW}, {8*RL_STR}")
a(f"s_add_u32 s60, s60, {L_RL}")
a("v_and_b32 v15, 7, v0")
a(f"v_mul_u32_u24 v15, {RL_STR}, v15")
a("v_bfe_u32 v16, v0, 3, 1")
a("v_lshl_add_u32 v15, v16, 6, v15")
a(f"v_lshl_add_u32 v15, v{vG}, 4, v15")
a("v_add_u32 v15, s60, v15")
a("v_bfe_u32 v16, v0, 2, 2")
a("v_and_b32 v17, 3, v0")
a(f"v_mul_u32_u24 v18, {RL_STR}, v{vG}")
a("v_lshl_add_u32 v18, v16, 5, v18")
a("v_lshl_add_u32 v18, v17, 2, v18")
a("v_add_u32 v18, s60, v18")
a(f"v_mov_b32 v19, {C_ONE}")
a(f"v_mov_b32 v20, {C_ZERO}")
a("v_cmp_eq_u32 s[56:57], 3, v17")
a("v_cmp_eq_u32 s[58:59], 2, v17")
for j in range(3):
    for bh in range(2):
        r = 24 + j*2 + bh
        a(f"v_add_u32 v{r}, {j*12 + bh*4*RL_STR}, v18")
        a(f"v_cndmask_b32 v{r}, v{r}, v19, s[56:57]")
        if j == 2:
            a(f"v_cndmask_b32 v{r}, v{r}, v20, s[58:59]")
a(f"v_mul_u32_u24 v21, 3072, v{vG}")
a("v_and_b32 v22, 15, v0")
a("v_lshl_add_u32 v21, v22, 2, v21")
a("s_lshl_b32 s63, s63, 6")
a(f"s_add_u32 s63, s63, {WS_HACC}")
a("s_add_u32 s61, s63, 12288")
vA = vWO
if not WOFILL:
    a(f"s_lshl_b32 s60, s{sAW}, 2")
    tr_swz_addr(70, 256, 60, 0, 30, 31, base_imm=L_K)
    tr_swz_addr(71, 256, 60, 1, 30, 31, base_imm=L_K)
    lds_wait4(F_W, 32)
    for nt_ in range(2):
        for kk in range(4):
            for hh in range(2):
                r = vWO + (nt_*4+kk)*4 + hh*2
                a(f"ds_read_b64_tr_b16 v[{r}:{r+1}], v{70+nt_} offset:{kk*8192 + hh*1024}")
        a("s_waitcnt lgkmcnt(0)")
stamp(10)
lds_wait4(F_C, 64)
stamp(5)
vB = 64
for kk in range(4):
    a(f"ds_read_b128 v[{vB+kk*4}:{vB+kk*4+3}], v14 offset:{kk*64}")
for kk in range(4):
    a(f"s_waitcnt lgkmcnt({3-kk})")
    for nt_ in range(2):
        c = "0" if kk == 0 else f"v[{80+nt_*4}:{83+nt_*4}]"
        r = vA + (nt_*4+kk)*4
        a(f"v_mfma_f32_16x16x32_bf16 v[{80+nt_*4}:{83+nt_*4}], v[{r}:{r+3}], v[{vB+kk*4}:{vB+kk*4+3}], {c}")
for i in range(4):
    a(f"v_cndmask_b32 v{88+i}, v{80+i}, v{84+i}, s[100:101]")
a("ds_write_b128 v15, v[88:91]")
for r in range(6):
    a(f"ds_read_b32 v{92+r}, v{24+r}")
for j in range(3):
    for bh in range(2):
        r = j*2 + bh
        a(f"s_waitcnt lgkmcnt({5-r})")
        a(f"buffer_atomic_add_f32 v{92+r}, v21, {R('ws')}, {'s63' if bh == 0 else 's61'} offen offset:{j*1024}")
a(f"s_cmp_lg_u32 s{sAW}, {99 if FLEARLY else 3}")
a("s_cbranch_scc1 L_V_NOFL")
a("s_mov_b64 exec, 1")
a(f"buffer_store_dword v105, v{vZ}, {R('ws')}, s64 offen sc1")
a("s_mov_b64 exec, -1")
a.label("L_V_NOFL")
stamp(6)
if STAMPS == 1:
    a("s_waitcnt vmcnt(0)")
    stamp(7)
a("s_branch L_FIN")


a.label("L_K_MAIN")
if STAMPS:
    a("v_mov_b32 v240, s92")
srd_lo("k"); srd_lo("x"); srd_lo("ws"); srd("v")
a(f"buffer_load_dwordx4 v[{vX}:{vX+3}], v{vL16}, {R('x')}, s61 offen")
if CODEPF:
    a("s_getpc_b64 s[68:69]")
    a.label("L_PCREF")
    a("s_sub_u32 s68, s68, L_PCREF-L_VW")
    a("s_subb_u32 s69, s69, 0")
    a("s_and_b32 s68, s68, 0xfffffff0")
    a("s_lshr_b32 s60, s2, 3")
    a("s_lshl_b32 s60, s60, 2")
    a(f"s_add_u32 s60, s60, s{sW}")
    a(f"s_cmp_ge_u32 s60, CODE_KB")
    a("s_cbranch_scc1 L_K_NOCP")
    a("s_lshl_b32 s60, s60, 10")
    a(f"v_add_u32 v14, s60, v{vL16}")
    a("global_load_dwordx4 v[20:23], v14, s[68:69]")
    a.label("L_K_NOCP")
vQA, vMXA, vMXW, vPW, vSTA, vQW = 120, 121, 122, 123, 124, 125
vKR = 126
a("v_and_b32 v15, 3, v0")
a(f"v_lshlrev_b32 v{vQA}, 8, v15")
a(f"v_lshl_add_u32 v{vQA}, v{vG}, 4, v{vQA}")
a(f"v_add_u32 v{vQA}, {L_QL}, v{vQA}")
a(f"v_lshl_add_u32 v{vMXA}, v15, 4, v{vSC}")
a(f"s_lshl_b32 s60, s{sW}, 2")
a(f"v_add_u32 v{vMXW}, s60, v{vMXA}")
a(f"v_mul_u32_u24 v14, {P_STR}, v15")
a(f"v_add_u32 v14, {L_P}, v14")
a(f"v_bfe_u32 v{vPW}, v0, 2, 2")
a(f"v_lshlrev_b32 v{vPW}, 5, v{vPW}")
a(f"v_lshl_add_u32 v{vPW}, v{vG}, 3, v{vPW}")
a(f"s_lshl_b32 s60, s{sW}, 7")
a(f"v_add3_u32 v{vPW}, v{vPW}, s60, v14")
a(f"s_lshl_b32 s60, s{sHKV}, 2")
a(f"v_add_u32 v{vSTA}, s60, v15")
a("s_lshr_b32 s60, s2, 3")
a(f"v_lshlrev_b32 v{vSTA}, 5, v{vSTA}")
a(f"v_add_u32 v{vSTA}, s60, v{vSTA}")
a(f"v_lshlrev_b32 v{vSTA}, 4, v{vSTA}")
a(f"s_lshl_b32 s60, s{sW}, 8")
a(f"s_add_u32 s60, s60, {L_QL}")
a(f"v_lshl_add_u32 v{vQW}, v0, 2, s60")
a(f"s_lshl_b32 s60, s{sW}, 14")
a(f"s_add_u32 s60, s60, {L_K}")
for kk in range(4):
    a(f"v_xor_b32 v{vKR+kk}, {kk*4}, v{vG}")
    a(f"v_xor_b32 v{vKR+kk}, v{vKR+kk}, v{vC}")
    a(f"v_lshlrev_b32 v{vKR+kk}, 4, v{vKR+kk}")
    a(f"v_lshl_add_u32 v{vKR+kk}, v{vC}, 8, v{vKR+kk}")
    a(f"v_add_u32 v{vKR+kk}, s60, v{vKR+kk}")
a("s_mov_b32 s94, 0x00f000f0"); a("s_mov_b32 s95, 0x00f000f0")
a("s_mov_b32 s96, 0x0f000f00"); a("s_mov_b32 s97, 0x0f000f00")
a("s_mov_b32 s98, 0xf000f000"); a("s_mov_b32 s99, 0xf000f000")
a("s_lshl_b32 s59, s63, 14")
a(f"s_lshl_b32 s60, s{sW}, 10")
a("s_add_u32 s59, s59, s60")
a(f"s_add_u32 s64, s59, {WS_QP}")
for i in range(1, 4): a(f"s_add_u32 s{64+i}, s{63+i}, 4096")
for j in range(4):
    a(f"v_xor_b32 v{16+j}, {j*4}, v{vG}")
    a(f"v_xor_b32 v{16+j}, v{16+j}, v{vC}")
    a(f"v_lshlrev_b32 v{16+j}, 4, v{16+j}")
    a(f"v_lshl_add_u32 v{16+j}, v{vG}, 8, v{16+j}")
a(f"s_lshl_b32 s60, s{sW}, 14")
a("s_add_u32 s68, s60, s58")
a(f"s_add_u32 m0, s60, {L_K}")
a(f"s_add_u32 s68, s68, {NK1*1024}")
a(f"s_add_u32 m0, m0, {NK1*1024}")
a(f"s_and_b32 s60, s{sW}, 1")
a("s_lshl_b32 s60, s60, 3")
a(f"v_lshlrev_b32 v13, 1, v{vG}")
a("v_or_b32 v13, s60, v13")
a(f"v_xor_b32 v13, v13, v{vC}")
a("v_lshlrev_b32 v13, 4, v13")
a(f"v_lshl_add_u32 v13, v{vG}, 8, v13")
a(f"s_lshl_b32 s61, s{sW}, 11")
a("s_add_u32 s69, s58, s61")
NTOT = 16 + 2*NVK
def stream_item(i):
    if i < 16:
        a(f"buffer_load_dwordx4 v{16 + (i & 3)}, {R('k')}, s68 offen {NT} lds")
        if i < 15:
            a("s_add_u32 m0, m0, 1024")
            a("s_add_u32 s68, s68, 1024")
        else:
            a("s_mov_b32 m0, s61")
    else:
        j = i - 16
        a(f"buffer_load_dwordx4 v13, {R('v')}, s69 offen {NT} lds")
        st_ = 1024 if j % 2 == 0 else 7168
        a(f"s_add_u32 m0, m0, {st_}")
        a(f"s_add_u32 s69, s69, {st_}")
for i in range(NK1, NTOT):
    a(f"ds_read_b128 v[24:27], v{vSC} offset:{F_GI-SC}")
    a(f"s_waitcnt vmcnt({THR}) lgkmcnt(0)")
    a("v_and_b32 v24, v24, v25")
    a("v_and_b32 v26, v26, v27")
    a("v_and_b32 v24, v24, v26")
    a("v_readfirstlane_b32 s54, v24")
    a("s_cmp_lg_u32 s54, 0")
    a(f"s_cbranch_scc1 L_KF{i}")
    stream_item(i)
a("s_branch L_KFE")
for i in range(NK1, NTOT):
    a.label(f"L_KF{i}")
    stream_item(i)
a.label("L_KFE")
set_flag(F_KI)
stamp(1)
vK = 132
lds_wait4(F_Q, 56, minval=2, sleep=1)
a(f"ds_read_b32 v14, v{vSC} offset:{F_TAG-SC}")
stamp(2)
a("s_setprio 3")
vQ = 80
for kk in range(4):
    a(f"ds_read_b128 v[{vQ+kk*4}:{vQ+kk*4+3}], v{vQA} offset:{kk*64}")
vS = 96
a("s_waitcnt lgkmcnt(4)")
a(f"v_readfirstlane_b32 s{sTAG}, v14")
for t in range(4):
    a(f"s_waitcnt vmcnt({(3-t)*4 + 2*NVK})")
    for kk in range(4):
        r = vK + (t*4+kk)*4
        a(f"ds_read_b128 v[{r}:{r+3}], v{vKR+kk} offset:{t*4096}")
    for kk in range(4):
        a(f"s_waitcnt lgkmcnt({3-kk})")
        r = vK + (t*4+kk)*4
        c = "0" if kk == 0 else f"v[{vS+t*4}:{vS+t*4+3}]"
        a(f"v_mfma_f32_16x16x32_bf16 v[{vS+t*4}:{vS+t*4+3}], v[{r}:{r+3}], v[{vQ+kk*4}:{vQ+kk*4+3}], {c}")
vE = 112
for i in range(4):
    a(f"v_cndmask_b32 v{vE+i}, v{vS+i}, v{vS+4+i}, s[94:95]")
for i in range(4):
    a(f"v_cndmask_b32 v{vE+i}, v{vE+i}, v{vS+8+i}, s[96:97]")
for i in range(4):
    a(f"v_cndmask_b32 v{vE+i}, v{vE+i}, v{vS+12+i}, s[98:99]")
rnd2(vE, vE+1, 116); rnd2(vE+2, vE+3, 117)
a(f"s_mov_b32 s55, {SCALE}")
for i in range(4):
    a(f"v_mul_f32 v{vE+i}, s55, v{vE+i}")
rnd2(vE, vE+1, 116); rnd2(vE+2, vE+3, 117)
vM, vL = 118, 119
a(f"v_max_f32 v{vM}, v{vE}, v{vE+1}")
a(f"v_max3_f32 v{vM}, v{vM}, v{vE+2}, v{vE+3}")
head_reduce(vM, 119, "max")
a(f"ds_write_b32 v{vMXW}, v{vM} offset:{L_MX-SC}")
set_flag(F_A)
lds_wait4(F_A, 56)
a(f"ds_read_b128 v[56:59], v{vMXA} offset:{L_MX-SC}")
a("s_waitcnt lgkmcnt(0)")
a(f"v_max3_f32 v{vM}, v56, v57, v58")
a(f"v_max_f32 v{vM}, v{vM}, v59")
a(f"s_mov_b32 s55, {LOG2E}")
for i in range(4):
    a(f"v_sub_f32 v{vE+i}, v{vE+i}, v{vM}")
for i in range(4):
    a(f"v_mul_f32 v{vE+i}, s55, v{vE+i}")
for i in range(4):
    a(f"v_exp_f32 v{vE+i}, v{vE+i}")
a(f"v_add_f32 v{vL}, v{vE}, v{vE+1}")
a(f"v_add_f32 v56, v{vE+2}, v{vE+3}")
a(f"v_add_f32 v{vL}, v{vL}, v56")
a(f"v_cvt_pk_bf16_f32 v116, v{vE}, v{vE+1}")
a(f"v_cvt_pk_bf16_f32 v117, v{vE+2}, v{vE+3}")
a(f"ds_write_b64 v{vPW}, v[116:117]")
head_reduce(vL, 56, "add")
a(f"ds_write_b32 v{vMXW}, v{vL} offset:{L_SUM-SC}")
set_flag(F_B)
lds_wait4(F_B, 56)
a(f"ds_read_b128 v[56:59], v{vMXA} offset:{L_SUM-SC}")
a("s_waitcnt lgkmcnt(0)")
a(f"v_add_f32 v{vL}, v56, v57")
a("v_add_f32 v58, v58, v59")
a(f"v_add_f32 v58, v{vL}, v58")
a(f"v_mov_b32 v56, v{vM}")
a(f"v_mov_b32 v57, s{sTAG}")
a(f"v_mov_b32 v59, s{sTAG}")
a(f"s_lshl_b64 s[56:57], 1, s{sW}")
a(f"s_mov_b32 s61, {WS_ST}")
a("s_mov_b64 exec, s[56:57]")
a(f"buffer_store_dwordx4 v[56:59], v{vSTA}, {R('ws')}, s61 offen sc1")
a("s_mov_b64 exec, -1")
stamp(3)
a("s_setprio 0")
a(f"s_cmp_ge_u32 s{sS}, 2")
a("s_cbranch_scc1 L_K_NOTWO")

if not WOFILL:
    a(f"s_lshl_b32 s62, s{sB}, 1")
    a(f"s_add_u32 s62, s62, s{sS}")
    a("s_lshr_b32 s59, s62, 2")
    a("s_and_b32 s60, s62, 3")
    a(f"s_lshl_b32 s62, s{sHKV}, 2")
    a("s_add_u32 s60, s60, s62")
    a("s_lshl_b32 s60, s60, 17")
    a("s_lshl_b32 s59, s59, 8")
    a("s_add_u32 s59, s59, s60")
    a(f"s_lshl_b32 s60, s{sW}, 15")
    a("s_add_u32 s59, s59, s60")
    a(f"s_lshl_b32 s60, s{sW}, 13")
    a(f"s_add_u32 m0, s60, {L_K}")
    a(f"v_lshlrev_b32 v16, 1, v{vG}")
    a(f"v_xor_b32 v16, v16, v{vC}")
    a("v_xor_b32 v17, 8, v16")
    a("v_lshlrev_b32 v16, 4, v16")
    a("v_lshlrev_b32 v17, 4, v17")
    a(f"v_lshl_add_u32 v16, v{vG}, 10, v16")
    a(f"v_lshl_add_u32 v17, v{vG}, 10, v17")
    a(f"s_mov_b32 s{SRD['wq']}, s{PTR['wo']}")
    a(f"s_and_b32 s{SRD['wq']+1}, s{PTR['wo']+1}, 0xffff")
    dma(8, lambda i: 16 + ((i >> 1) & 1), "wq", 59, 4096)
def fl_load():
    if E1F == 3: a(f"buffer_load_dwordx4 v[60:63], v15, {R('ws')}, s61 offen sc1")
    else: a(f"buffer_load_dword v60, v15, {R('ws')}, s61 offen sc1")
a("s_waitcnt vmcnt(9)")
set_flag(F_VK)
a(f"s_lshl_b32 s58, s{sB}, 1")
a(f"s_add_u32 s58, s58, s{sS}")
a("s_and_b32 s58, s58, 3")
a(f"s_lshl_b32 s60, s{sHKV}, 2")
a("s_add_u32 s58, s58, s60")
a("s_setprio 3")
a("s_lshl_b32 s65, s58, 9")
a(f"s_lshl_b32 s60, s{sW}, 7")
a("s_add_u32 s65, s65, s60")
a(f"s_add_u32 s65, s65, {WS_ST}")
a("s_lshl_b32 s58, s58, 15")
a(f"s_lshl_b32 s60, s{sW}, 13")
a("s_add_u32 s58, s58, s60")
a(f"s_add_u32 s58, s58, {WS_OP}")
a("s_add_u32 s59, s58, 4096")
a(f"s_mul_i32 s60, s{sW}, {2*OL_STR}")
a(f"s_add_u32 s60, s60, {L_OL}")
a("v_lshl_add_u32 v13, v0, 2, s60")
a("v_and_b32 v14, 7, v0")
a("v_lshlrev_b32 v15, 7, v14")
a("v_lshlrev_b32 v14, 4, v14")
a(f"s_lshl_b32 s61, s{sHKV}, 12")
a(f"s_lshl_b32 s60, s{sW}, 10")
a("s_add_u32 s61, s61, s60")
a(f"s_add_u32 s61, s61, {WS_OF}")
a("s_mov_b32 s62, 0xff")
zflag_wait(64)
set_flag(F_W)
stamp(4)
vD = 16
def ld(i): a(f"buffer_load_dwordx4 v[{vD+i*4}:{vD+i*4+3}], v{vL16}, {R('ws')}, {'s58' if i < 4 else 's59'} offen offset:{(i%4)*1024} sc1")
a.label("L_E1")
fl_load()
budget()
a("s_waitcnt vmcnt(0)")
a(f"v_cmp_eq_u32 vcc, s{sTAG}, v60")
if E1F == 3:
    for r in (61, 62, 63):
        a(f"v_cmp_eq_u32 s[56:57], s{sTAG}, v{r}")
        a("s_and_b64 vcc, vcc, s[56:57]")
a("s_and_b32 s60, vcc_lo, s62")
a("s_cbranch_scc1 L_E1_GO")
if SL_P1: a(f"s_sleep {SL_P1}")
a("s_branch L_E1")
a.label("L_E1_GO")
for i in range(8):
    a(f"s_bitcmp1_b32 s60, {i}")
    a(f"s_cbranch_scc0 L_E1_l{i}")
    ld(i)
    a.label(f"L_E1_l{i}")
a("s_cmp_lg_u32 s60, s62")
a("s_cbranch_scc1 L_E1_NS")
a.label("L_E1_ST")
a(f"buffer_load_dwordx4 v[68:71], v14, {R('ws')}, s65 offen sc1")
a.label("L_E1_NS")
a("s_waitcnt vmcnt(0)")
for i in range(8):
    a(f"s_bitcmp1_b32 s60, {i}")
    a(f"s_cbranch_scc0 L_E1_c{i}")
    a(f"v_cmp_eq_u32 vcc, s{sTAG}, v{vD+i*4+1}")
    a(f"v_cmp_eq_u32 s[56:57], s{sTAG}, v{vD+i*4+3}")
    a("s_and_b64 vcc, vcc, s[56:57]")
    a("s_cmp_eq_u64 vcc, -1")
    a(f"s_cbranch_scc0 L_E1_c{i}")
    a(f"s_bitset0_b32 s62, {i}")
    a.label(f"L_E1_c{i}")
a("s_cmp_lg_u32 s62, 0")
a("s_cbranch_scc1 L_E1")
a(f"v_cmp_eq_u32 vcc, s{sTAG}, v69")
a(f"v_cmp_eq_u32 s[56:57], s{sTAG}, v71")
a("s_and_b64 vcc, vcc, s[56:57]")
a("s_mov_b32 s60, 0")
a(f"v_max_f32_dpp v72, v68, v68 quad_perm:[1,0,3,2] {DPPM}")
budget()
a("s_cmp_eq_u64 vcc, -1")
a("s_cbranch_scc0 L_E1_ST")
stamp(5)
a(f"v_max_f32_dpp v72, v72, v72 quad_perm:[2,3,0,1] {DPPM}")
a("v_sub_f32 v72, v68, v72")
a(f"v_mul_f32 v72, {LOG2E}, v72")
a("v_exp_f32 v72, v72")
a("v_mul_f32 v73, v72, v70")
a(f"v_add_f32_dpp v73, v73, v73 quad_perm:[1,0,3,2] {DPPM}")
a(f"v_add_f32_dpp v73, v73, v73 quad_perm:[2,3,0,1] {DPPM}")
a("v_rcp_f32 v74, v73")
a("v_mul_f32 v72, v72, v74")
for i in range(8):
    a(f"v_readlane_b32 s{66+i}, v72, {i}")
for i in range(8):
    bb = i // 4
    op = "v_mul_f32" if i % 4 == 0 else "v_fmac_f32"
    a(f"{op} v{56+bb*2}, s{66+i}, v{vD+i*4}")
    a(f"{op} v{57+bb*2}, s{66+i}, v{vD+i*4+2}")
a("v_cvt_pk_bf16_f32 v56, v56, v57")
a("v_cvt_pk_bf16_f32 v58, v58, v59")
a("ds_write_b32 v13, v56")
a(f"ds_write_b32 v13, v58 offset:{OL_STR}")
set_flag(F_C)
if FLEARLY:
    a(f"s_cmp_lg_u32 s{sW}, 3")
    a("s_cbranch_scc1 L_K_NOFL")
    lds_wait4(F_C, 60)
    a(f"s_lshl_b32 s60, s{sB}, 1")
    a(f"s_add_u32 s60, s60, s{sS}")
    a("s_lshl_b32 s60, s60, 3")
    a(f"s_add_u32 s60, s60, s{sHKV}")
    a("s_lshl_b32 s60, s60, 7")
    a(f"s_add_u32 s60, s60, {WS_FL}")
    a(f"v_mov_b32 v60, s{sTAG}")
    a("s_mov_b64 exec, 1")
    a(f"buffer_store_dword v60, v{vZ}, {R('ws')}, s60 offen sc1")
    a("s_mov_b64 exec, -1")
    a.label("L_K_NOFL")
stamp(6)
a(f"s_cmp_lg_u32 s{sS}, 0")
a("s_cbranch_scc1 L_FIN")

srd("b2"); srd("out")
a("v_and_b32 v13, 7, v0")
a("v_lshlrev_b32 v14, 2, v13")
a(f"s_lshl_b32 s58, s{sHKV}, 7")
a(f"s_lshl_b32 s59, s{sW}, 5")
a("s_add_u32 s58, s58, s59")
a(f"s_lshl_b32 s59, s{sB}, 10")
a("s_add_u32 s59, s59, s58")
a(f"buffer_load_dword v15, v14, {R('b2')}, s58 offen")
a("s_lshl_b32 s60, s63, 2")
a(f"s_add_u32 s60, s60, s{sW}")
a("s_lshl_b32 s60, s60, 12")
a(f"s_add_u32 s60, s60, {WS_OUTP}")
a("v_lshlrev_b32 v16, 3, v13")
a("v_and_b32 v17, 31, v0")
a("v_lshlrev_b32 v17, 4, v17")
a("v_mov_b32 v18, 0")
a("v_mov_b32 v19, 0")
a("v_mov_b32 v20, 1.0")
a("v_cmp_gt_u32 vcc, 32, v0")
a("v_cndmask_b32 v20, 0, v20, vcc")
a("s_waitcnt vmcnt(0)")
unpack(15, 22, 23)
vD = 24
def ld(i):
    if i < 3: a(f"buffer_load_dwordx4 v[{vD+i*4}:{vD+i*4+3}], v{vL16}, {R('ws')}, s60 offen offset:{i*1024} sc1")
    elif i == 3: a(f"buffer_load_dwordx4 v[{vD+12}:{vD+15}], v17, {R('ws')}, s60 offen offset:3072 sc1")
    else: a(f"buffer_load_dwordx2 v[40:41], v16, {R('ws')}, s60 offen offset:{NMLP*128} sc1")
def tg(i): return [vD+i*4+1, vD+i*4+3] if i < 4 else [41]
def cons(i):
    if i < 3:
        a(f"v_add_f32 v18, v18, v{vD+i*4}")
        a(f"v_add_f32 v19, v19, v{vD+i*4+2}")
    elif i == 3:
        a(f"v_fmac_f32 v18, v20, v{vD+12}")
        a(f"v_fmac_f32 v19, v20, v{vD+14}")
    else:
        unpack(40, 42, 43)
if E3F:
    a(f"s_lshr_b32 s61, s{sB}, 1")
    a("s_lshl_b32 s61, s61, 12")
    a(f"s_add_u32 s61, s61, {WS_RF}")
    a(f"v_min_u32 v44, {NMLP-1}, v0")
    a("v_lshlrev_b32 v44, 7, v44")
    a.label("L_RF")
    a(f"buffer_load_dword v45, v44, {R('ws')}, s61 offen sc1")
    budget()
    a("s_waitcnt vmcnt(0)")
    a(f"v_cmp_eq_u32 vcc, s{sTAG}, v45")
    a("s_cmp_eq_u64 vcc, -1")
    a("s_cbranch_scc1 L_RF_OK")
    if SL_RED: a(f"s_sleep {SL_RED}")
    a("s_branch L_RF")
    a.label("L_RF_OK")
    if SL_E3: a(f"s_sleep {SL_E3}")
    stamp(11)
masked_gather(5, ld, tg, cons, 1 if E3F else SL_RED)
stamp(9)
a(f"v_add_f32_dpp v18, v18, v18 row_ror:8 {DPPM}")
a(f"v_add_f32_dpp v19, v19, v19 row_ror:8 {DPPM}")
for sw in ("16", "32"):
    a("v_mov_b32 v24, v18")
    a("v_mov_b32 v25, v19")
    a(f"v_permlane{sw}_swap_b32 v18, v24")
    a(f"v_permlane{sw}_swap_b32 v19, v25")
    a("v_add_f32 v18, v18, v24")
    a("v_add_f32 v19, v19, v25")
rnd2(18, 19, 24)
a("v_add_f32 v18, v18, v22")
a("v_add_f32 v19, v19, v23")
rnd2(18, 19, 24)
a("v_add_f32 v18, v18, v42")
a("v_add_f32 v19, v19, v43")
a("v_cvt_pk_bf16_f32 v18, v18, v19")
a("s_mov_b64 exec, 0xff")
a(f"buffer_store_dword v18, v14, {R('out')}, s59 offen")
a("s_mov_b64 exec, -1")
stamp(10)
a("s_cmp_lg_u32 s2, 0")
a("s_cbranch_scc1 L_FIN")
a(f"s_cmp_lg_u32 s{sW}, 0")
a("s_cbranch_scc1 L_FIN")
a(f"v_mov_b32 v34, s{sTAG}")
a("s_mov_b64 exec, 1")
a(f"buffer_store_dword v34, v{vZ}, {R('ws')}, 0 offen sc1")
a("s_mov_b64 exec, -1")
a("s_branch L_FIN")

def mlp_decode():
    a(f"s_lshl_b32 s62, s{sB}, 1")
    a(f"s_add_u32 s62, s62, s{sS}")
    a("s_sub_u32 s62, s62, 2")
    a("s_lshr_b32 s63, s62, 2")
    a("s_lshl_b32 s63, s63, 3")
    a(f"s_add_u32 s63, s63, s{sHKV}")
    a("s_and_b32 s62, s62, 3")

def w2_common():
    a(f"s_lshl_b32 s60, s{sW}, 3")
    for nt_ in range(4):
        tr_swz_addr(20+nt_, 1024, 60, nt_, 16, 17)
    a("v_and_b32 v16, 1, v0")
    a(f"v_lshlrev_b32 v{vSTO}, 17, v16")
    a("v_bfe_u32 v17, v0, 2, 2")
    a(f"v_lshl_add_u32 v{vSTO}, v17, 12, v{vSTO}")
    a(f"v_lshl_add_u32 v{vSTO}, v{vG}, 5, v{vSTO}")
    a("v_bfe_u32 v17, v0, 1, 1")
    a(f"v_lshl_add_u32 v{vSTO}, v17, 4, v{vSTO}")
    a(f"v_mul_u32_u24 v{vH1R}, {H1_STR}, v16")
    a(f"v_lshl_add_u32 v{vH1R}, v{vG}, 4, v{vH1R}")
    a(f"v_add_u32 v{vH1R}, {L_H1}, v{vH1R}")
    a("s_lshl_b32 s64, s62, 18")
    a(f"s_lshl_b32 s65, s{sW}, 14")
    a("s_add_u32 s64, s64, s65")
    a("s_lshl_b32 s65, s63, 7")
    a("s_add_u32 s64, s64, s65")
    a(f"s_add_u32 s64, s64, {WS_OUTP}")
    a("s_lshl_b32 s65, s62, 5")
    a("s_add_u32 s65, s65, s63")
    a("s_lshl_b32 s65, s65, 7")
    a(f"s_add_u32 s65, s65, {WS_RF}")
    a("s_mov_b32 s94, 0xcccccccc"); a("s_mov_b32 s95, 0xcccccccc")
    a("s_mov_b32 s96, 0xf0f0f0f0"); a("s_mov_b32 s97, 0xf0f0f0f0")
    a("s_mov_b32 s98, 0xff00ff00"); a("s_mov_b32 s99, 0xff00ff00")
    a(f"v_mov_b32 v161, s{sTAG}")
    a(f"v_mov_b32 v163, s{sTAG}")
    lds_wait4(F_W2, 16, sleep=1)
    for nt_ in range(4):
        for kk in range(2):
            for hh in range(2):
                r = vA2 + (nt_*2+kk)*4 + hh*2
                a(f"ds_read_b64_tr_b16 v[{r}:{r+1}], v{20+nt_} offset:{kk*32768 + hh*4096}")
        if nt_ % 2 == 1: a("s_waitcnt lgkmcnt(0)")
    stamp(10)

def flags_poll():
    zflag_wait(16)
    a("v_lshlrev_b32 v13, 7, v0")
    a(f"s_mov_b32 s58, {WS_FL}")
    a(f"s_mov_b32 s59, {WS_FL+8192}")
    Lf = a.newlabel("FL")
    a.label(Lf)
    a(f"buffer_load_dword v16, v13, {R('ws')}, s58 offen sc1")
    a(f"buffer_load_dword v17, v13, {R('ws')}, s59 offen sc1")
    budget()
    a("s_waitcnt vmcnt(0)")
    a(f"v_cmp_eq_u32 vcc, s{sTAG}, v16")
    a(f"v_cmp_eq_u32 s[56:57], s{sTAG}, v17")
    a("s_and_b64 vcc, vcc, s[56:57]")
    a("s_cmp_eq_u64 vcc, -1")
    a(f"s_cbranch_scc1 {Lf}_ok")
    a(f"s_sleep {SL_POLL}")
    a(f"s_branch {Lf}")
    a.label(f"{Lf}_ok")
    if SL_GO: a(f"s_sleep {SL_GO}")

def h_gather():
    Lh = a.newlabel("MH")
    a.label(Lh)
    for j in range(3):
        a(f"buffer_load_dwordx4 v[{24+j*4}:{27+j*4}], v{vL16}, {R('ws')}, s60 offen offset:{j*1024} sc1")
    budget()
    a("s_waitcnt vmcnt(2)")
    a("v_cmp_eq_f32 s[56:57], s61, v27")
    a("s_waitcnt vmcnt(1)")
    a("v_cmp_eq_f32 vcc, s61, v31")
    a("s_and_b64 s[56:57], s[56:57], vcc")
    a("s_waitcnt vmcnt(0)")
    a("v_cmp_eq_f32 vcc, s61, v35")
    a("s_and_b64 s[56:57], s[56:57], vcc")
    a("s_cmp_eq_u64 s[56:57], -1")
    a(f"s_cbranch_scc1 {Lh}_ok")
    a(f"s_sleep {SL_POLL+2}")
    a(f"s_branch {Lh}")
    a.label(f"{Lh}_ok")
    stamp(5)
    src = [24, 25, 26, 28, 29, 30, 32, 33]
    for i in range(0, 8, 2):
        a(f"v_cvt_pk_bf16_f32 v{36+i//2}, v{src[i]}, v{src[i+1]}")
    for i in range(4):
        unpack(36+i, 24+2*i, 25+2*i)
    for i in range(0, 8, 2):
        a(f"v_pk_add_f32 v[{24+i}:{25+i}], v[{24+i}:{25+i}], v[{16+i}:{17+i}]")
    for i in range(0, 8, 2):
        a(f"v_cvt_pk_bf16_f32 v{44+i//2}, v{24+i}, v{25+i}")

a.label("L_K_NOTWO")
a("s_waitcnt vmcnt(1)")
set_flag(F_VK)
mlp_decode()
a(f"s_cmp_lt_u32 s63, {NMLP}")
a("s_cbranch_scc1 L_K_MLP")
a(f"s_cmp_lg_u32 s2, {HPUB_ID}")
a("s_cbranch_scc1 L_FIN")
a("s_branch L_HPUB")
a.label("L_K_MLP")
srd("w1"); srd("b1")
src128(20, 3584, 16)
a("s_lshl_b32 s58, s63, 7")
a(f"s_lshl_b32 s60, s{sW}, 5")
a("s_add_u32 s60, s60, s58")
a(f"v_lshlrev_b32 v16, 3, v{vG}")
a(f"buffer_load_dwordx2 v[14:15], v16, {R('b1')}, s60 offen")
a(f"s_mul_i32 s59, s{sW}, {32*3584}")
a("s_add_u32 s58, s59, s58")
a(f"s_lshl_b32 s61, s{sW}, 12")
a(f"s_add_u32 s61, s61, {L_K}")
if W1AFTER: lds_wait4(F_V, 16, minval=9, sleep=2)
if SL_W: a(f"s_sleep {SL_W}")
for q in range(4):
    a(f"s_add_u32 s60, s62, {q}")
    a("s_and_b32 s60, s60, 3")
    a(f"s_mul_i32 s59, s60, {128*3584}")
    a("s_add_u32 s59, s59, s58")
    a("s_lshl_b32 s60, s60, 14")
    a("s_add_u32 m0, s60, s61")
    dma(4, lambda i: 20 + (i & 1), "w1", 59, 8*3584, pol=MLPP)
stamp(4)
a("v_and_b32 v16, 1, v0")
a(f"v_mul_u32_u24 v{vYR}, {Y_STR}, v16")
a(f"v_lshl_add_u32 v{vYR}, v{vG}, 4, v{vYR}")
a(f"v_add_u32 v{vYR}, {L_Y}, v{vYR}")
a(f"v_mul_u32_u24 v{vH1W}, {H1_STR}, v16")
a(f"v_lshl_add_u32 v{vH1W}, v{vG}, 3, v{vH1W}")
a(f"s_lshl_b32 s60, s{sW}, 5")
a(f"s_add_u32 s60, s60, {L_H1}")
a(f"v_add_u32 v{vH1W}, s60, v{vH1W}")
a(f"v_lshlrev_b32 v{vABR}, 4, v16")
a(f"v_add_u32 v{vABR}, {L_AB}, v{vABR}")
k0 = 0.7978845608028654; k1 = 0.044715; l2e = 1.4426950408889634
a(f"s_mov_b32 s67, {f2u(-2*k0*k1*l2e):#x}")
a(f"v_mov_b32 v{vGC}, {f2u(-2*k0*l2e):#x}")
a(f"s_lshl_b32 s60, s{sW}, 1")
tr_swz_addr(13, 128, 60, 0, 16, 17, base_imm=L_K)
w2_common()
a("v_mov_b32 v16, 2")
for i in range(4): a(f"v_mov_b32 v{24+i}, 0x3f803f80")
a("s_waitcnt vmcnt(0)")
if int(opts.get("dbgw", 0)): stamp(2)
set_flag(F_W, 16)
unpack(14, vB1, vB1+1); unpack(15, vB1+2, vB1+3)
lds_wait4(F_W, 16, minval=2)
def w1rd(kk):
    for hh in range(2):
        a(f"ds_read_b64_tr_b16 v[{vA1+kk*4+hh*2}:{vA1+kk*4+hh*2+1}], v13 offset:{kk*4096+hh*512}")
for kk in range(7): w1rd(kk)
for kk in range(16):
    a(f"s_waitcnt lgkmcnt({12 if kk < 10 else (15-kk)*2})")
    c = "0" if kk == 0 else f"v[{vCS}:{vCS+3}]"
    a(f"v_mfma_f32_16x16x32_bf16 v[{vCS}:{vCS+3}], v[{vA1+kk*4}:{vA1+kk*4+3}], v[24:27], {c}")
    if kk + 7 < 16: w1rd(kk+7)
stamp(11)
a("s_setprio 2")
Ly = a.newlabel("WY")
a.label(Ly)
a(f"ds_read_b64 v[16:17], v{vSC} offset:{F_Y-SC}")
budget()
a("s_waitcnt lgkmcnt(0)")
a("v_and_b32 v16, v16, v17")
a("v_readfirstlane_b32 s54, v16")
a("s_cmp_eq_u32 s54, 0")
a(f"s_cbranch_scc1 {Ly}")
stamp(5)
if E3F == 1:
    a(f"s_cmp_lg_u32 s{sW}, 0")
    a("s_cbranch_scc1 L_E3F")
    a("s_mov_b64 exec, 1")
    a(f"buffer_store_dword v161, v{vZ}, {R('ws')}, s65 offen sc1")
    a("s_mov_b64 exec, -1")
    a.label("L_E3F")
vB = 164
Bq = [200+4*i for i in range(8)] + [164+4*i for i in range(7)] + [24]
for k2 in range(15):
    a(f"ds_read_b128 v[{Bq[k2]}:{Bq[k2]+3}], v{vYR} offset:{k2*64}")
for k2 in range(16):
    if k2 == 1:
        a(f"ds_read_b128 v[{Bq[15]}:{Bq[15]+3}], v{vYR} offset:{15*64}")
    a(f"s_waitcnt lgkmcnt({14 if k2 == 0 else 15-k2})")
    c = "0" if k2 == 0 else "v[16:19]"
    a(f"v_mfma_f32_16x16x32_bf16 v[16:19], v[{vA1+k2*4}:{vA1+k2*4+3}], v[{Bq[k2]}:{Bq[k2]+3}], {c}")
stamp(6)
if E3F == 2:
    a(f"s_cmp_lg_u32 s{sW}, 0")
    a("s_cbranch_scc1 L_E3F")
    a("s_mov_b64 exec, 1")
    a(f"buffer_store_dword v161, v{vZ}, {R('ws')}, s65 offen sc1")
    a("s_mov_b64 exec, -1")
    a.label("L_E3F")
Lab = a.newlabel("AB")
a.label(Lab)
a(f"ds_read_b96 v[20:22], v{vABR}")
budget()
a("s_waitcnt lgkmcnt(0)")
a("v_cmp_eq_u32 vcc, 1, v22")
a("s_cmp_eq_u64 vcc, -1")
a(f"s_cbranch_scc0 {Lab}")
for i in range(4):
    a(f"v_mul_f32 v{16+i}, v20, v{16+i}")
for i in range(4):
    a(f"v_fmac_f32 v{16+i}, v21, v{vCS+i}")
rnd2(16, 17, 20); rnd2(18, 19, 21)
for i in range(4):
    a(f"v_add_f32 v{16+i}, v{16+i}, v{vB1+i}")
rnd2(16, 17, 20); rnd2(18, 19, 21)
for i in range(4):
    a(f"v_mul_f32 v{20+i}, v{16+i}, v{16+i}")
for i in range(4):
    a(f"v_fma_f32 v{20+i}, v{20+i}, s67, v{vGC}")
for i in range(4):
    a(f"v_mul_f32 v{20+i}, v{20+i}, v{16+i}")
for i in range(4):
    a(f"v_exp_f32 v{20+i}, v{20+i}")
for i in range(4):
    a(f"v_add_f32 v{20+i}, 1.0, v{20+i}")
for i in range(4):
    a(f"v_rcp_f32 v{20+i}, v{20+i}")
for i in range(4):
    a(f"v_mul_f32 v{16+i}, v{16+i}, v{20+i}")
a("v_cvt_pk_bf16_f32 v16, v16, v17")
a("v_cvt_pk_bf16_f32 v17, v18, v19")
a(f"ds_write_b64 v{vH1W}, v[16:17]")
set_flag(F_D)
if E3F == 3:
    a(f"s_cmp_lg_u32 s{sW}, 0")
    a("s_cbranch_scc1 L_E3F")
    a("s_mov_b64 exec, 1")
    a(f"buffer_store_dword v161, v{vZ}, {R('ws')}, s65 offen sc1")
    a("s_mov_b64 exec, -1")
    a.label("L_E3F")
stamp(9)
a.label("L_MLP_W2")
lds_wait4(F_D, 20)
a(f"ds_read_b128 v[16:19], v{vH1R}")
a(f"ds_read_b128 v[20:23], v{vH1R} offset:64")
vO = 24
for kk in range(2):
    a(f"s_waitcnt lgkmcnt({1-kk})")
    for nt_ in range(4):
        r = vA2 + (nt_*2+kk)*4
        c = "0" if kk == 0 else f"v[{vO+nt_*4}:{vO+nt_*4+3}]"
        a(f"v_mfma_f32_16x16x32_bf16 v[{vO+nt_*4}:{vO+nt_*4+3}], v[{r}:{r+3}], v[{16+kk*4}:{19+kk*4}], {c}")
for nt_ in range(4):
    a(f"v_cndmask_b32 v{40+nt_*2}, v{vO+nt_*4}, v{vO+nt_*4+2}, s[94:95]")
    a(f"v_cndmask_b32 v{41+nt_*2}, v{vO+nt_*4+1}, v{vO+nt_*4+3}, s[94:95]")
for q in range(2):
    a(f"v_cndmask_b32 v{40+q*4}, v{40+q*4}, v{42+q*4}, s[96:97]")
    a(f"v_cndmask_b32 v{41+q*4}, v{41+q*4}, v{43+q*4}, s[96:97]")
a("v_cndmask_b32 v160, v40, v44, s[98:99]")
a("v_cndmask_b32 v162, v41, v45, s[98:99]")
a(f"buffer_store_dwordx4 v[160:163], v{vSTO}, {R('ws')}, s64 offen sc1")
stamp(7)
a("s_branch L_FIN")

a.label("L_V_NOTWO")
set_flag(F_V, 14)
mlp_decode()
a(f"s_cmp_lt_u32 s63, {NMLP}")
a("s_cbranch_scc1 L_V_MLP")
a(f"s_cmp_lg_u32 s2, {HPUB_ID}")
a("s_cbranch_scc1 L_FIN")
a("s_branch L_HPUB")
a.label("L_V_MLP")
srd("w2")
a("s_lshl_b32 s58, s63, 16")
a(f"s_lshl_b32 s61, s{sAW}, 12")
a("s_add_u32 s58, s58, s61")
a("s_lshl_b32 s60, s62, 1")
a(f"s_add_u32 s66, s60, s{sAW}")
a("s_and_b32 s66, s66, 7")
a("s_lshl_b32 s60, s66, 10")
a(f"buffer_load_dwordx4 v[{vX}:{vX+3}], v{vL16}, {R('x')}, s60 offen")
a(f"s_lshr_b32 s60, s{sAW}, 1")
a("s_lshl_b32 s60, s60, 3")
for i in range(4):
    a(f"v_xor_b32 v{20+i}, {i*2}, v0")
    a(f"v_xor_b32 v{20+i}, s60, v{20+i}")
    a(f"v_lshlrev_b32 v{20+i}, 4, v{20+i}")
lds_wait4(F_V, 16, minval=9)
if int(opts.get("dbgw", 0)): stamp(3)
if SL_W: a(f"s_sleep {SL_W}")
for q in range(4):
    a(f"s_add_u32 s60, s62, {q}")
    a("s_and_b32 s60, s60, 3")
    a("s_lshl_b32 s60, s60, 14")
    a("s_add_u32 s59, s60, s58")
    a("s_add_u32 m0, s60, s61")
    dma(4, lambda i: 20 + i, "w2", 59, 1024, pol=MLPP)
if int(opts.get("dbgw", 0)): stamp(1)
a("s_waitcnt vmcnt(0)")
if int(opts.get("dbgw", 0)): stamp(2)
set_flag(F_W2)
w2_common()
a(f"s_cmp_ge_u32 s{sAW}, 2")
a("s_cbranch_scc1 L_MLP_W2")
a("s_setprio 3")
flags_poll()
stamp(11)
a("s_mul_i32 s60, s66, 3072")
a(f"s_add_u32 s60, s60, {WS_HACC}")
a("s_mov_b32 s61, 0x42000000")
for i in range(4):
    unpack(vX+i, 16+2*i, 17+2*i)
a(f"s_mul_i32 s58, s{sAW}, {Y_STR}")
a(f"s_add_u32 s58, s58, {L_Y}")
a(f"v_add_u32 v13, s58, v{vL16}")
a(f"s_lshl_b32 s58, s{sAW}, 4")
a(f"v_add_u32 v14, s58, v{vSC}")
h_gather()
a("ds_write_b128 v13, v[44:47]")
set_flag(F_Y)
for i in range(4):
    unpack(44+i, 24+2*i, 25+2*i)
row_stats(24, 32)
a("v_mov_b32 v34, v32")
a("v_mov_b32 v35, v33")
rnd2(34, 35, 36)
sd_of(35, 36)
rcp_nr(36, 35, 37)
a("v_sub_f32 v32, v32, v34")
a("v_mul_f32 v32, v32, v36")
a("v_mul_f32 v33, v33, v36")
a("v_mul_f32 v33, v33, v36")
rnd2(32, 33, 37)
sd_of(33, 37)
rcp_nr(37, 33, 38)
a("v_mul_f32 v40, v36, v37")
a("v_fma_f32 v41, v32, v35, v34")
a("v_mul_f32 v41, -v41, v40")
a("v_mov_b32 v42, 1")
a(f"ds_write_b96 v14, v[40:42] offset:{L_AB-SC}")
stamp(6)
a("s_branch L_MLP_W2")

a.label("L_HPUB")
flags_poll()
a(f"s_mul_i32 s60, s{sW}, 3072")
a(f"s_add_u32 s60, s60, {WS_HACC}")
a("s_mov_b32 s61, 0x42000000")
for i in range(4):
    unpack(vX+i, 16+2*i, 17+2*i)
a("v_lshrrev_b32 v13, 1, v0")
a("v_lshlrev_b32 v13, 12, v13")
a("v_and_b32 v14, 1, v0")
a("v_lshl_add_u32 v13, v14, 5, v13")
a(f"s_lshl_b32 s62, s{sW}, 17")
a(f"s_add_u32 s62, s62, {WS_OUTP + NMLP*128}")
h_gather()
for i in range(4):
    a(f"v_mov_b32 v{24+2*i}, v{44+i}")
    a(f"v_mov_b32 v{25+2*i}, s{sTAG}")
a(f"buffer_store_dwordx4 v[24:27], v13, {R('ws')}, s62 offen sc1")
a(f"buffer_store_dwordx4 v[28:31], v13, {R('ws')}, s62 offen offset:16 sc1")

a.label("L_FIN")
if STAMPS:
    stamp(8)
    if CAL:
        cw, cs = map(int, CAL.split(":"))
        a(f"s_cmp_lg_u32 s2, {CALWG}")
        a("s_cbranch_scc1 L_END")
        a(f"s_cmp_lg_u32 s{sW}, {cw}")
        a("s_cbranch_scc1 L_END")
        a(f"v_readfirstlane_b32 s60, v{240+cs}")
        a("v_readfirstlane_b32 s61, v240")
        a("s_sub_u32 s60, s60, s61")
        a("s_lshl_b32 s60, s60, 1")
        a("s_add_u32 s60, s60, 4000")
        a.label("L_CAL")
        a("s_memrealtime s[90:91]")
        a("s_waitcnt lgkmcnt(0)")
        a("s_sub_u32 s62, s90, s61")
        a("s_cmp_lt_u32 s62, s60")
        a("s_cbranch_scc1 L_CAL")
        a("s_branch L_END")
    a("s_lshl_b32 s60, s2, 3")
    a(f"s_add_u32 s60, s60, s{sW}")
    a("s_mul_i32 s60, s60, 48")
    a(f"s_add_u32 s60, s60, {WS_STAMP}")
    a("s_mov_b64 exec, 1")
    for i in range(3):
        a(f"buffer_store_dwordx4 v[{240+4*i}:{243+4*i}], v{vZ}, {R('ws')}, s60 offen offset:{16*i}")
    if DBGST:
        a("v_not_b32 v252, v240")
        for i in range(13):
            a(f"global_atomic_umax v{vZ}, v{240+i}, s[86:87] offset:{4*i}")
a.label("L_END")
a("s_endpgm")

hdr = open("sequential_preLN__sliding_block_cached__mixer_channel_mlp__decode.s.ref").read().split("; Override launch")[0]
txt = a.text().replace("CODE_KB", "(L_END-L_VW)/1024")
open(out, "w").write(wrap(txt, 256, 512, LDS_BYTES, vgpr=256, header_comment=hdr))
```

```python
import sys, struct
from asmgen import *

out = sys.argv[1]
opts = dict(kv.split("=") for kv in sys.argv[2:])
STAMPS = int(opts.get("stamps", 0))
DBGST = int(opts.get("dbgst", 0))
if DBGST: STAMPS = 1
CAL = opts.get("cal")
CALWG = int(opts.get("calwg", 0))
if CAL: STAMPS = 1
NT = "nt" if int(opts.get("nt", 1)) else ""
SL_GO = int(opts.get("sl_go", 0))
SL_POLL = int(opts.get("sl_poll", 2))
SL_RED = int(opts.get("sl_red", 4))
SL_Q = int(opts.get("sl_q", 20))
FLEARLY = int(opts.get("flearly", 0))
WOFILL = int(opts.get("wofill", 1))
SL_E1 = int(opts.get("sl_e1", 0))
QACK = int(opts.get("qack", 1))
THR = int(opts.get("thr", 4))
FQ = int(opts.get("fq", 1))
FE1 = int(opts.get("fe1", 1))
SL_F1 = int(opts.get("sl_f1", 1))
PREW = int(opts.get("prew", 1))
F1WAIT = int(opts.get("f1wait", 0))
BAR = 1
P1M = int(opts.get("p1m", 0))
P1R = int(opts.get("p1r", 0))
MM = int(opts.get("mm", 4))
NS = MM // 2
LM = {2: 1, 4: 2}[MM]
NTW = 4 // NS
FLD = opts.get("fld", "nt").replace("+", " ")
if FLD == "none": FLD = ""
NVK = int(opts.get("nvk", 4))
E1F = int(opts.get("e1f", 0))
E3F = int(opts.get("e3f", 0))
SL_E3 = int(opts.get("sl_e3", 0))
SL_P1 = int(opts.get("sl_p1", 2))
SL_Q2 = int(opts.get("sl_q2", 14))
NK1 = int(opts.get("nk1", 8))
QFL = int(opts.get("qfl", 1))
PFP = opts.get("pfp", "nt")
if PFP == "none": PFP = ""
MLPP = opts.get("mlpp", "nt")
if MLPP == "none": MLPP = ""

def f2u(x): return struct.unpack("<I", struct.pack("<f", x))[0]

WS_ZF = 1024
WS_ST = 4096
WS_HACC = 32768
WS_FL = 65536
WS_OF = 0x380000
WS_HF = 0x28000
WS_RF = 0x340000
WS_QP = 0x40000
WS_OP = 0x140000
WS_OUTP = 0x240000
WS_FAST = 0x400000
WS_XC = 0x30000
WS_STAMP = 128 << 20
NMLP = 28
HPUB_ID = ((6*4+2)*8+4)
SL_W = int(opts.get("sl_w", 0))
SL_QW = int(opts.get("sl_qw", 8))
PF = int(opts.get("pf", 1))
PFPRIO = int(opts.get("pfprio", 0))
SL_WO = int(opts.get("sl_wo", 0))
NQ = int(opts.get("nq", 8))
NV1 = int(opts.get("nv1", 6))
CODEPF = int(opts.get("codepf", 1))
W1AFTER = int(opts.get("w1after", 1))

L_V = 0
L_K = 65536
L_WQ = 131072
L_QL = L_WQ
L_P = L_WQ + 1024; P_STR = 528
L_OL = L_WQ + 3200; OL_STR = 272
L_H1 = L_WQ + 5376; H1_STR = 144
L_RL = L_WQ + 6528; RL_STR = 144
SC = 147456
F_TAG = SC + 0
F_TRDY = SC + 4
F_GO = SC + 8
F_CF = SC + 12
F_LN1 = SC + 16
F_Q = SC + 32
F_A = SC + 48
F_B = SC + 64
F_V = SC + 80
F_W = SC + 96
F_C = SC + 112
F_D = SC + 128
F_W2 = SC + 144
F_KI = SC + 304
F_QGO = SC + 168
F_Y = SC + 512
F_WR = SC + 528
F_GI = SC + 544
F_VK = SC + 560
C_ONE = SC + 160
C_ZERO = SC + 164
L_AB = SC + 176
L_MX = SC + 320
L_SUM = SC + 384
L_CF = L_WQ + 12288
L_Y = SC + 640; Y_STR = 1040
LDS_BYTES = SC + 640 + 8*Y_STR
assert LDS_BYTES <= 163840

sW, sHKV, sB, sS, sAW = 3, 4, 5, 6, 7
SRD = dict(ws=8, k=12, v=16, x=20, wq=24, wo=28, w1=32, w2=36, b1=40, b2=44, out=48)
sTAG, sBUD = 52, 53
PTR = dict(x=64, k=66, v=68, wq=70, wo=72, bx=74, w1=76, b1=78, w2=80, b2=82, out=84, dbg=86, ws=88)
LOG2E = 0x3FB8AA3B
SCALE = 0x3DB504F3
DPPM = "row_mask:0xf bank_mask:0xf"

a = Asm()

def srd(name):
    d = SRD[name]; p = PTR[name]
    a(f"s_mov_b32 s{d}, s{p}")
    a(f"s_and_b32 s{d+1}, s{p+1}, 0xffff")
    a(f"s_mov_b32 s{d+2}, {SIZES[name]}")
    a(f"s_mov_b32 s{d+3}, 0x20000")
def R(name): d = SRD[name]; return f"s[{d}:{d+3}]"

def stamp(i):
    if not STAMPS: return
    if STAMPS == 2 and i != 8: return
    a("s_memrealtime s[90:91]")
    a("s_waitcnt lgkmcnt(0)")
    a(f"v_mov_b32 v{240+i}, s90")

def budget():
    a(f"s_sub_u32 s{sBUD}, s{sBUD}, 1")
    a("s_cbranch_scc1 L_END")

def set_flag(flag, val=None):
    a(f"ds_write_b32 v{vFL}, v{vONE if val is None else val} offset:{flag-SC}")

def lds_wait4(flag, vt, sleep=0, minval=None):
    L = a.newlabel("W4")
    a.label(L)
    a(f"ds_read_b128 v[{vt}:{vt+3}], v{vSC} offset:{flag-SC}")
    budget()
    a("s_waitcnt lgkmcnt(0)")
    a(f"v_min3_u32 v{vt}, v{vt}, v{vt+1}, v{vt+2}")
    a(f"v_min_u32 v{vt}, v{vt}, v{vt+3}")
    a(f"v_readfirstlane_b32 s54, v{vt}")
    if sleep: a(f"s_sleep {sleep}")
    a(f"s_cmp_lt_u32 s54, {1 if minval is None else minval}")
    a(f"s_cbranch_scc1 {L}")

def lds_wait1(flag, vt, sleep=0):
    L = a.newlabel("W1")
    a.label(L)
    a(f"ds_read_b32 v{vt}, v{vSC} offset:{flag-SC}")
    budget()
    a("s_waitcnt lgkmcnt(0)")
    a(f"v_readfirstlane_b32 s54, v{vt}")
    if sleep: a(f"s_sleep {sleep}")
    a("s_cmp_eq_u32 s54, 0")
    a(f"s_cbranch_scc1 {L}")

def rnd1(v, t):
    a(f"v_cvt_pk_bf16_f32 v{t}, v{v}, v{v}")
    a(f"v_lshlrev_b32 v{v}, 16, v{t}")
def rnd2(v0, v1, t):
    a(f"v_cvt_pk_bf16_f32 v{t}, v{v0}, v{v1}")
    a(f"v_lshlrev_b32 v{v0}, 16, v{t}")
    a(f"v_and_b32 v{v1}, 0xffff0000, v{t}")
def unpack(src, lo, hi):
    a(f"v_lshlrev_b32 v{lo}, 16, v{src}")
    a(f"v_and_b32 v{hi}, 0xffff0000, v{src}")

def wave_sum2(va, vb, sa, sb):
    for mod in ("quad_perm:[1,0,3,2]", "quad_perm:[2,3,0,1]", "row_half_mirror", "row_mirror"):
        a(f"v_add_f32_dpp v{va}, v{va}, v{va} {mod} {DPPM}")
        a(f"v_add_f32_dpp v{vb}, v{vb}, v{vb} {mod} {DPPM}")
    a(f"v_add_f32_dpp v{va}, v{va}, v{va} row_bcast:15 row_mask:0xa bank_mask:0xf")
    a(f"v_add_f32_dpp v{vb}, v{vb}, v{vb} row_bcast:15 row_mask:0xa bank_mask:0xf")
    a(f"v_add_f32_dpp v{va}, v{va}, v{va} row_bcast:31 row_mask:0xc bank_mask:0xf")
    a(f"v_add_f32_dpp v{vb}, v{vb}, v{vb} row_bcast:31 row_mask:0xc bank_mask:0xf")
    a(f"v_readlane_b32 s{sa}, v{va}, 63")
    a(f"v_readlane_b32 s{sb}, v{vb}, 63")

def row_stats(e, t, sg=55):
    a(f"v_readfirstlane_b32 s{sg}, v{e}")
    a(f"v_mov_b32 v{t+10}, s{sg}")
    a(f"v_mov_b32 v{t+11}, s{sg}")
    for i in range(0, 8, 2):
        a(f"v_pk_add_f32 v[{t+i}:{t+i+1}], v[{e+i}:{e+i+1}], v[{t+10}:{t+11}] neg_lo:[0,1] neg_hi:[0,1]")
    a(f"v_pk_add_f32 v[{t+8}:{t+9}], v[{t}:{t+1}], v[{t+2}:{t+3}]")
    a(f"v_pk_mul_f32 v[{t+10}:{t+11}], v[{t}:{t+1}], v[{t}:{t+1}]")
    a(f"v_pk_add_f32 v[{t}:{t+1}], v[{t+4}:{t+5}], v[{t+6}:{t+7}]")
    for i in (2, 4, 6):
        a(f"v_pk_fma_f32 v[{t+10}:{t+11}], v[{t+i}:{t+i+1}], v[{t+i}:{t+i+1}], v[{t+10}:{t+11}]")
    a(f"v_pk_add_f32 v[{t+8}:{t+9}], v[{t+8}:{t+9}], v[{t}:{t+1}]")
    a(f"v_add_f32 v{t+10}, v{t+10}, v{t+11}")
    a(f"v_add_f32 v{t+8}, v{t+8}, v{t+9}")
    wave_sum2(t+8, t+10, sg+1, sg+2)
    a(f"v_mov_b32 v{t+2}, 0x3b000000")
    a(f"v_mul_f32 v{t}, s{sg+1}, v{t+2}")
    a(f"v_mul_f32 v{t+1}, s{sg+2}, v{t+2}")
    a(f"v_fma_f32 v{t+1}, -v{t}, v{t}, v{t+1}")
    a(f"v_max_f32 v{t+1}, 0, v{t+1}")
    a(f"v_add_f32 v{t}, s{sg}, v{t}")

def sd_of(v, t):
    a(f"v_add_f32 v{v}, 0x3727c5ac, v{v}")
    rnd1(v, t)
    a(f"v_sqrt_f32 v{v}, v{v}")
    rnd1(v, t)

def rcp_nr(dst, src, t):
    a(f"v_rcp_f32 v{dst}, v{src}")
    a(f"v_fma_f32 v{t}, -v{src}, v{dst}, 1.0")
    a(f"v_fma_f32 v{dst}, v{t}, v{dst}, v{dst}")

def layernorm(e, t, last_pack):
    row_stats(e, t)
    rnd2(t, t+1, t+2)
    sd_of(t+1, t+2)
    rcp_nr(t+2, t+1, t+3)
    for i in range(8):
        a(f"v_sub_f32 v{e+i}, v{e+i}, v{t}")
    for i in range(0, 8, 2):
        rnd2(e+i, e+i+1, t+4+i//2)
    for i in range(8):
        a(f"v_mul_f32 v{t+4+i}, v{e+i}, v{t+2}")
    for i in range(8):
        a(f"v_fma_f32 v{e+i}, -v{t+4+i}, v{t+1}, v{e+i}")
    for i in range(8):
        a(f"v_fma_f32 v{e+i}, v{e+i}, v{t+2}, v{t+4+i}")
    for i in range(0, 8, 2):
        a(f"v_cvt_pk_bf16_f32 v{last_pack+i//2}, v{e+i}, v{e+i+1}")

def head_reduce(v, t, op):
    a(f"v_{op}_f32_dpp v{v}, v{v}, v{v} row_ror:4 {DPPM}")
    a(f"v_{op}_f32_dpp v{v}, v{v}, v{v} row_ror:8 {DPPM}")
    a(f"v_mov_b32 v{t}, v{v}")
    a(f"v_permlane16_swap_b32 v{v}, v{t}")
    a(f"v_{op}_f32 v{v}, v{v}, v{t}")
    a(f"v_mov_b32 v{t}, v{v}")
    a(f"v_permlane32_swap_b32 v{v}, v{t}")
    a(f"v_{op}_f32 v{v}, v{v}, v{t}")

def trA_addr(v, rowbytes, t):
    a(f"v_bfe_u32 v{v}, v0, 2, 2")
    a(f"v_lshl_add_u32 v{v}, v{vG}, 3, v{v}")
    a(f"v_mul_u32_u24 v{v}, {rowbytes}, v{v}")
    a(f"v_and_b32 v{t}, 3, v0")
    a(f"v_lshl_add_u32 v{v}, v{t}, 3, v{v}")
def B_addr(v, base, stride, t):
    a(f"v_and_b32 v{t}, 7, v0")
    a(f"v_mul_u32_u24 v{v}, {stride}, v{t}")
    a(f"v_lshl_add_u32 v{v}, v{vG}, 4, v{v}")
    a(f"v_add_u32 v{v}, {base}, v{v}")

def zflag_wait(vt):
    L = a.newlabel("ZF")
    a(f"v_and_b32 v{vt}, 7, v0")
    a(f"v_lshlrev_b32 v{vt}, 7, v{vt}")
    a(f"s_mov_b32 s60, {WS_ZF}")
    a.label(L)
    a(f"buffer_load_dword v{vt+1}, v{vt}, {R('ws')}, s60 offen sc1")
    budget()
    a("s_waitcnt vmcnt(0)")
    a(f"v_cmp_eq_u32 vcc, s{sTAG}, v{vt+1}")
    a("s_cmp_eq_u64 vcc, -1")
    a(f"s_cbranch_scc0 {L}")

def masked_gather(n, load, tags, consume, sleep):
    L = a.newlabel("MG")
    a(f"s_mov_b32 s62, {(1 << n) - 1}")
    a.label(L)
    for i in range(n):
        a(f"s_bitcmp1_b32 s62, {i}")
        a(f"s_cbranch_scc0 {L}_l{i}")
        load(i)
        a.label(f"{L}_l{i}")
    budget()
    a("s_waitcnt vmcnt(0)")
    for i in range(n):
        a(f"s_bitcmp1_b32 s62, {i}")
        a(f"s_cbranch_scc0 {L}_c{i}")
        t = tags(i)
        a(f"v_cmp_eq_u32 vcc, s{sTAG}, v{t[0]}")
        if len(t) > 1:
            a(f"v_cmp_eq_u32 s[56:57], s{sTAG}, v{t[1]}")
            a("s_and_b64 vcc, vcc, s[56:57]")
        a("s_cmp_eq_u64 vcc, -1")
        a(f"s_cbranch_scc0 {L}_c{i}")
        consume(i)
        a(f"s_bitset0_b32 s62, {i}")
        a.label(f"{L}_c{i}")
    a("s_cmp_eq_u32 s62, 0")
    a(f"s_cbranch_scc1 {L}_ok")
    if sleep: a(f"s_sleep {sleep}")
    a(f"s_branch {L}")
    a.label(f"{L}_ok")

def tags_ok(regs, t0, t1):
    for k, r in enumerate(regs):
        t = t0 if k % 2 == 0 else t1
        a(f"v_bitop3_b32 v{t}, v{r}, s{sTAG}, {'0' if k < 2 else 'v%d' % t} bitop3:0xbe")
    a(f"v_or_b32 v{t0}, v{t0}, v{t1}")
    a(f"v_cmp_ne_u32 vcc, 0, v{t0}")
    a("s_cmp_eq_u64 vcc, 0")

def capture(fn):
    save = a.items; a.items = []
    fn()
    got = a.items; a.items = save
    return got

def dma(n, voff, srdname, soff, sstep, mstep=1024, pol=None):
    if pol is None: pol = NT
    for i in range(n):
        v = voff(i) if callable(voff) else voff
        a(f"buffer_load_dwordx4 v{v}, {R(srdname)}, s{soff} offen {pol} lds")
        if i < n-1:
            ms = mstep(i) if callable(mstep) else mstep
            ss = sstep(i) if callable(sstep) else sstep
            a(f"s_add_u32 m0, m0, {ms}")
            a(f"s_add_u32 s{soff}, s{soff}, {ss}")

vLANE, vZ, vG, vC, vSC, vONE = 0, 1, 2, 3, 4, 5
vFL = 7
vX = 8
vL16 = 12
vA1 = 64
vA2 = 128
vB1, vCS = 192, 196
vYR, vH1W, vH1R, vSTO, vABR, vGC = 232, 233, 234, 235, 236, 237


def tr_swz_addr(dst, rowbytes, slot_s, slot_add, t0, t1, base_s=None, base_imm=0):
    a(f"v_bfe_u32 v{t0}, v0, 2, 2")
    if rowbytes == 128:
        a(f"v_lshrrev_b32 v{t1}, 1, v{t0}")
        a(f"v_and_b32 v{dst}, 1, v{vG}")
        a(f"v_lshl_add_u32 v{t1}, v{dst}, 1, v{t1}")
    else:
        a(f"v_and_b32 v{t1}, 1, v{vG}")
        a(f"v_lshl_add_u32 v{t1}, v{t1}, 2, v{t0}")
    a(f"v_lshlrev_b32 v{t1}, 1, v{t1}")
    a(f"v_bfe_u32 v{dst}, v0, 1, 1")
    a(f"v_xor_b32 v{t1}, v{t1}, v{dst}")
    a(f"v_xor_b32 v{t1}, s{slot_s}, v{t1}")
    if slot_add: a(f"v_xor_b32 v{t1}, {slot_add*2}, v{t1}")
    a(f"v_lshl_add_u32 v{t0}, v{vG}, 3, v{t0}")
    a(f"v_mul_u32_u24 v{t0}, {rowbytes}, v{t0}")
    a(f"v_lshl_add_u32 v{t0}, v{t1}, 4, v{t0}")
    a(f"v_and_b32 v{t1}, 1, v0")
    a(f"v_lshl_add_u32 v{dst}, v{t1}, 3, v{t0}")
    if base_imm: a(f"v_add_u32 v{dst}, {base_imm}, v{dst}")

def src128(dst, stride, t):
    a(f"v_lshrrev_b32 v{dst}, 3, v0")
    a(f"v_mul_u32_u24 v{dst}, {stride}, v{dst}") if stride < (1 << 24) else None
    a(f"v_bfe_u32 v{t}, v0, 4, 1")
    a(f"v_lshlrev_b32 v{t}, 1, v{t}")
    a(f"v_and_b32 v{dst+1}, 7, v0")
    a(f"v_xor_b32 v{t}, v{t}, v{dst+1}")
    a(f"v_xor_b32 v{dst+1}, 4, v{t}")
    a(f"v_lshl_add_u32 v{dst+1}, v{dst+1}, 4, v{dst}")
    a(f"v_lshl_add_u32 v{dst}, v{t}, 4, v{dst}")
vWO = 200
if STAMPS:
    a("s_memrealtime s[92:93]")
a("s_cmp_ge_u32 s2, 256")
a("s_cbranch_scc1 L_END")
a("s_load_dwordx16 s[64:79], s[0:1], 0")
a("s_load_dwordx2 s[88:89], s[0:1], 96")
a("s_load_dwordx8 s[80:87], s[0:1], 64")
a("v_lshrrev_b32 v1, 6, v0")
a("v_and_b32 v0, 63, v0")
a(f"v_readfirstlane_b32 s{sW}, v1")
a(f"v_mov_b32 v{vZ}, 0")
a(f"v_lshrrev_b32 v{vG}, 4, v0")
a(f"v_and_b32 v{vC}, 15, v0")
a(f"v_mov_b32 v{vSC}, {SC}")
a(f"v_mov_b32 v{vONE}, 1")
a(f"s_and_b32 s{sHKV}, s2, 7")
a(f"s_lshr_b32 s{sB}, s2, 5")
a(f"s_bfe_u32 s{sS}, s2, 0x20003")
a(f"s_mov_b32 s{sBUD}, 400000")
a(f"s_and_b32 s{sAW}, s{sW}, 3")
a(f"s_lshl_b32 s60, s{sAW}, 2")
a(f"v_add_u32 v{vFL}, s60, v{vSC}")
a(f"v_lshlrev_b32 v{vL16}, 4, v0")
a(f"v_mov_b32 v{vSTO}, 0")
a(f"s_lshl_b32 s58, s{sB}, 3")
a(f"s_add_u32 s58, s58, s{sHKV}")
a("s_mov_b32 s63, s58")
a("s_lshl_b32 s58, s58, 20")
a(f"s_lshl_b32 s59, s{sS}, 16")
a("s_add_u32 s58, s58, s59")
a("s_add_u32 s58, s58, 786432")
for nm in ("ws", "x", "k", "wq"):
    a(f"s_mov_b32 s{SRD[nm]+2}, {SIZES[nm]}")
    a(f"s_mov_b32 s{SRD[nm]+3}, 0x20000")
def srd_lo(name):
    d = SRD[name]; p = PTR[name]
    a(f"s_mov_b32 s{d}, s{p}")
    a(f"s_and_b32 s{d+1}, s{p+1}, 0xffff")
if STAMPS:
    for i in range(12): a(f"v_mov_b32 v{240+i}, 0")
a(f"s_cmp_ge_u32 s{sW}, 4")
a("s_cbranch_scc1 L_VW")

a("s_setprio 2")
a(f"s_lshl_b32 s61, s{sW}, 10")
if WOFILL:
    a(f"s_cmp_lt_u32 s{sS}, 2")
    a("s_cbranch_scc1 L_K_WOF")
a(f"s_lshl_b32 s60, s{sW}, 14")
a("s_add_u32 s59, s60, s58")
a(f"s_add_u32 m0, s60, {L_K}")
for j in range(4):
    a(f"v_xor_b32 v{16+j}, {j*4}, v{vG}")
    a(f"v_xor_b32 v{16+j}, v{16+j}, v{vC}")
    a(f"v_lshlrev_b32 v{16+j}, 4, v{16+j}")
    a(f"v_lshl_add_u32 v{16+j}, v{vG}, 8, v{16+j}")
a("s_waitcnt lgkmcnt(0)")
srd_lo("k")
a("s_barrier")
dma(NK1, lambda i: 16 + (i & 3), "k", 59, 1024)
a("s_branch L_K_MAIN")
if WOFILL:
    a.label("L_K_WOF")
    a(f"s_lshl_b32 s62, s{sB}, 1")
    a(f"s_add_u32 s62, s62, s{sS}")
    a("s_lshr_b32 s59, s62, 2")
    a("s_and_b32 s60, s62, 3")
    a(f"s_lshl_b32 s62, s{sHKV}, 2")
    a("s_add_u32 s60, s60, s62")
    a("s_lshl_b32 s60, s60, 17")
    a("s_lshl_b32 s59, s59, 8")
    a("s_add_u32 s59, s59, s60")
    a(f"s_lshl_b32 s60, s{sW}, 15")
    a("s_add_u32 s59, s59, s60")
    a(f"s_lshl_b32 m0, s{sW}, 13")
    a(f"v_lshlrev_b32 v16, 1, v{vG}")
    a(f"v_xor_b32 v16, v16, v{vC}")
    a("v_xor_b32 v17, 8, v16")
    a("v_lshlrev_b32 v16, 4, v16")
    a("v_lshlrev_b32 v17, 4, v17")
    a(f"v_lshl_add_u32 v16, v{vG}, 10, v16")
    a(f"v_lshl_add_u32 v17, v{vG}, 10, v17")
    a("s_waitcnt lgkmcnt(0)")
    a(f"s_mov_b32 s{SRD['wq']}, s{PTR['wo']}")
    a(f"s_and_b32 s{SRD['wq']+1}, s{PTR['wo']+1}, 0xffff")
    a("s_barrier")
    dma(8, lambda i: 16 + ((i >> 1) & 1), "wq", 59, 4096)
    a("s_branch L_K_MAIN")

a.label("L_VW")
a("s_setprio 3")
a(f"s_cmp_lg_u32 s{sAW}, 0")
a("s_cbranch_scc1 L_V_NZ")
a(f"v_lshl_add_u32 v13, v0, 2, v{vSC}")
a("v_mov_b32 v14, 1.0")
a(f"v_cmp_eq_u32 vcc, {(C_ONE-SC)//4}, v0")
a("v_cndmask_b32 v14, 0, v14, vcc")
a("ds_write_b32 v13, v14")
a(f"ds_write_b32 v13, v{vZ} offset:256")
a(f"ds_write_b32 v13, v{vZ} offset:512")
a.label("L_V_NZ")
a(f"s_lshl_b32 s60, s{sAW}, 12")
a(f"s_add_u32 m0, s60, {L_WQ}")
a(f"s_lshl_b32 s59, s{sHKV}, 10")
a(f"s_lshl_b32 s60, s{sB}, 7")
a("s_add_u32 s59, s59, s60")
a(f"s_lshl_b32 s60, s{sS}, 20")
a("s_add_u32 s59, s59, s60")
a(f"s_lshl_b32 s60, s{sAW}, 18")
a("s_add_u32 s59, s59, s60")
src128(74, 8192, 14)
a("v_lshrrev_b32 v15, 5, v0")
a("v_lshlrev_b32 v15, 10, v15")
a("v_and_b32 v14, 31, v0")
a("v_lshl_add_u32 v15, v14, 3, v15")
a(f"s_lshl_b32 s60, s{sS}, 8")
a("v_add_u32 v15, s60, v15")
a(f"s_lshl_b32 s60, s{sAW}, 11")
a(f"s_lshl_b32 s61, s{sW}, 10")
a("s_waitcnt lgkmcnt(0)")
srd_lo("x"); srd_lo("wq"); srd_lo("ws")
a(f"s_lshl_b32 s54, s{sHKV}, 5")
a(f"s_add_u32 s54, s54, s{sHKV}")
a("s_add_u32 s54, s54, 24")
a("s_sub_u32 s54, s54, s2")
a(f"s_xor_b32 s55, s{sW}, 5")
a("s_or_b32 s74, s54, s55")
a("s_cbranch_scc1 L_V_NOZ")
for i in range(4): a(f"v_mov_b32 v{76+i}, 0")
a(f"s_mul_i32 s54, s{sB}, 3072")
a(f"s_add_u32 s54, s54, {WS_HACC}")
for j in range(3):
    a(f"buffer_store_dwordx4 v[76:79], v{vL16}, {R('ws')}, s54 offen offset:{j*1024} sc1")
a.label("L_V_NOZ")
a(f"buffer_load_dwordx4 v[16:19], v{vL16}, {R('x')}, s60 offen")
a(f"buffer_load_dwordx4 v[20:23], v{vL16}, {R('x')}, s60 offen offset:1024")
a(f"buffer_load_dwordx2 v[64:65], v15, {R('x')}, s60 offen")
dma(4, lambda i: 74 + (i & 1), "wq", 59, 65536)
a(f"buffer_load_dword v6, v{vZ}, {R('ws')}, 0 offen sc1")
a("s_barrier")
if STAMPS:
    a("v_mov_b32 v240, s92")
a(f"s_mul_i32 s60, s{sAW}, {2*Y_STR}")
a(f"s_add_u32 s60, s60, {L_Y}")
a("v_lshrrev_b32 v15, 5, v0")
a(f"v_mul_u32_u24 v15, {Y_STR}, v15")
a("v_and_b32 v14, 31, v0")
a("v_lshl_add_u32 v15, v14, 3, v15")
a("v_add_u32 v15, s60, v15")
a("s_mov_b32 s98, 0"); a("s_mov_b32 s99, -1")
a(f"s_lshl_b32 s60, s{sAW}, 1")
tr_swz_addr(70, 128, 60, 0, 14, 24, base_imm=L_WQ)
B_addr(71, L_Y, Y_STR, 14)
a("v_and_b32 v72, 7, v0")
a("v_lshlrev_b32 v72, 17, v72")
a(f"v_lshl_add_u32 v72, v{vG}, 5, v72")
a("v_bfe_u32 v14, v0, 3, 1")
a("v_lshl_add_u32 v72, v14, 4, v72")
a(f"s_lshl_b32 s62, s{sHKV}, 2")
a(f"s_add_u32 s62, s62, s{sS}")
a("s_lshl_b32 s62, s62, 12")
a(f"s_lshl_b32 s60, s{sB}, 9")
a("s_add_u32 s62, s62, s60")
a(f"s_lshl_b32 s60, s{sAW}, 7")
a("s_add_u32 s62, s62, s60")
a(f"s_add_u32 s62, s62, {WS_QP}")
a("s_mov_b32 s100, 0xff00ff00"); a("s_mov_b32 s101, 0xff00ff00")
PQ = 1 if (FQ and PREW) else 0
if PQ:
    for i in range(4): a(f"v_mov_b32 v{76+i}, 0")
    a(f"s_add_u32 s60, s62, {WS_FAST}")
    a(f"buffer_store_dwordx4 v[76:79], v72, {R('ws')}, s60 offen")
a(f"s_waitcnt vmcnt({6+PQ})")
def st0():
    for i in range(4): unpack(16+i, 24+2*i, 25+2*i)
    row_stats(24, 40, 55)
def st1():
    for i in range(4): unpack(20+i, 32+2*i, 33+2*i)
    row_stats(32, 52, 94)
A_, B_ = capture(st0), capture(st1)
for x_, y_ in zip(A_, B_):
    a.items += [x_, y_]
a("v_cndmask_b32 v40, v40, v52, s[98:99]")
a("v_cndmask_b32 v41, v41, v53, s[98:99]")
rnd2(40, 41, 42)
sd_of(41, 42)
rcp_nr(42, 41, 43)
a(f"s_waitcnt vmcnt({5+PQ})")
unpack(64, 66, 67); unpack(65, 68, 69)
for i in range(4):
    a(f"v_sub_f32 v{66+i}, v{66+i}, v40")
rnd2(66, 67, 44); rnd2(68, 69, 45)
for i in range(4):
    a(f"v_mul_f32 v{44+i}, v{66+i}, v42")
for i in range(4):
    a(f"v_fma_f32 v{66+i}, -v{44+i}, v41, v{66+i}")
for i in range(4):
    a(f"v_fma_f32 v{66+i}, v{66+i}, v42, v{44+i}")
a("v_cvt_pk_bf16_f32 v44, v66, v67")
a("v_cvt_pk_bf16_f32 v45, v68, v69")
a("ds_write_b64 v15, v[44:45]")
a(f"s_waitcnt vmcnt({1+PQ})")
set_flag(F_LN1)
a(f"s_waitcnt vmcnt({PQ})")
a("v_add_u32 v53, 1, v6")
a("v_max_u32 v53, 1, v53")
a("v_mov_b32 v55, v53")
a(f"v_readfirstlane_b32 s{sTAG}, v53")
a("s_cmp_lg_u32 s74, 0")
a("s_cbranch_scc1 L_V_NOZF")
a(f"s_lshl_b32 s60, s{sB}, 7")
a(f"s_add_u32 s60, s60, {WS_ZF}")
a("s_mov_b64 exec, 1")
a(f"buffer_store_dword v53, v{vZ}, {R('ws')}, s60 offen sc1")
a("s_mov_b64 exec, -1")
a.label("L_V_NOZF")
stamp(1)
lds_wait4(F_LN1, 16)
for kk in range(4):
    a(f"ds_read_b128 v[{16+kk*4}:{19+kk*4}], v71 offset:{kk*64}")
    for hh in range(2):
        a(f"ds_read_b64_tr_b16 v[{32+kk*4+hh*2}:{33+kk*4+hh*2}], v70 offset:{kk*4096+hh*512}")
for kk in range(4):
    a(f"s_waitcnt lgkmcnt({(3-kk)*3})")
    c = "0" if kk == 0 else "v[56:59]"
    a(f"v_mfma_f32_16x16x32_bf16 v[56:59], v[{32+kk*4}:{35+kk*4}], v[{16+kk*4}:{19+kk*4}], {c}")
a(f"ds_write_b32 v{vSC}, v53 offset:{F_TAG-SC}")
a("v_cndmask_b32 v52, v56, v58, s[100:101]")
a("v_cndmask_b32 v54, v57, v59, s[100:101]")
if FQ:
    a(f"s_add_u32 s60, s62, {WS_FAST}")
    a(f"buffer_store_dwordx4 v[52:55], v72, {R('ws')}, s60 offen")
a(f"buffer_store_dwordx4 v[52:55], v72, {R('ws')}, s62 offen sc1")
if FE1:
    a(f"s_cmp_lg_u32 s{sAW}, 0")
    a("s_cbranch_scc1 L_V_NOXC")
    a("s_getreg_b32 s60, hwreg(HW_REG_XCC_ID, 0, 4)")
    a("v_mov_b32 v56, s60")
    a("v_mov_b32 v57, v53")
    a(f"s_lshl_b32 s60, s{sHKV}, 5")
    a("s_lshr_b32 s59, s2, 3")
    a("s_add_u32 s60, s60, s59")
    a("s_lshl_b32 s60, s60, 3")
    a(f"s_add_u32 s60, s60, {WS_XC}")
    a("s_mov_b64 exec, 1")
    a(f"buffer_store_dwordx2 v[56:57], v{vZ}, {R('ws')}, s60 offen sc1")
    a("s_mov_b64 exec, -1")
    a.label("L_V_NOXC")
a("s_lshl_b32 s59, s63, 14")
a(f"s_lshl_b32 s60, s{sAW}, 10")
a("s_add_u32 s59, s59, s60")
a(f"s_add_u32 s64, s59, {WS_QP}")
for i in range(1, 4): a(f"s_add_u32 s{64+i}, s{63+i}, 4096")
a(f"s_lshl_b32 s60, s{sAW}, 8")
a(f"s_add_u32 s60, s60, {L_QL}")
a("v_lshl_add_u32 v73, v0, 2, s60")
if QACK: a("s_waitcnt vmcnt(0)")
set_flag(F_Q)
stamp(2)
lds_wait4(F_Q, 16)
a(f"s_sleep {SL_Q}")
if FQ:
    a(f"v_add_u32 v74, {WS_FAST}, v{vL16}")
    a("s_mov_b32 s62, 0")
else:
    a(f"v_mov_b32 v74, v{vL16}")
a.label("L_QG")
for i in range(4):
    a(f"buffer_load_dwordx4 v[{32+i*4}:{35+i*4}], v74, {R('ws')}, s{64+i} offen sc1")
set_flag(F_GI)
budget()
if FQ:
    a("s_add_u32 s62, s62, 1")
    a("s_cmp_lt_u32 s62, 3")
    a("s_cselect_b32 s60, 0, s62")
    a("s_and_b32 s60, s60, 1")
    a("s_xor_b32 s60, s60, 1")
    a(f"s_mul_i32 s60, s60, {WS_FAST}")
    a(f"v_add_u32 v74, s60, v{vL16}")
a("s_waitcnt vmcnt(0)")
tags_ok([32+r for r in (1, 3, 5, 7, 9, 11, 13, 15)], 48, 49)
a("s_cbranch_scc0 L_QG")
a("v_add_f32 v48, v32, v36")
a("v_add_f32 v49, v34, v38")
a("v_add_f32 v50, v40, v44")
a("v_add_f32 v51, v42, v46")
a("v_pk_add_f32 v[48:49], v[48:49], v[50:51]")
a("v_cvt_pk_bf16_f32 v48, v48, v49")
a("ds_write_b32 v73, v48")
a("v_mov_b32 v14, 2")
set_flag(F_Q, 14)
stamp(5)
a("s_setprio 1")
a(f"buffer_load_dwordx4 v[{vX}:{vX+3}], v{vL16}, {R('x')}, s61 offen")
srd("v")
a(f"s_and_b32 s60, s{sAW}, 1")
a("s_lshl_b32 s60, s60, 3")
a(f"v_lshlrev_b32 v13, 1, v{vG}")
a("v_or_b32 v13, s60, v13")
a(f"v_xor_b32 v13, v13, v{vC}")
a("v_lshlrev_b32 v13, 4, v13")
a(f"v_lshl_add_u32 v13, v{vG}, 8, v13")
a(f"s_lshl_b32 s60, s{sAW}, 11")
a(f"s_add_u32 s60, s60, {NVK*8192}")
a("s_add_u32 s59, s58, s60")
a(f"s_add_u32 m0, s60, {L_V}")
if WOFILL:
    a(f"s_cmp_ge_u32 s{sS}, 2")
    a("s_cbranch_scc1 L_V_NOWOR")
    a(f"s_lshl_b32 s60, s{sAW}, 2")
    tr_swz_addr(70, 256, 60, 0, 14, 16)
    tr_swz_addr(71, 256, 60, 1, 14, 16)
    lds_wait4(F_W, 16, sleep=1)
    for nt_ in range(2):
        for kk in range(4):
            for hh in range(2):
                r = vWO + (nt_*4+kk)*4 + hh*2
                a(f"ds_read_b64_tr_b16 v[{r}:{r+1}], v{70+nt_} offset:{kk*8192 + hh*1024}")
        a("s_waitcnt lgkmcnt(0)")
    set_flag(F_WR)
    lds_wait4(F_WR, 16)
    a.label("L_V_NOWOR")
step = lambda i: 1024 if i % 2 == 0 else 7168
lds_wait4(F_KI, 16, sleep=1)
dma(16-2*NVK, 13, "v", 59, step, step)
stamp(3)
vPR, vOPA, vTR = 120, 121, 122
a("v_and_b32 v15, 3, v0")
a(f"v_mul_u32_u24 v{vPR}, {P_STR}, v15")
a(f"v_add_u32 v{vPR}, {L_P}, v{vPR}")
a(f"v_lshl_add_u32 v{vPR}, v{vG}, 4, v{vPR}")
a(f"s_lshl_b32 s60, s{sHKV}, 2")
a(f"v_add_u32 v{vOPA}, s60, v15")
a("s_lshr_b32 s60, s2, 3")
a(f"v_lshlrev_b32 v{vOPA}, 5, v{vOPA}")
a(f"v_add_u32 v{vOPA}, s60, v{vOPA}")
a(f"v_lshlrev_b32 v{vOPA}, 10, v{vOPA}")
a("v_bfe_u32 v15, v0, 3, 1")
a(f"v_lshl_add_u32 v{vOPA}, v15, 7, v{vOPA}")
a(f"v_lshl_add_u32 v{vOPA}, v{vG}, 5, v{vOPA}")
a("v_bfe_u32 v15, v0, 2, 1")
a(f"v_lshl_add_u32 v{vOPA}, v15, 4, v{vOPA}")
a("v_bfe_u32 v14, v0, 2, 2")
a(f"v_and_b32 v15, 1, v{vG}")
a("v_lshl_add_u32 v15, v15, 2, v14")
a("v_lshlrev_b32 v15, 1, v15")
a("v_bfe_u32 v16, v0, 1, 1")
a("v_xor_b32 v15, v15, v16")
a(f"v_lshl_add_u32 v14, v{vG}, 3, v14")
a("v_lshlrev_b32 v14, 8, v14")
a("v_and_b32 v16, 1, v0")
a("v_lshl_add_u32 v14, v16, 3, v14")
for dt in range(2):
    a(f"s_lshl_b32 s60, s{sAW}, 2")
    if dt: a("s_add_u32 s60, s60, 2")
    a("v_xor_b32 v16, s60, v15")
    a(f"v_lshl_add_u32 v{vTR+dt}, v16, 4, v14")
a("s_mov_b32 s94, 0x00f000f0"); a("s_mov_b32 s95, 0x00f000f0")
a("s_mov_b32 s96, 0x0f000f00"); a("s_mov_b32 s97, 0x0f000f00")
a("s_mov_b32 s98, 0xf000f000"); a("s_mov_b32 s99, 0xf000f000")
a(f"s_lshl_b32 s60, s{sAW}, 8")
a(f"s_add_u32 s60, s60, {WS_OP}")
a(f"v_mov_b32 v105, s{sTAG}")
a(f"v_mov_b32 v107, s{sTAG}")
a(f"s_lshl_b32 s61, s{sHKV}, 5")
a("s_lshr_b32 s62, s2, 3")
a("s_add_u32 s61, s61, s62")
a("s_lshl_b32 s61, s61, 7")
a(f"s_add_u32 s61, s61, {WS_OF}")
a(f"s_lshl_b32 s62, s{sAW}, {2 if E1F == 3 else 15}")
a("s_add_u32 s61, s61, s62")
PO = 1 if (FE1 and PREW) else 0
if PO:
    a(f"v_not_b32 v76, v105")
    a("v_mov_b32 v77, v76"); a("v_mov_b32 v78, v76"); a("v_mov_b32 v79, v76")
    a(f"s_add_u32 s62, s60, {WS_FAST}")
    a(f"buffer_store_dwordx4 v[76:79], v{vOPA}, {R('ws')}, s62 offen")
lds_wait4(F_B, 16, sleep=1)
vP = 16
for kk in range(8):
    a(f"ds_read_b128 v[{vP+kk*4}:{vP+kk*4+3}], v{vPR} offset:{kk*64}")
stamp(9)
vA = 48
vO = 96
def pv_reads(kk):
    base = vA + (kk % 6)*8
    for dt in range(2):
        for hh in range(2):
            r = base + dt*4 + hh*2
            a(f"ds_read_b64_tr_b16 v[{r}:{r+1}], v{vTR+dt} offset:{kk*8192 + hh*1024}")
def pv_mfma(kk, dt):
    base = vA + (kk % 6)*8
    c = "0" if kk == 0 else f"v[{vO+dt*4}:{vO+dt*4+3}]"
    a(f"v_mfma_f32_16x16x32_bf16 v[{vO+dt*4}:{vO+dt*4+3}], v[{base+dt*4}:{base+dt*4+3}], v[{vP+kk*4}:{vP+kk*4+3}], {c}")
extra = PO
for gi, grp in enumerate((list(range(NVK)), list(range(NVK, 7)), [7])):
    last = grp[-1]
    if gi == 0:
        lds_wait4(F_VK, 108)
    else:
        a(f"v_mov_b32 v14, {last+1}")
        a(f"s_waitcnt vmcnt({14-2*last+extra})")
        set_flag(F_V, 14)
        lds_wait4(F_V, 108, minval=last+1)
    if E1F and gi == E1F:
        a("s_mov_b64 exec, 1")
        a(f"buffer_store_dword v105, v{vZ}, {R('ws')}, s61 offen sc1")
        a("s_mov_b64 exec, -1")
        extra += 1
    pend = list(grp)
    issued = []
    for kk in pend[:3]:
        pv_reads(kk); issued.append(kk)
    for idx, kk in enumerate(pend):
        after = len(issued) - 1 - idx
        for dt in range(2):
            a(f"s_waitcnt lgkmcnt({after*4 + 2 - 2*dt})")
            pv_mfma(kk, dt)
        if idx + 3 < len(pend):
            pv_reads(pend[idx+3]); issued.append(pend[idx+3])
a("v_mov_b32 v14, 9")
a(f"v_cndmask_b32 v104, v{vO}, v{vO+2}, s[94:95]")
a(f"v_cndmask_b32 v106, v{vO+1}, v{vO+3}, s[94:95]")
a(f"v_cndmask_b32 v104, v104, v{vO+4}, s[96:97]")
a(f"v_cndmask_b32 v106, v106, v{vO+5}, s[96:97]")
a(f"v_cndmask_b32 v104, v104, v{vO+6}, s[98:99]")
a(f"v_cndmask_b32 v106, v106, v{vO+7}, s[98:99]")
if FE1:
    a(f"s_add_u32 s62, s60, {WS_FAST}")
    a(f"buffer_store_dwordx4 v[104:107], v{vOPA}, {R('ws')}, s62 offen")
a(f"buffer_store_dwordx4 v[104:107], v{vOPA}, {R('ws')}, s60 offen sc1")
if E1F == 3:
    a("s_mov_b64 exec, 1")
    a(f"buffer_store_dword v105, v{vZ}, {R('ws')}, s61 offen sc1")
    a("s_mov_b64 exec, -1")
stamp(4)
a(f"s_cmp_ge_u32 s{sS}, 2")
a("s_cbranch_scc1 L_V_NOTWO")

a(f"s_lshl_b32 s58, s{sB}, 1")
a(f"s_add_u32 s58, s58, s{sS}")
a("s_lshl_b32 s64, s58, 3")
a(f"s_add_u32 s64, s64, s{sHKV}")
a("s_lshl_b32 s64, s64, 7")
a(f"s_add_u32 s64, s64, {WS_FL}")
a("s_lshr_b32 s63, s58, 2")
a("s_lshl_b32 s63, s63, 2")
a(f"s_add_u32 s63, s63, s{sAW}")
a("s_waitcnt vmcnt(0)")
set_flag(F_V, 14)
B_addr(14, L_OL, OL_STR, 15)
a(f"s_mul_i32 s60, s{sAW}, {8*RL_STR}")
a(f"s_add_u32 s60, s60, {L_RL}")
a("v_and_b32 v15, 7, v0")
a(f"v_mul_u32_u24 v15, {RL_STR}, v15")
a("v_bfe_u32 v16, v0, 3, 1")
a("v_lshl_add_u32 v15, v16, 6, v15")
a(f"v_lshl_add_u32 v15, v{vG}, 4, v15")
a("v_add_u32 v15, s60, v15")
a("v_bfe_u32 v16, v0, 2, 2")
a("v_and_b32 v17, 3, v0")
a(f"v_mul_u32_u24 v18, {RL_STR}, v{vG}")
a("v_lshl_add_u32 v18, v16, 5, v18")
a("v_lshl_add_u32 v18, v17, 2, v18")
a("v_add_u32 v18, s60, v18")
a(f"v_mov_b32 v19, {C_ONE}")
a(f"v_mov_b32 v20, {C_ZERO}")
a("v_cmp_eq_u32 s[56:57], 3, v17")
a("v_cmp_eq_u32 s[58:59], 2, v17")
for j in range(3):
    for bh in range(2):
        r = 24 + j*2 + bh
        a(f"v_add_u32 v{r}, {j*12 + bh*4*RL_STR}, v18")
        a(f"v_cndmask_b32 v{r}, v{r}, v19, s[56:57]")
        if j == 2:
            a(f"v_cndmask_b32 v{r}, v{r}, v20, s[58:59]")
a(f"v_mul_u32_u24 v21, 3072, v{vG}")
a("v_and_b32 v22, 15, v0")
a("v_lshl_add_u32 v21, v22, 2, v21")
a("s_lshl_b32 s63, s63, 6")
a(f"s_add_u32 s63, s63, {WS_HACC}")
a("s_add_u32 s61, s63, 12288")
vA = vWO
if not WOFILL:
    a(f"s_lshl_b32 s60, s{sAW}, 2")
    tr_swz_addr(70, 256, 60, 0, 30, 31, base_imm=L_K)
    tr_swz_addr(71, 256, 60, 1, 30, 31, base_imm=L_K)
    lds_wait4(F_W, 32)
    for nt_ in range(2):
        for kk in range(4):
            for hh in range(2):
                r = vWO + (nt_*4+kk)*4 + hh*2
                a(f"ds_read_b64_tr_b16 v[{r}:{r+1}], v{70+nt_} offset:{kk*8192 + hh*1024}")
        a("s_waitcnt lgkmcnt(0)")
stamp(10)
if BAR: a("s_barrier")
else: lds_wait4(F_C, 64)
stamp(5)
vB = 64
for kk in range(4):
    a(f"ds_read_b128 v[{vB+kk*4}:{vB+kk*4+3}], v14 offset:{kk*64}")
for kk in range(4):
    a(f"s_waitcnt lgkmcnt({3-kk})")
    for nt_ in range(2):
        c = "0" if kk == 0 else f"v[{80+nt_*4}:{83+nt_*4}]"
        r = vA + (nt_*4+kk)*4
        a(f"v_mfma_f32_16x16x32_bf16 v[{80+nt_*4}:{83+nt_*4}], v[{r}:{r+3}], v[{vB+kk*4}:{vB+kk*4+3}], {c}")
for i in range(4):
    a(f"v_cndmask_b32 v{88+i}, v{80+i}, v{84+i}, s[100:101]")
a("ds_write_b128 v15, v[88:91]")
for r in range(6):
    a(f"ds_read_b32 v{92+r}, v{24+r}")
for j in range(3):
    for bh in range(2):
        r = j*2 + bh
        a(f"s_waitcnt lgkmcnt({5-r})")
        a(f"buffer_atomic_add_f32 v{92+r}, v21, {R('ws')}, {'s63' if bh == 0 else 's61'} offen offset:{j*1024}")
a(f"s_cmp_lg_u32 s{sAW}, {99 if FLEARLY else 3}")
a("s_cbranch_scc1 L_V_NOFL")
a("s_mov_b64 exec, 1")
a(f"buffer_store_dword v105, v{vZ}, {R('ws')}, s64 offen sc1")
a("s_mov_b64 exec, -1")
a.label("L_V_NOFL")
stamp(6)
if STAMPS == 1:
    a("s_waitcnt vmcnt(0)")
    stamp(7)
a("s_branch L_FIN")


a.label("L_K_MAIN")
if STAMPS:
    a("v_mov_b32 v240, s92")
srd_lo("k"); srd_lo("x"); srd_lo("ws"); srd("v")
a(f"buffer_load_dwordx4 v[{vX}:{vX+3}], v{vL16}, {R('x')}, s61 offen")
if CODEPF:
    a("s_getpc_b64 s[68:69]")
    a.label("L_PCREF")
    a("s_sub_u32 s68, s68, L_PCREF-L_VW")
    a("s_subb_u32 s69, s69, 0")
    a("s_and_b32 s68, s68, 0xfffffff0")
    a("s_lshr_b32 s60, s2, 3")
    a("s_lshl_b32 s60, s60, 2")
    a(f"s_add_u32 s60, s60, s{sW}")
    a(f"s_cmp_ge_u32 s60, CODE_KB")
    a("s_cbranch_scc1 L_K_NOCP")
    a("s_lshl_b32 s60, s60, 10")
    a(f"v_add_u32 v14, s60, v{vL16}")
    a("global_load_dwordx4 v[20:23], v14, s[68:69]")
    a.label("L_K_NOCP")
vQA, vMXA, vMXW, vPW, vSTA, vQW = 120, 121, 122, 123, 124, 125
vKR = 126
a("v_and_b32 v15, 3, v0")
a(f"v_lshlrev_b32 v{vQA}, 8, v15")
a(f"v_lshl_add_u32 v{vQA}, v{vG}, 4, v{vQA}")
a(f"v_add_u32 v{vQA}, {L_QL}, v{vQA}")
a(f"v_lshl_add_u32 v{vMXA}, v15, 4, v{vSC}")
a(f"s_lshl_b32 s60, s{sW}, 2")
a(f"v_add_u32 v{vMXW}, s60, v{vMXA}")
a(f"v_mul_u32_u24 v14, {P_STR}, v15")
a(f"v_add_u32 v14, {L_P}, v14")
a(f"v_bfe_u32 v{vPW}, v0, 2, 2")
a(f"v_lshlrev_b32 v{vPW}, 5, v{vPW}")
a(f"v_lshl_add_u32 v{vPW}, v{vG}, 3, v{vPW}")
a(f"s_lshl_b32 s60, s{sW}, 7")
a(f"v_add3_u32 v{vPW}, v{vPW}, s60, v14")
a(f"s_lshl_b32 s60, s{sHKV}, 2")
a(f"v_add_u32 v{vSTA}, s60, v15")
a("s_lshr_b32 s60, s2, 3")
a(f"v_lshlrev_b32 v{vSTA}, 5, v{vSTA}")
a(f"v_add_u32 v{vSTA}, s60, v{vSTA}")
a(f"v_lshlrev_b32 v{vSTA}, 4, v{vSTA}")
a(f"s_lshl_b32 s60, s{sW}, 8")
a(f"s_add_u32 s60, s60, {L_QL}")
a(f"v_lshl_add_u32 v{vQW}, v0, 2, s60")
a(f"s_lshl_b32 s60, s{sW}, 14")
a(f"s_add_u32 s60, s60, {L_K}")
for kk in range(4):
    a(f"v_xor_b32 v{vKR+kk}, {kk*4}, v{vG}")
    a(f"v_xor_b32 v{vKR+kk}, v{vKR+kk}, v{vC}")
    a(f"v_lshlrev_b32 v{vKR+kk}, 4, v{vKR+kk}")
    a(f"v_lshl_add_u32 v{vKR+kk}, v{vC}, 8, v{vKR+kk}")
    a(f"v_add_u32 v{vKR+kk}, s60, v{vKR+kk}")
a("s_mov_b32 s94, 0x00f000f0"); a("s_mov_b32 s95, 0x00f000f0")
a("s_mov_b32 s96, 0x0f000f00"); a("s_mov_b32 s97, 0x0f000f00")
a("s_mov_b32 s98, 0xf000f000"); a("s_mov_b32 s99, 0xf000f000")
a("s_lshl_b32 s59, s63, 14")
a(f"s_lshl_b32 s60, s{sW}, 10")
a("s_add_u32 s59, s59, s60")
a(f"s_add_u32 s64, s59, {WS_QP}")
for i in range(1, 4): a(f"s_add_u32 s{64+i}, s{63+i}, 4096")
for j in range(4):
    a(f"v_xor_b32 v{16+j}, {j*4}, v{vG}")
    a(f"v_xor_b32 v{16+j}, v{16+j}, v{vC}")
    a(f"v_lshlrev_b32 v{16+j}, 4, v{16+j}")
    a(f"v_lshl_add_u32 v{16+j}, v{vG}, 8, v{16+j}")
a(f"s_lshl_b32 s60, s{sW}, 14")
a("s_add_u32 s68, s60, s58")
a(f"s_add_u32 m0, s60, {L_K}")
a(f"s_add_u32 s68, s68, {NK1*1024}")
a(f"s_add_u32 m0, m0, {NK1*1024}")
a(f"s_and_b32 s60, s{sW}, 1")
a("s_lshl_b32 s60, s60, 3")
a(f"v_lshlrev_b32 v13, 1, v{vG}")
a("v_or_b32 v13, s60, v13")
a(f"v_xor_b32 v13, v13, v{vC}")
a("v_lshlrev_b32 v13, 4, v13")
a(f"v_lshl_add_u32 v13, v{vG}, 8, v13")
a(f"s_lshl_b32 s61, s{sW}, 11")
a("s_add_u32 s69, s58, s61")
NTOT = 16 + 2*NVK
def stream_item(i):
    if i < 16:
        a(f"buffer_load_dwordx4 v{16 + (i & 3)}, {R('k')}, s68 offen {NT} lds")
        if i < 15:
            a("s_add_u32 m0, m0, 1024")
            a("s_add_u32 s68, s68, 1024")
        else:
            a("s_mov_b32 m0, s61")
    else:
        j = i - 16
        a(f"buffer_load_dwordx4 v13, {R('v')}, s69 offen {NT} lds")
        st_ = 1024 if j % 2 == 0 else 7168
        a(f"s_add_u32 m0, m0, {st_}")
        a(f"s_add_u32 s69, s69, {st_}")
for i in range(NK1, NTOT):
    a(f"ds_read_b128 v[24:27], v{vSC} offset:{F_GI-SC}")
    a(f"s_waitcnt vmcnt({THR}) lgkmcnt(0)")
    a("v_and_b32 v24, v24, v25")
    a("v_and_b32 v26, v26, v27")
    a("v_and_b32 v24, v24, v26")
    a("v_readfirstlane_b32 s54, v24")
    a("s_cmp_lg_u32 s54, 0")
    a(f"s_cbranch_scc1 L_KF{i}")
    stream_item(i)
a("s_branch L_KFE")
for i in range(NK1, NTOT):
    a.label(f"L_KF{i}")
    stream_item(i)
a.label("L_KFE")
set_flag(F_KI)
stamp(1)
vK = 132
lds_wait4(F_Q, 56, minval=2, sleep=1)
a(f"ds_read_b32 v14, v{vSC} offset:{F_TAG-SC}")
stamp(2)
a("s_setprio 3")
vQ = 80
for kk in range(4):
    a(f"ds_read_b128 v[{vQ+kk*4}:{vQ+kk*4+3}], v{vQA} offset:{kk*64}")
vS = 96
a("s_waitcnt lgkmcnt(4)")
a(f"v_readfirstlane_b32 s{sTAG}, v14")
for t in range(4):
    a(f"s_waitcnt vmcnt({(3-t)*4 + 2*NVK})")
    for kk in range(4):
        r = vK + (t*4+kk)*4
        a(f"ds_read_b128 v[{r}:{r+3}], v{vKR+kk} offset:{t*4096}")
    for kk in range(4):
        a(f"s_waitcnt lgkmcnt({3-kk})")
        r = vK + (t*4+kk)*4
        c = "0" if kk == 0 else f"v[{vS+t*4}:{vS+t*4+3}]"
        a(f"v_mfma_f32_16x16x32_bf16 v[{vS+t*4}:{vS+t*4+3}], v[{r}:{r+3}], v[{vQ+kk*4}:{vQ+kk*4+3}], {c}")
vE = 112
for i in range(4):
    a(f"v_cndmask_b32 v{vE+i}, v{vS+i}, v{vS+4+i}, s[94:95]")
for i in range(4):
    a(f"v_cndmask_b32 v{vE+i}, v{vE+i}, v{vS+8+i}, s[96:97]")
for i in range(4):
    a(f"v_cndmask_b32 v{vE+i}, v{vE+i}, v{vS+12+i}, s[98:99]")
rnd2(vE, vE+1, 116); rnd2(vE+2, vE+3, 117)
a(f"s_mov_b32 s55, {SCALE}")
for i in range(4):
    a(f"v_mul_f32 v{vE+i}, s55, v{vE+i}")
rnd2(vE, vE+1, 116); rnd2(vE+2, vE+3, 117)
vM, vL = 118, 119
a(f"v_max_f32 v{vM}, v{vE}, v{vE+1}")
a(f"v_max3_f32 v{vM}, v{vM}, v{vE+2}, v{vE+3}")
head_reduce(vM, 119, "max")
a(f"ds_write_b32 v{vMXW}, v{vM} offset:{L_MX-SC}")
set_flag(F_A)
lds_wait4(F_A, 56)
a(f"ds_read_b128 v[56:59], v{vMXA} offset:{L_MX-SC}")
a("s_waitcnt lgkmcnt(0)")
a(f"v_max3_f32 v{vM}, v56, v57, v58")
a(f"v_max_f32 v{vM}, v{vM}, v59")
a(f"s_mov_b32 s55, {LOG2E}")
for i in range(4):
    a(f"v_sub_f32 v{vE+i}, v{vE+i}, v{vM}")
for i in range(4):
    a(f"v_mul_f32 v{vE+i}, s55, v{vE+i}")
for i in range(4):
    a(f"v_exp_f32 v{vE+i}, v{vE+i}")
a(f"v_add_f32 v{vL}, v{vE}, v{vE+1}")
a(f"v_add_f32 v56, v{vE+2}, v{vE+3}")
a(f"v_add_f32 v{vL}, v{vL}, v56")
a(f"v_cvt_pk_bf16_f32 v116, v{vE}, v{vE+1}")
a(f"v_cvt_pk_bf16_f32 v117, v{vE+2}, v{vE+3}")
a(f"ds_write_b64 v{vPW}, v[116:117]")
head_reduce(vL, 56, "add")
a(f"ds_write_b32 v{vMXW}, v{vL} offset:{L_SUM-SC}")
set_flag(F_B)
lds_wait4(F_B, 56)
a(f"ds_read_b128 v[56:59], v{vMXA} offset:{L_SUM-SC}")
a("s_waitcnt lgkmcnt(0)")
a(f"v_add_f32 v{vL}, v56, v57")
a("v_add_f32 v58, v58, v59")
a(f"v_add_f32 v58, v{vL}, v58")
a(f"v_mov_b32 v56, v{vM}")
a(f"v_mov_b32 v57, s{sTAG}")
a(f"v_mov_b32 v59, s{sTAG}")
a(f"s_lshl_b64 s[56:57], 1, s{sW}")
a(f"s_mov_b32 s61, {WS_ST}")
a("s_mov_b64 exec, s[56:57]")
a(f"buffer_store_dwordx4 v[56:59], v{vSTA}, {R('ws')}, s61 offen sc1")
if FE1:
    a(f"s_mov_b32 s61, {WS_ST + WS_FAST}")
    a(f"buffer_store_dwordx4 v[56:59], v{vSTA}, {R('ws')}, s61 offen")
a("s_mov_b64 exec, -1")
stamp(3)
a("s_setprio 0")
a(f"s_cmp_ge_u32 s{sS}, 2")
a("s_cbranch_scc1 L_K_NOTWO")

if not WOFILL:
    a(f"s_lshl_b32 s62, s{sB}, 1")
    a(f"s_add_u32 s62, s62, s{sS}")
    a("s_lshr_b32 s59, s62, 2")
    a("s_and_b32 s60, s62, 3")
    a(f"s_lshl_b32 s62, s{sHKV}, 2")
    a("s_add_u32 s60, s60, s62")
    a("s_lshl_b32 s60, s60, 17")
    a("s_lshl_b32 s59, s59, 8")
    a("s_add_u32 s59, s59, s60")
    a(f"s_lshl_b32 s60, s{sW}, 15")
    a("s_add_u32 s59, s59, s60")
    a(f"s_lshl_b32 s60, s{sW}, 13")
    a(f"s_add_u32 m0, s60, {L_K}")
    a(f"v_lshlrev_b32 v16, 1, v{vG}")
    a(f"v_xor_b32 v16, v16, v{vC}")
    a("v_xor_b32 v17, 8, v16")
    a("v_lshlrev_b32 v16, 4, v16")
    a("v_lshlrev_b32 v17, 4, v17")
    a(f"v_lshl_add_u32 v16, v{vG}, 10, v16")
    a(f"v_lshl_add_u32 v17, v{vG}, 10, v17")
    a(f"s_mov_b32 s{SRD['wq']}, s{PTR['wo']}")
    a(f"s_and_b32 s{SRD['wq']+1}, s{PTR['wo']+1}, 0xffff")
    dma(8, lambda i: 16 + ((i >> 1) & 1), "wq", 59, 4096)
def coefs():
    a(f"v_max_f32_dpp v72, v68, v68 quad_perm:[1,0,3,2] {DPPM}")
    a(f"v_max_f32_dpp v72, v72, v72 quad_perm:[2,3,0,1] {DPPM}")
    a("v_sub_f32 v72, v68, v72")
    a(f"v_mul_f32 v72, {LOG2E}, v72")
    a("v_exp_f32 v72, v72")
    a("v_mul_f32 v73, v72, v70")
    a(f"v_add_f32_dpp v73, v73, v73 quad_perm:[1,0,3,2] {DPPM}")
    a(f"v_add_f32_dpp v73, v73, v73 quad_perm:[2,3,0,1] {DPPM}")
    a("v_rcp_f32 v74, v73")
    a("v_mul_f32 v72, v72, v74")
    for i in range(8):
        a(f"v_readlane_b32 s{66+i}, v72, {i}")
    a("s_nop 1")
def fl_load():
    if E1F == 3: a(f"buffer_load_dwordx4 v[60:63], v15, {R('ws')}, s61 offen sc1")
    else: a(f"buffer_load_dword v60, v15, {R('ws')}, s61 offen sc1")
a(f"s_waitcnt vmcnt({9+FE1})")
set_flag(F_VK)
a(f"s_lshl_b32 s58, s{sB}, 1")
a(f"s_add_u32 s58, s58, s{sS}")
a("s_and_b32 s58, s58, 3")
a(f"s_lshl_b32 s60, s{sHKV}, 2")
a("s_add_u32 s58, s58, s60")
a("s_setprio 3")
a("s_lshl_b32 s65, s58, 9")
a(f"s_lshl_b32 s60, s{sW}, 7")
a("s_add_u32 s65, s65, s60")
a(f"s_add_u32 s65, s65, {WS_ST}")
a("s_lshl_b32 s58, s58, 15")
a(f"s_lshl_b32 s60, s{sW}, 13")
a("s_add_u32 s58, s58, s60")
a(f"s_add_u32 s58, s58, {WS_OP}")
a("s_add_u32 s59, s58, 4096")
a(f"s_mul_i32 s60, s{sW}, {2*OL_STR}")
a(f"s_add_u32 s60, s60, {L_OL}")
a("v_lshl_add_u32 v13, v0, 2, s60")
a("v_and_b32 v14, 7, v0")
a("v_lshlrev_b32 v15, 7, v14")
a("v_lshlrev_b32 v14, 4, v14")
a(f"s_lshl_b32 s61, s{sHKV}, 12")
a(f"s_lshl_b32 s60, s{sW}, 10")
a("s_add_u32 s61, s61, s60")
a(f"s_add_u32 s61, s61, {WS_OF}")
a("s_mov_b32 s62, 0xff")
a(f"s_lshl_b32 s75, s{sB}, 1")
a(f"s_add_u32 s75, s75, s{sS}")
a("s_lshl_b32 s75, s75, 3")
a(f"s_add_u32 s75, s75, s{sHKV}")
a("s_lshl_b32 s75, s75, 7")
a(f"s_add_u32 s75, s75, {WS_FL}")
if FE1:
    a("v_and_b32 v66, 31, v0")
    a("v_lshlrev_b32 v66, 3, v66")
    a(f"s_lshl_b32 s64, s{sHKV}, 8")
    a(f"s_add_u32 s64, s64, {WS_XC}")
    a(f"buffer_load_dwordx2 v[76:77], v66, {R('ws')}, s64 offen sc1")
zflag_wait(64)
set_flag(F_W)
stamp(4)
vD = 16
if FE1:
    a("s_getreg_b32 s60, hwreg(HW_REG_XCC_ID, 0, 4)")
    a("v_cmp_eq_u32 vcc, s60, v76")
    a(f"v_cmp_eq_u32 s[56:57], s{sTAG}, v77")
    a("s_and_b64 vcc, vcc, s[56:57]")
    a("s_cmp_eq_u64 vcc, -1")
    a("s_cbranch_scc0 L_E1")
    a(f"v_add_u32 v66, {WS_FAST}, v{vL16}")
    a(f"v_add_u32 v67, {WS_FAST}, v14")
    a("s_mov_b32 s64, 3000")
    def fld(i):
        if i < 8: a(f"buffer_load_dwordx4 v[{vD+i*4}:{vD+i*4+3}], v66, {R('ws')}, {'s58' if i < 4 else 's59'} offen offset:{(i%4)*1024} {FLD}")
        else: a(f"buffer_load_dwordx4 v[68:71], v67, {R('ws')}, s65 offen {FLD}")
    if F1WAIT: lds_wait4(F_V, 60, minval=F1WAIT)
    fld(8)
    for i in range(8): fld(i)
    a("s_waitcnt vmcnt(8)")
    coefs()
    a.label("L_F1")
    a("s_waitcnt vmcnt(0)")
    tags_ok([vD+i*4+k for i in range(8) for k in (1, 3)] + [69, 71], 60, 61)
    a("s_cbranch_scc1 L_E1_FMA")
    if SL_F1: a(f"s_sleep {SL_F1}")
    for i in (8, 0, 1, 2, 3, 4, 5, 6, 7):
        t0, t1 = (vD+i*4+1, vD+i*4+3) if i < 8 else (69, 71)
        a(f"v_cmp_eq_u32 vcc, s{sTAG}, v{t0}")
        a(f"v_cmp_eq_u32 s[56:57], s{sTAG}, v{t1}")
        a("s_and_b64 vcc, vcc, s[56:57]")
        a("s_cmp_eq_u64 vcc, -1")
        a(f"s_cbranch_scc1 L_F1_c{i}")
        fld(i)
        if i == 8:
            a("s_waitcnt vmcnt(0)")
            coefs()
        a.label(f"L_F1_c{i}")
    a("s_sub_u32 s64, s64, 1")
    a("s_cbranch_scc0 L_F1")
    a("s_waitcnt vmcnt(0)")
    a("s_mov_b32 s62, 0xff")
def ld(i): a(f"buffer_load_dwordx4 v[{vD+i*4}:{vD+i*4+3}], v{vL16}, {R('ws')}, {'s58' if i < 4 else 's59'} offen offset:{(i%4)*1024} sc1")
a.label("L_E1")
fl_load()
budget()
a("s_waitcnt vmcnt(0)")
a(f"v_cmp_eq_u32 vcc, s{sTAG}, v60")
if E1F == 3:
    for r in (61, 62, 63):
        a(f"v_cmp_eq_u32 s[56:57], s{sTAG}, v{r}")
        a("s_and_b64 vcc, vcc, s[56:57]")
a("s_and_b32 s60, vcc_lo, s62")
a("s_cbranch_scc1 L_E1_GO")
if SL_P1: a(f"s_sleep {SL_P1}")
a("s_branch L_E1")
a.label("L_E1_GO")
for i in range(8):
    a(f"s_bitcmp1_b32 s60, {i}")
    a(f"s_cbranch_scc0 L_E1_l{i}")
    ld(i)
    a.label(f"L_E1_l{i}")
a("s_cmp_lg_u32 s60, s62")
a("s_cbranch_scc1 L_E1_NS")
a.label("L_E1_ST")
a(f"buffer_load_dwordx4 v[68:71], v14, {R('ws')}, s65 offen sc1")
a.label("L_E1_NS")
a("s_waitcnt vmcnt(0)")
for i in range(8):
    a(f"s_bitcmp1_b32 s60, {i}")
    a(f"s_cbranch_scc0 L_E1_c{i}")
    a(f"v_cmp_eq_u32 vcc, s{sTAG}, v{vD+i*4+1}")
    a(f"v_cmp_eq_u32 s[56:57], s{sTAG}, v{vD+i*4+3}")
    a("s_and_b64 vcc, vcc, s[56:57]")
    a("s_cmp_eq_u64 vcc, -1")
    a(f"s_cbranch_scc0 L_E1_c{i}")
    a(f"s_bitset0_b32 s62, {i}")
    a.label(f"L_E1_c{i}")
a("s_cmp_lg_u32 s62, 0")
a("s_cbranch_scc1 L_E1")
a(f"v_cmp_eq_u32 vcc, s{sTAG}, v69")
a(f"v_cmp_eq_u32 s[56:57], s{sTAG}, v71")
a("s_and_b64 vcc, vcc, s[56:57]")
a("s_mov_b32 s60, 0")
budget()
a("s_cmp_eq_u64 vcc, -1")
a("s_cbranch_scc0 L_E1_ST")
coefs()
a.label("L_E1_FMA")
stamp(5)
for i in range(8):
    bb = i // 4
    op = "v_mul_f32" if i % 4 == 0 else "v_fmac_f32"
    a(f"{op} v{56+bb*2}, s{66+i}, v{vD+i*4}")
    a(f"{op} v{57+bb*2}, s{66+i}, v{vD+i*4+2}")
a("v_cvt_pk_bf16_f32 v56, v56, v57")
a("v_cvt_pk_bf16_f32 v58, v58, v59")
a("ds_write_b32 v13, v56")
a(f"ds_write_b32 v13, v58 offset:{OL_STR}")
if BAR:
    a("s_waitcnt lgkmcnt(0)")
    a("s_barrier")
else:
    set_flag(F_C)
if FLEARLY:
    a(f"s_cmp_lg_u32 s{sW}, 3")
    a("s_cbranch_scc1 L_K_NOFL")
    if not BAR: lds_wait4(F_C, 60)
    a("s_mov_b64 exec, 1")
    a(f"buffer_store_dword v17, v{vZ}, {R('ws')}, s75 offen sc1")
    a("s_mov_b64 exec, -1")
    a.label("L_K_NOFL")
stamp(6)
a(f"s_cmp_lg_u32 s{sS}, 0")
a("s_cbranch_scc1 L_FIN")

srd("b2"); srd("out")
a("v_and_b32 v13, 7, v0")
a("v_lshlrev_b32 v14, 2, v13")
a(f"s_lshl_b32 s58, s{sHKV}, 7")
a(f"s_lshl_b32 s59, s{sW}, 5")
a("s_add_u32 s58, s58, s59")
a(f"s_lshl_b32 s59, s{sB}, 10")
a("s_add_u32 s59, s59, s58")
a(f"buffer_load_dword v15, v14, {R('b2')}, s58 offen")
a("s_lshl_b32 s60, s63, 2")
a(f"s_add_u32 s60, s60, s{sW}")
a("s_lshl_b32 s60, s60, 12")
a(f"s_add_u32 s60, s60, {WS_OUTP}")
a("v_lshlrev_b32 v16, 3, v13")
a("v_and_b32 v17, 31, v0")
a("v_lshlrev_b32 v17, 4, v17")
a("v_mov_b32 v18, 0")
a("v_mov_b32 v19, 0")
a("v_mov_b32 v20, 1.0")
a("v_cmp_gt_u32 vcc, 32, v0")
a("v_cndmask_b32 v20, 0, v20, vcc")
a("s_waitcnt vmcnt(0)")
unpack(15, 22, 23)
vD = 24
def ld(i):
    if i < 3: a(f"buffer_load_dwordx4 v[{vD+i*4}:{vD+i*4+3}], v{vL16}, {R('ws')}, s60 offen offset:{i*1024} sc1")
    elif i == 3: a(f"buffer_load_dwordx4 v[{vD+12}:{vD+15}], v17, {R('ws')}, s60 offen offset:3072 sc1")
    else: a(f"buffer_load_dwordx2 v[40:41], v16, {R('ws')}, s60 offen offset:{NMLP*128} sc1")
def tg(i): return [vD+i*4+1, vD+i*4+3] if i < 4 else [41]
def cons(i):
    if i < 3:
        a(f"v_add_f32 v18, v18, v{vD+i*4}")
        a(f"v_add_f32 v19, v19, v{vD+i*4+2}")
    elif i == 3:
        a(f"v_fmac_f32 v18, v20, v{vD+12}")
        a(f"v_fmac_f32 v19, v20, v{vD+14}")
    else:
        unpack(40, 42, 43)
if E3F:
    a(f"s_lshr_b32 s61, s{sB}, {LM}")
    if NS == 2:
        a("s_lshl_b32 s61, s61, 1")
        a(f"s_lshr_b32 s62, s{sHKV}, 2")
        a("s_add_u32 s61, s61, s62")
    a("s_lshl_b32 s61, s61, 12")
    a(f"s_add_u32 s61, s61, {WS_RF}")
    a(f"v_min_u32 v44, {NMLP-1}, v0")
    a("v_lshlrev_b32 v44, 7, v44")
    if P1R:
        a(f"s_cmp_lg_u32 s{sW}, 0")
        a("s_cbranch_scc1 L_RF_OK")
    a.label("L_RF")
    a(f"buffer_load_dword v45, v44, {R('ws')}, s61 offen sc1")
    budget()
    a("s_waitcnt vmcnt(0)")
    a(f"v_cmp_eq_u32 vcc, s{sTAG}, v45")
    a("s_cmp_eq_u64 vcc, -1")
    a("s_cbranch_scc1 L_RF_OK")
    if SL_RED: a(f"s_sleep {SL_RED}")
    a("s_branch L_RF")
    a.label("L_RF_OK")
    if P1R: a("s_barrier")
    if SL_E3: a(f"s_sleep {SL_E3}")
    stamp(11)
a.label("L_RG")
for i in range(5): ld(i)
budget()
a("s_waitcnt vmcnt(0)")
tags_ok([t for i in range(5) for t in tg(i)], 44, 45)
a("s_cbranch_scc0 L_RG")
for i in range(5): cons(i)
stamp(9)
a(f"v_add_f32_dpp v18, v18, v18 row_ror:8 {DPPM}")
a(f"v_add_f32_dpp v19, v19, v19 row_ror:8 {DPPM}")
for sw in ("16", "32"):
    a("v_mov_b32 v24, v18")
    a("v_mov_b32 v25, v19")
    a(f"v_permlane{sw}_swap_b32 v18, v24")
    a(f"v_permlane{sw}_swap_b32 v19, v25")
    a("v_add_f32 v18, v18, v24")
    a("v_add_f32 v19, v19, v25")
rnd2(18, 19, 24)
a("v_add_f32 v18, v18, v22")
a("v_add_f32 v19, v19, v23")
rnd2(18, 19, 24)
a("v_add_f32 v18, v18, v42")
a("v_add_f32 v19, v19, v43")
a("v_cvt_pk_bf16_f32 v18, v18, v19")
a("s_mov_b64 exec, 0xff")
a(f"buffer_store_dword v18, v14, {R('out')}, s59 offen")
a("s_mov_b64 exec, -1")
stamp(10)
a("s_cmp_lg_u32 s2, 0")
a("s_cbranch_scc1 L_FIN")
a(f"s_cmp_lg_u32 s{sW}, 0")
a("s_cbranch_scc1 L_FIN")
a(f"v_mov_b32 v34, s{sTAG}")
a("s_mov_b64 exec, 1")
a(f"buffer_store_dword v34, v{vZ}, {R('ws')}, 0 offen sc1")
a("s_mov_b64 exec, -1")
a("s_branch L_FIN")

def mlp_decode():
    a(f"s_lshl_b32 s62, s{sB}, 1")
    a(f"s_add_u32 s62, s62, s{sS}")
    a("s_sub_u32 s62, s62, 2")
    a("s_lshr_b32 s63, s62, 2")
    a("s_lshl_b32 s63, s63, 3")
    a(f"s_add_u32 s63, s63, s{sHKV}")
    a("s_and_b32 s62, s62, 3")

def w2_common():
    RB = 1024 // NS
    a(f"s_mul_i32 s60, s{sW}, {2*NTW}")
    for nt_ in range(NTW):
        tr_swz_addr(20+nt_, RB, 60, nt_, 16, 17)
    a(f"v_and_b32 v16, {MM-1}, v0")
    a(f"v_lshlrev_b32 v{vSTO}, 17, v16")
    a(f"v_bfe_u32 v17, v0, {LM+1}, {3-LM}")
    a(f"v_lshl_add_u32 v{vSTO}, v17, 12, v{vSTO}")
    a(f"v_lshl_add_u32 v{vSTO}, v{vG}, 5, v{vSTO}")
    a(f"v_bfe_u32 v17, v0, {LM}, 1")
    a(f"v_lshl_add_u32 v{vSTO}, v17, 4, v{vSTO}")
    a(f"v_mul_u32_u24 v{vH1R}, {H1_STR}, v16")
    a(f"v_lshl_add_u32 v{vH1R}, v{vG}, 4, v{vH1R}")
    a(f"v_add_u32 v{vH1R}, {L_H1}, v{vH1R}")
    a(f"s_lshr_b32 s64, s62, {LM-1}")
    a(f"s_lshl_b32 s64, s64, {17+LM}")
    a(f"s_and_b32 s65, s62, {NS-1}")
    a(f"s_mul_i32 s65, s65, {(32//NS)*4096}")
    a("s_add_u32 s64, s64, s65")
    a(f"s_mul_i32 s65, s{sW}, {NTW*4096}")
    a("s_add_u32 s64, s64, s65")
    a("s_lshl_b32 s65, s63, 7")
    a("s_add_u32 s64, s64, s65")
    a(f"s_add_u32 s64, s64, {WS_OUTP}")
    a("s_lshl_b32 s65, s62, 5")
    a("s_add_u32 s65, s65, s63")
    a("s_lshl_b32 s65, s65, 7")
    a(f"s_add_u32 s65, s65, {WS_RF}")
    a("s_mov_b32 s94, 0xcccccccc"); a("s_mov_b32 s95, 0xcccccccc")
    a("s_mov_b32 s96, 0xf0f0f0f0"); a("s_mov_b32 s97, 0xf0f0f0f0")
    a("s_mov_b32 s98, 0xff00ff00"); a("s_mov_b32 s99, 0xff00ff00")
    a(f"v_mov_b32 v161, s{sTAG}")
    a(f"v_mov_b32 v163, s{sTAG}")
    lds_wait4(F_W2, 16, sleep=1)
    for nt_ in range(NTW):
        for kk in range(2):
            for hh in range(2):
                r = vA2 + (nt_*2+kk)*4 + hh*2
                a(f"ds_read_b64_tr_b16 v[{r}:{r+1}], v{20+nt_} offset:{kk*32*RB + hh*4*RB}")
        if nt_ % 2 == 1: a("s_waitcnt lgkmcnt(0)")
    stamp(10)

def flags_poll():
    a("v_lshlrev_b32 v48, 7, v0")
    a(f"s_mov_b32 s58, {WS_FL}")
    a(f"s_mov_b32 s59, {WS_FL+8192}")
    Lf = a.newlabel("FL")
    a.label(Lf)
    a(f"buffer_load_dword v49, v48, {R('ws')}, s58 offen sc1")
    a(f"buffer_load_dword v50, v48, {R('ws')}, s59 offen sc1")
    budget()
    a("s_waitcnt vmcnt(0)")
    a(f"v_cmp_eq_u32 vcc, s{sTAG}, v49")
    a(f"v_cmp_eq_u32 s[56:57], s{sTAG}, v50")
    a("s_and_b64 vcc, vcc, s[56:57]")
    a("s_cmp_eq_u64 vcc, -1")
    a(f"s_cbranch_scc1 {Lf}_ok")
    a(f"s_sleep {SL_POLL}")
    a(f"s_branch {Lf}")
    a.label(f"{Lf}_ok")
    if SL_GO: a(f"s_sleep {SL_GO}")

def h_gather():
    Lh = a.newlabel("MH")
    a.label(Lh)
    for j in range(3):
        a(f"buffer_load_dwordx4 v[{24+j*4}:{27+j*4}], v{vL16}, {R('ws')}, s60 offen offset:{j*1024} sc1")
    budget()
    a("s_waitcnt vmcnt(2)")
    a("v_cmp_eq_f32 s[56:57], s61, v27")
    a("s_waitcnt vmcnt(1)")
    a("v_cmp_eq_f32 vcc, s61, v31")
    a("s_and_b64 s[56:57], s[56:57], vcc")
    a("s_waitcnt vmcnt(0)")
    a("v_cmp_eq_f32 vcc, s61, v35")
    a("s_and_b64 s[56:57], s[56:57], vcc")
    a("s_cmp_eq_u64 s[56:57], -1")
    a(f"s_cbranch_scc1 {Lh}_ok")
    a(f"s_sleep {SL_POLL+2}")
    a(f"s_branch {Lh}")
    a.label(f"{Lh}_ok")
    stamp(5)
    src = [24, 25, 26, 28, 29, 30, 32, 33]
    for i in range(0, 8, 2):
        a(f"v_cvt_pk_bf16_f32 v{36+i//2}, v{src[i]}, v{src[i+1]}")
    for i in range(4):
        unpack(36+i, 24+2*i, 25+2*i)
    for i in range(0, 8, 2):
        a(f"v_pk_add_f32 v[{24+i}:{25+i}], v[{24+i}:{25+i}], v[{16+i}:{17+i}]")
    for i in range(0, 8, 2):
        a(f"v_cvt_pk_bf16_f32 v{44+i//2}, v{24+i}, v{25+i}")

a.label("L_K_NOTWO")
a(f"s_waitcnt vmcnt({1+FE1})")
set_flag(F_VK)
mlp_decode()
a(f"s_cmp_lt_u32 s63, {NMLP}")
a("s_cbranch_scc1 L_K_MLP")
a(f"s_cmp_lg_u32 s2, {HPUB_ID}")
a("s_cbranch_scc1 L_FIN")
a("s_branch L_HPUB")
a.label("L_K_MLP")
srd("w1"); srd("b1")
src128(20, 3584, 16)
a("s_lshl_b32 s58, s63, 7")
a(f"s_lshl_b32 s60, s{sW}, 5")
a("s_add_u32 s60, s60, s58")
a(f"v_lshlrev_b32 v16, 3, v{vG}")
a(f"buffer_load_dwordx2 v[14:15], v16, {R('b1')}, s60 offen")
a(f"s_mul_i32 s59, s{sW}, {32*3584}")
a("s_add_u32 s58, s59, s58")
a(f"s_lshl_b32 s61, s{sW}, 12")
a(f"s_add_u32 s61, s61, {L_K}")
W1PRIO = int(opts.get("w1prio", 0))
for q in range(4):
    if (W1AFTER == 1 and q == 0) or (W1AFTER >= 2 and q == W1AFTER - 1):
        lds_wait4(F_V, 16, minval=9, sleep=2)
        if W1PRIO: a(f"s_setprio {W1PRIO}")
    a(f"s_add_u32 s60, s62, {q}")
    a("s_and_b32 s60, s60, 3")
    a(f"s_mul_i32 s59, s60, {128*3584}")
    a("s_add_u32 s59, s59, s58")
    a("s_lshl_b32 s60, s60, 14")
    a("s_add_u32 m0, s60, s61")
    dma(4, lambda i: 20 + (i & 1), "w1", 59, 8*3584, pol=MLPP)
stamp(4)
a(f"v_and_b32 v16, {MM-1}, v0")
a(f"v_mul_u32_u24 v{vYR}, {Y_STR}, v16")
a(f"v_lshl_add_u32 v{vYR}, v{vG}, 4, v{vYR}")
a(f"v_add_u32 v{vYR}, {L_Y}, v{vYR}")
a(f"v_mul_u32_u24 v{vH1W}, {H1_STR}, v16")
a(f"v_lshl_add_u32 v{vH1W}, v{vG}, 3, v{vH1W}")
a(f"s_lshl_b32 s60, s{sW}, 5")
a(f"s_add_u32 s60, s60, {L_H1}")
a(f"v_add_u32 v{vH1W}, s60, v{vH1W}")
a(f"v_lshlrev_b32 v{vABR}, 4, v16")
a(f"v_add_u32 v{vABR}, {L_AB}, v{vABR}")
k0 = 0.7978845608028654; k1 = 0.044715; l2e = 1.4426950408889634
a(f"s_mov_b32 s67, {f2u(-2*k0*k1*l2e):#x}")
a(f"v_mov_b32 v{vGC}, {f2u(-2*k0*l2e):#x}")
a(f"s_lshl_b32 s60, s{sW}, 1")
tr_swz_addr(13, 128, 60, 0, 16, 17, base_imm=L_K)
w2_common()
a("v_mov_b32 v16, 2")
for i in range(4): a(f"v_mov_b32 v{24+i}, 0x3f803f80")
a("s_waitcnt vmcnt(0)")
if int(opts.get("dbgw", 0)): stamp(2)
set_flag(F_W, 16)
unpack(14, vB1, vB1+1); unpack(15, vB1+2, vB1+3)
lds_wait4(F_W, 16, minval=2)
def w1rd(kk):
    for hh in range(2):
        a(f"ds_read_b64_tr_b16 v[{vA1+kk*4+hh*2}:{vA1+kk*4+hh*2+1}], v13 offset:{kk*4096+hh*512}")
for kk in range(7): w1rd(kk)
for kk in range(16):
    a(f"s_waitcnt lgkmcnt({12 if kk < 10 else (15-kk)*2})")
    c = "0" if kk == 0 else f"v[{vCS}:{vCS+3}]"
    a(f"v_mfma_f32_16x16x32_bf16 v[{vCS}:{vCS+3}], v[{vA1+kk*4}:{vA1+kk*4+3}], v[24:27], {c}")
    if kk + 7 < 16: w1rd(kk+7)
stamp(11)
a("s_setprio 2")
if BAR:
    a("s_barrier")
else:
    Ly = a.newlabel("WY")
    a.label(Ly)
    a(f"ds_read_b64 v[16:17], v{vSC} offset:{F_Y-SC}")
    budget()
    a("s_waitcnt lgkmcnt(0)")
    a("v_and_b32 v16, v16, v17")
    a("v_readfirstlane_b32 s54, v16")
    a("s_cmp_eq_u32 s54, 0")
    a(f"s_cbranch_scc1 {Ly}")
stamp(5)
if E3F == 1:
    a(f"s_cmp_lg_u32 s{sW}, 0")
    a("s_cbranch_scc1 L_E3F")
    a("s_mov_b64 exec, 1")
    a(f"buffer_store_dword v161, v{vZ}, {R('ws')}, s65 offen sc1")
    a("s_mov_b64 exec, -1")
    a.label("L_E3F")
vB = 164
Bq = [200+4*i for i in range(8)] + [164+4*i for i in range(7)] + [24]
for k2 in range(15):
    a(f"ds_read_b128 v[{Bq[k2]}:{Bq[k2]+3}], v{vYR} offset:{k2*64}")
for k2 in range(16):
    if k2 == 1:
        a(f"ds_read_b128 v[{Bq[15]}:{Bq[15]+3}], v{vYR} offset:{15*64}")
    a(f"s_waitcnt lgkmcnt({14 if k2 == 0 else 15-k2})")
    c = "0" if k2 == 0 else "v[16:19]"
    a(f"v_mfma_f32_16x16x32_bf16 v[16:19], v[{vA1+k2*4}:{vA1+k2*4+3}], v[{Bq[k2]}:{Bq[k2]+3}], {c}")
stamp(6)
if E3F == 2:
    a(f"s_cmp_lg_u32 s{sW}, 0")
    a("s_cbranch_scc1 L_E3F")
    a("s_mov_b64 exec, 1")
    a(f"buffer_store_dword v161, v{vZ}, {R('ws')}, s65 offen sc1")
    a("s_mov_b64 exec, -1")
    a.label("L_E3F")
Lab = a.newlabel("AB")
a.label(Lab)
a(f"ds_read_b96 v[20:22], v{vABR}")
budget()
a("s_waitcnt lgkmcnt(0)")
a("v_cmp_eq_u32 vcc, 1, v22")
a("s_cmp_eq_u64 vcc, -1")
a(f"s_cbranch_scc0 {Lab}")
for i in range(4):
    a(f"v_mul_f32 v{16+i}, v20, v{16+i}")
for i in range(4):
    a(f"v_fmac_f32 v{16+i}, v21, v{vCS+i}")
rnd2(16, 17, 20); rnd2(18, 19, 21)
for i in range(4):
    a(f"v_add_f32 v{16+i}, v{16+i}, v{vB1+i}")
rnd2(16, 17, 20); rnd2(18, 19, 21)
for i in range(4):
    a(f"v_mul_f32 v{20+i}, v{16+i}, v{16+i}")
for i in range(4):
    a(f"v_fma_f32 v{20+i}, v{20+i}, s67, v{vGC}")
for i in range(4):
    a(f"v_mul_f32 v{20+i}, v{20+i}, v{16+i}")
for i in range(4):
    a(f"v_exp_f32 v{20+i}, v{20+i}")
for i in range(4):
    a(f"v_add_f32 v{20+i}, 1.0, v{20+i}")
for i in range(4):
    a(f"v_rcp_f32 v{20+i}, v{20+i}")
for i in range(4):
    a(f"v_mul_f32 v{16+i}, v{16+i}, v{20+i}")
a("v_cvt_pk_bf16_f32 v16, v16, v17")
a("v_cvt_pk_bf16_f32 v17, v18, v19")
a(f"ds_write_b64 v{vH1W}, v[16:17]")
if BAR: a("s_waitcnt lgkmcnt(0)")
else: set_flag(F_D)
if E3F == 3:
    a(f"s_cmp_lg_u32 s{sW}, 0")
    a("s_cbranch_scc1 L_E3F")
    a("s_mov_b64 exec, 1")
    a(f"buffer_store_dword v161, v{vZ}, {R('ws')}, s65 offen sc1")
    a("s_mov_b64 exec, -1")
    a.label("L_E3F")
stamp(9)
a("s_branch L_MLP_W2")
a.label("L_MLP_W2B")
if BAR: a("s_barrier")
a.label("L_MLP_W2")
if BAR: a("s_barrier")
else: lds_wait4(F_D, 20)
a(f"ds_read_b128 v[16:19], v{vH1R}")
a(f"ds_read_b128 v[20:23], v{vH1R} offset:64")
vO = 24
for kk in range(2):
    a(f"s_waitcnt lgkmcnt({1-kk})")
    for nt_ in range(NTW):
        r = vA2 + (nt_*2+kk)*4
        c = "0" if kk == 0 else f"v[{vO+nt_*4}:{vO+nt_*4+3}]"
        a(f"v_mfma_f32_16x16x32_bf16 v[{vO+nt_*4}:{vO+nt_*4+3}], v[{r}:{r+3}], v[{16+kk*4}:{19+kk*4}], {c}")
if MM == 2:
    for nt_ in range(4):
        a(f"v_cndmask_b32 v{40+nt_*2}, v{vO+nt_*4}, v{vO+nt_*4+2}, s[94:95]")
        a(f"v_cndmask_b32 v{41+nt_*2}, v{vO+nt_*4+1}, v{vO+nt_*4+3}, s[94:95]")
    for q in range(2):
        a(f"v_cndmask_b32 v{40+q*4}, v{40+q*4}, v{42+q*4}, s[96:97]")
        a(f"v_cndmask_b32 v{41+q*4}, v{41+q*4}, v{43+q*4}, s[96:97]")
    a("v_cndmask_b32 v160, v40, v44, s[98:99]")
    a("v_cndmask_b32 v162, v41, v45, s[98:99]")
else:
    for nt_ in range(2):
        a(f"v_cndmask_b32 v{40+nt_*2}, v{vO+nt_*4}, v{vO+nt_*4+2}, s[96:97]")
        a(f"v_cndmask_b32 v{41+nt_*2}, v{vO+nt_*4+1}, v{vO+nt_*4+3}, s[96:97]")
    a("v_cndmask_b32 v160, v40, v42, s[98:99]")
    a("v_cndmask_b32 v162, v41, v43, s[98:99]")
a(f"buffer_store_dwordx4 v[160:163], v{vSTO}, {R('ws')}, s64 offen sc1")
stamp(7)
a("s_branch L_FIN")

a.label("L_V_NOTWO")
set_flag(F_V, 14)
mlp_decode()
a(f"s_cmp_lt_u32 s63, {NMLP}")
a("s_cbranch_scc1 L_V_MLP")
a(f"s_cmp_lg_u32 s2, {HPUB_ID}")
a("s_cbranch_scc1 L_FIN")
a("s_branch L_HPUB")
a.label("L_V_MLP")
srd("w2")
a(f"s_lshr_b32 s60, s62, {LM-1}")
a(f"s_lshl_b32 s60, s60, {LM}")
a(f"s_add_u32 s66, s60, s{sAW}")
a("s_and_b32 s66, s66, 7")
a("s_lshl_b32 s60, s66, 10")
a(f"buffer_load_dwordx4 v[{vX}:{vX+3}], v{vL16}, {R('x')}, s60 offen")
if MM == 2:
    a("s_lshl_b32 s58, s63, 16")
    a(f"s_lshl_b32 s61, s{sAW}, 12")
    a("s_add_u32 s58, s58, s61")
    a(f"s_lshr_b32 s60, s{sAW}, 1")
    a("s_lshl_b32 s60, s60, 3")
    for i in range(4):
        a(f"v_xor_b32 v{20+i}, {i*2}, v0")
        a(f"v_xor_b32 v{20+i}, s60, v{20+i}")
        a(f"v_lshlrev_b32 v{20+i}, 4, v{20+i}")
    lds_wait4(F_V, 16, minval=9)
    for q in range(4):
        a(f"s_add_u32 s60, s62, {q}")
        a("s_and_b32 s60, s60, 3")
        a("s_lshl_b32 s60, s60, 14")
        a("s_add_u32 s59, s60, s58")
        a("s_add_u32 m0, s60, s61")
        dma(4, lambda i: 20 + i, "w2", 59, 1024, pol=MLPP)
else:
    a("s_lshl_b32 s58, s63, 16")
    a(f"s_lshl_b32 s61, s{sAW}, 14")
    a("s_add_u32 s58, s58, s61")
    a("s_and_b32 s60, s62, 1")
    a("s_lshl_b32 s60, s60, 9")
    a("s_add_u32 s58, s58, s60")
    a(f"s_lshl_b32 s61, s{sAW}, 13")
    a("v_lshrrev_b32 v16, 5, v0")
    a("v_and_b32 v17, 31, v0")
    for i in range(2):
        a(f"v_lshlrev_b32 v{22+i}, 1, v16")
        a(f"v_xor_b32 v{22+i}, {i*4}, v{22+i}")
        a(f"v_xor_b32 v{22+i}, v17, v{22+i}")
        a(f"v_lshlrev_b32 v{22+i}, 4, v{22+i}")
        a(f"v_lshl_add_u32 v{22+i}, v16, 10, v{22+i}")
    lds_wait4(F_V, 16, minval=9)
    for q in range(2):
        a("s_lshr_b32 s60, s62, 1")
        a(f"s_add_u32 s60, s60, {q}")
        a("s_and_b32 s60, s60, 1")
        a("s_lshl_b32 s59, s60, 7")
        a("v_xor_b32 v20, s59, v22")
        a("v_xor_b32 v21, s59, v23")
        a("s_lshl_b32 s59, s60, 13")
        a("s_add_u32 s59, s59, s58")
        a("s_lshl_b32 s60, s60, 12")
        a("s_add_u32 m0, s60, s61")
        dma(4, lambda i: 20 + (i & 1), "w2", 59, 2048, pol=MLPP)
a("s_waitcnt vmcnt(0)")
set_flag(F_W2)
w2_common()
if MM == 2:
    a(f"s_cmp_ge_u32 s{sAW}, 2")
    a("s_cbranch_scc1 L_MLP_W2B")
a("s_setprio 3")
a("s_mul_i32 s60, s66, 3072")
a(f"s_add_u32 s60, s60, {WS_HACC}")
a("s_mov_b32 s61, 0x42000000")
for i in range(4):
    unpack(vX+i, 16+2*i, 17+2*i)
a(f"s_mul_i32 s58, s{sAW}, {Y_STR}")
a(f"s_add_u32 s58, s58, {L_Y}")
a(f"v_add_u32 v13, s58, v{vL16}")
a(f"s_lshl_b32 s58, s{sAW}, 4")
a(f"v_add_u32 v14, s58, v{vSC}")
if P1M:
    a(f"s_cmp_lg_u32 s{sAW}, 0")
    a("s_cbranch_scc1 L_V_GOW")
    flags_poll()
    a(f"ds_write_b32 v{vSC}, v{vONE} offset:{F_GO-SC}")
    a("s_branch L_V_GO")
    a.label("L_V_GOW")
    lds_wait1(F_GO, 48)
    a.label("L_V_GO")
else:
    flags_poll()
stamp(11)
h_gather()
a("ds_write_b128 v13, v[44:47]")
if BAR:
    a("s_waitcnt lgkmcnt(0)")
    a("s_barrier")
else:
    set_flag(F_Y)
for i in range(4):
    unpack(44+i, 24+2*i, 25+2*i)
row_stats(24, 32)
a("v_mov_b32 v34, v32")
a("v_mov_b32 v35, v33")
rnd2(34, 35, 36)
sd_of(35, 36)
rcp_nr(36, 35, 37)
a("v_sub_f32 v32, v32, v34")
a("v_mul_f32 v32, v32, v36")
a("v_mul_f32 v33, v33, v36")
a("v_mul_f32 v33, v33, v36")
rnd2(32, 33, 37)
sd_of(33, 37)
rcp_nr(37, 33, 38)
a("v_mul_f32 v40, v36, v37")
a("v_fma_f32 v41, v32, v35, v34")
a("v_mul_f32 v41, -v41, v40")
a("v_mov_b32 v42, 1")
a(f"ds_write_b96 v14, v[40:42] offset:{L_AB-SC}")
stamp(6)
a("s_branch L_MLP_W2")

a.label("L_HPUB")
a(f"s_mul_i32 s60, s{sW}, 3072")
a(f"s_add_u32 s60, s60, {WS_HACC}")
a("s_mov_b32 s61, 0x42000000")
for i in range(4):
    unpack(vX+i, 16+2*i, 17+2*i)
a("v_lshrrev_b32 v13, 1, v0")
a("v_lshlrev_b32 v13, 12, v13")
a("v_and_b32 v14, 1, v0")
a("v_lshl_add_u32 v13, v14, 5, v13")
a(f"s_lshl_b32 s62, s{sW}, 17")
a(f"s_add_u32 s62, s62, {WS_OUTP + NMLP*128}")
flags_poll()
h_gather()
for i in range(4):
    a(f"v_mov_b32 v{24+2*i}, v{44+i}")
    a(f"v_mov_b32 v{25+2*i}, s{sTAG}")
a(f"buffer_store_dwordx4 v[24:27], v13, {R('ws')}, s62 offen sc1")
a(f"buffer_store_dwordx4 v[28:31], v13, {R('ws')}, s62 offen offset:16 sc1")

a.label("L_FIN")
if STAMPS:
    stamp(8)
    if CAL:
        cw, cs = map(int, CAL.split(":"))
        a(f"s_cmp_lg_u32 s2, {CALWG}")
        a("s_cbranch_scc1 L_END")
        a(f"s_cmp_lg_u32 s{sW}, {cw}")
        a("s_cbranch_scc1 L_END")
        a(f"v_readfirstlane_b32 s60, v{240+cs}")
        a("v_readfirstlane_b32 s61, v240")
        a("s_sub_u32 s60, s60, s61")
        a("s_lshl_b32 s60, s60, 1")
        a("s_add_u32 s60, s60, 4000")
        a.label("L_CAL")
        a("s_memrealtime s[90:91]")
        a("s_waitcnt lgkmcnt(0)")
        a("s_sub_u32 s62, s90, s61")
        a("s_cmp_lt_u32 s62, s60")
        a("s_cbranch_scc1 L_CAL")
        a("s_branch L_END")
    a("s_lshl_b32 s60, s2, 3")
    a(f"s_add_u32 s60, s60, s{sW}")
    a("s_mul_i32 s60, s60, 48")
    a(f"s_add_u32 s60, s60, {WS_STAMP}")
    a("s_mov_b64 exec, 1")
    for i in range(3):
        a(f"buffer_store_dwordx4 v[{240+4*i}:{243+4*i}], v{vZ}, {R('ws')}, s60 offen offset:{16*i}")
    if DBGST:
        a("v_not_b32 v252, v240")
        for i in range(13):
            a(f"global_atomic_umax v{vZ}, v{240+i}, s[86:87] offset:{4*i}")
a.label("L_END")
a("s_endpgm")

hdr = open("sequential_preLN__sliding_block_cached__mixer_channel_mlp__decode.s.ref").read().split("; Override launch")[0]
txt = a.text().replace("CODE_KB", "(L_END-L_VW)/1024")
open(out, "w").write(wrap(txt, 256, 512, LDS_BYTES, vgpr=256, header_comment=hdr))
```

```python
import sys, struct
from asmgen import *

out = sys.argv[1]
opts = dict(kv.split("=") for kv in sys.argv[2:])
STAMPS = int(opts.get("stamps", 0))
DBGST = int(opts.get("dbgst", 0))
if DBGST: STAMPS = 1
CAL = opts.get("cal")
CALWG = int(opts.get("calwg", 0))
if CAL: STAMPS = 1
NT = "nt" if int(opts.get("nt", 1)) else ""
SL_GO = int(opts.get("sl_go", 0))
SL_POLL = int(opts.get("sl_poll", 2))
SL_RED = int(opts.get("sl_red", 4))
SL_Q = int(opts.get("sl_q", 20))
FLEARLY = int(opts.get("flearly", 0))
WOFILL = int(opts.get("wofill", 1))
SL_E1 = int(opts.get("sl_e1", 0))
QACK = int(opts.get("qack", 1))
THR = int(opts.get("thr", 4))
FQ = int(opts.get("fq", 1))
FE1 = int(opts.get("fe1", 1))
SL_F1 = int(opts.get("sl_f1", 1))
PREW = int(opts.get("prew", 1))
F1WAIT = int(opts.get("f1wait", 0))
BAR = 1
P1M = int(opts.get("p1m", 0))
GD = int(opts.get("gd", 1))
AO = int(opts.get("ao", 1))
SL_HR = int(opts.get("sl_hr", 4))
SL_QR = int(opts.get("sl_qr", 0))
SL_RR = int(opts.get("sl_rr", 0))
P1R = int(opts.get("p1r", 0))
MM = int(opts.get("mm", 4))
NS = MM // 2
LM = {2: 1, 4: 2}[MM]
NTW = 4 // NS
FLD = opts.get("fld", "nt").replace("+", " ")
if FLD == "none": FLD = ""
NVK = int(opts.get("nvk", 4))
E1F = int(opts.get("e1f", 0))
E3F = int(opts.get("e3f", 0))
SL_E3 = int(opts.get("sl_e3", 0))
SL_P1 = int(opts.get("sl_p1", 2))
SL_Q2 = int(opts.get("sl_q2", 14))
NK1 = int(opts.get("nk1", 8))
QFL = int(opts.get("qfl", 1))
PFP = opts.get("pfp", "nt")
if PFP == "none": PFP = ""
MLPP = opts.get("mlpp", "nt")
if MLPP == "none": MLPP = ""

def f2u(x): return struct.unpack("<I", struct.pack("<f", x))[0]

WS_ZF = 1024
WS_ST = 4096
WS_HACC = 32768
WS_FL = 65536
WS_OF = 0x380000
WS_HF = 0x28000
WS_RF = 0x340000
WS_QP = 0x40000
WS_OP = 0x140000
WS_OUTP = 0x240000
WS_FAST = 0x400000
WS_OACC = 0x38000
WS_XC = 0x30000
WS_STAMP = 128 << 20
NMLP = 28
HPUB_ID = ((6*4+2)*8+4)
SL_W = int(opts.get("sl_w", 0))
SL_QW = int(opts.get("sl_qw", 8))
PF = int(opts.get("pf", 1))
PFPRIO = int(opts.get("pfprio", 0))
SL_WO = int(opts.get("sl_wo", 0))
NQ = int(opts.get("nq", 8))
NV1 = int(opts.get("nv1", 6))
CODEPF = int(opts.get("codepf", 1))
W1AFTER = int(opts.get("w1after", 1))

L_V = 0
L_K = 65536
L_WQ = 131072
L_QL = L_WQ
L_P = L_WQ + 1024; P_STR = 528
L_OL = L_WQ + 3200; OL_STR = 272
L_H1 = L_WQ + 5376; H1_STR = 144
L_RL = L_WQ + 6528; RL_STR = 144
SC = 147456
F_TAG = SC + 0
F_TRDY = SC + 4
F_GO = SC + 8
F_CF = SC + 12
F_LN1 = SC + 16
F_Q = SC + 32
F_A = SC + 48
F_B = SC + 64
F_V = SC + 80
F_W = SC + 96
F_C = SC + 112
F_D = SC + 128
F_W2 = SC + 144
F_KI = SC + 304
F_QGO = SC + 168
F_Y = SC + 512
F_WR = SC + 528
F_GI = SC + 544
F_VK = SC + 560
C_ONE = SC + 160
C_ZERO = SC + 164
L_AB = SC + 176
L_MX = SC + 320
L_SUM = SC + 384
L_CF = L_WQ + 12288
L_Y = SC + 640; Y_STR = 1040
LDS_BYTES = SC + 640 + 8*Y_STR
assert LDS_BYTES <= 163840

sW, sHKV, sB, sS, sAW = 3, 4, 5, 6, 7
SRD = dict(ws=8, k=12, v=16, x=20, wq=24, wo=28, w1=32, w2=36, b1=40, b2=44, out=48)
sTAG, sBUD = 52, 53
PTR = dict(x=64, k=66, v=68, wq=70, wo=72, bx=74, w1=76, b1=78, w2=80, b2=82, out=84, dbg=86, ws=88)
LOG2E = 0x3FB8AA3B
SCALE = 0x3DB504F3
DPPM = "row_mask:0xf bank_mask:0xf"

a = Asm()

def srd(name):
    d = SRD[name]; p = PTR[name]
    a(f"s_mov_b32 s{d}, s{p}")
    a(f"s_and_b32 s{d+1}, s{p+1}, 0xffff")
    a(f"s_mov_b32 s{d+2}, {SIZES[name]}")
    a(f"s_mov_b32 s{d+3}, 0x20000")
def R(name): d = SRD[name]; return f"s[{d}:{d+3}]"

def stamp(i):
    if not STAMPS: return
    if STAMPS == 2 and i != 8: return
    a("s_memrealtime s[90:91]")
    a("s_waitcnt lgkmcnt(0)")
    a(f"v_mov_b32 v{240+i}, s90")

def budget():
    a(f"s_sub_u32 s{sBUD}, s{sBUD}, 1")
    a("s_cbranch_scc1 L_END")

def set_flag(flag, val=None):
    a(f"ds_write_b32 v{vFL}, v{vONE if val is None else val} offset:{flag-SC}")

def lds_wait4(flag, vt, sleep=0, minval=None):
    L = a.newlabel("W4")
    a.label(L)
    a(f"ds_read_b128 v[{vt}:{vt+3}], v{vSC} offset:{flag-SC}")
    budget()
    a("s_waitcnt lgkmcnt(0)")
    a(f"v_min3_u32 v{vt}, v{vt}, v{vt+1}, v{vt+2}")
    a(f"v_min_u32 v{vt}, v{vt}, v{vt+3}")
    a(f"v_readfirstlane_b32 s54, v{vt}")
    if sleep: a(f"s_sleep {sleep}")
    a(f"s_cmp_lt_u32 s54, {1 if minval is None else minval}")
    a(f"s_cbranch_scc1 {L}")

def lds_wait1(flag, vt, sleep=0):
    L = a.newlabel("W1")
    a.label(L)
    a(f"ds_read_b32 v{vt}, v{vSC} offset:{flag-SC}")
    budget()
    a("s_waitcnt lgkmcnt(0)")
    a(f"v_readfirstlane_b32 s54, v{vt}")
    if sleep: a(f"s_sleep {sleep}")
    a("s_cmp_eq_u32 s54, 0")
    a(f"s_cbranch_scc1 {L}")

def rnd1(v, t):
    a(f"v_cvt_pk_bf16_f32 v{t}, v{v}, v{v}")
    a(f"v_lshlrev_b32 v{v}, 16, v{t}")
def rnd2(v0, v1, t):
    a(f"v_cvt_pk_bf16_f32 v{t}, v{v0}, v{v1}")
    a(f"v_lshlrev_b32 v{v0}, 16, v{t}")
    a(f"v_and_b32 v{v1}, 0xffff0000, v{t}")
def unpack(src, lo, hi):
    a(f"v_lshlrev_b32 v{lo}, 16, v{src}")
    a(f"v_and_b32 v{hi}, 0xffff0000, v{src}")

def wave_sum2(va, vb, sa, sb):
    for mod in ("quad_perm:[1,0,3,2]", "quad_perm:[2,3,0,1]", "row_half_mirror", "row_mirror"):
        a(f"v_add_f32_dpp v{va}, v{va}, v{va} {mod} {DPPM}")
        a(f"v_add_f32_dpp v{vb}, v{vb}, v{vb} {mod} {DPPM}")
    a(f"v_add_f32_dpp v{va}, v{va}, v{va} row_bcast:15 row_mask:0xa bank_mask:0xf")
    a(f"v_add_f32_dpp v{vb}, v{vb}, v{vb} row_bcast:15 row_mask:0xa bank_mask:0xf")
    a(f"v_add_f32_dpp v{va}, v{va}, v{va} row_bcast:31 row_mask:0xc bank_mask:0xf")
    a(f"v_add_f32_dpp v{vb}, v{vb}, v{vb} row_bcast:31 row_mask:0xc bank_mask:0xf")
    a(f"v_readlane_b32 s{sa}, v{va}, 63")
    a(f"v_readlane_b32 s{sb}, v{vb}, 63")

def row_stats(e, t, sg=55):
    a(f"v_readfirstlane_b32 s{sg}, v{e}")
    a(f"v_mov_b32 v{t+10}, s{sg}")
    a(f"v_mov_b32 v{t+11}, s{sg}")
    for i in range(0, 8, 2):
        a(f"v_pk_add_f32 v[{t+i}:{t+i+1}], v[{e+i}:{e+i+1}], v[{t+10}:{t+11}] neg_lo:[0,1] neg_hi:[0,1]")
    a(f"v_pk_add_f32 v[{t+8}:{t+9}], v[{t}:{t+1}], v[{t+2}:{t+3}]")
    a(f"v_pk_mul_f32 v[{t+10}:{t+11}], v[{t}:{t+1}], v[{t}:{t+1}]")
    a(f"v_pk_add_f32 v[{t}:{t+1}], v[{t+4}:{t+5}], v[{t+6}:{t+7}]")
    for i in (2, 4, 6):
        a(f"v_pk_fma_f32 v[{t+10}:{t+11}], v[{t+i}:{t+i+1}], v[{t+i}:{t+i+1}], v[{t+10}:{t+11}]")
    a(f"v_pk_add_f32 v[{t+8}:{t+9}], v[{t+8}:{t+9}], v[{t}:{t+1}]")
    a(f"v_add_f32 v{t+10}, v{t+10}, v{t+11}")
    a(f"v_add_f32 v{t+8}, v{t+8}, v{t+9}")
    wave_sum2(t+8, t+10, sg+1, sg+2)
    a(f"v_mov_b32 v{t+2}, 0x3b000000")
    a(f"v_mul_f32 v{t}, s{sg+1}, v{t+2}")
    a(f"v_mul_f32 v{t+1}, s{sg+2}, v{t+2}")
    a(f"v_fma_f32 v{t+1}, -v{t}, v{t}, v{t+1}")
    a(f"v_max_f32 v{t+1}, 0, v{t+1}")
    a(f"v_add_f32 v{t}, s{sg}, v{t}")

def sd_of(v, t):
    a(f"v_add_f32 v{v}, 0x3727c5ac, v{v}")
    rnd1(v, t)
    a(f"v_sqrt_f32 v{v}, v{v}")
    rnd1(v, t)

def rcp_nr(dst, src, t):
    a(f"v_rcp_f32 v{dst}, v{src}")
    a(f"v_fma_f32 v{t}, -v{src}, v{dst}, 1.0")
    a(f"v_fma_f32 v{dst}, v{t}, v{dst}, v{dst}")

def layernorm(e, t, last_pack):
    row_stats(e, t)
    rnd2(t, t+1, t+2)
    sd_of(t+1, t+2)
    rcp_nr(t+2, t+1, t+3)
    for i in range(8):
        a(f"v_sub_f32 v{e+i}, v{e+i}, v{t}")
    for i in range(0, 8, 2):
        rnd2(e+i, e+i+1, t+4+i//2)
    for i in range(8):
        a(f"v_mul_f32 v{t+4+i}, v{e+i}, v{t+2}")
    for i in range(8):
        a(f"v_fma_f32 v{e+i}, -v{t+4+i}, v{t+1}, v{e+i}")
    for i in range(8):
        a(f"v_fma_f32 v{e+i}, v{e+i}, v{t+2}, v{t+4+i}")
    for i in range(0, 8, 2):
        a(f"v_cvt_pk_bf16_f32 v{last_pack+i//2}, v{e+i}, v{e+i+1}")

def head_reduce(v, t, op):
    a(f"v_{op}_f32_dpp v{v}, v{v}, v{v} row_ror:4 {DPPM}")
    a(f"v_{op}_f32_dpp v{v}, v{v}, v{v} row_ror:8 {DPPM}")
    a(f"v_mov_b32 v{t}, v{v}")
    a(f"v_permlane16_swap_b32 v{v}, v{t}")
    a(f"v_{op}_f32 v{v}, v{v}, v{t}")
    a(f"v_mov_b32 v{t}, v{v}")
    a(f"v_permlane32_swap_b32 v{v}, v{t}")
    a(f"v_{op}_f32 v{v}, v{v}, v{t}")

def trA_addr(v, rowbytes, t):
    a(f"v_bfe_u32 v{v}, v0, 2, 2")
    a(f"v_lshl_add_u32 v{v}, v{vG}, 3, v{v}")
    a(f"v_mul_u32_u24 v{v}, {rowbytes}, v{v}")
    a(f"v_and_b32 v{t}, 3, v0")
    a(f"v_lshl_add_u32 v{v}, v{t}, 3, v{v}")
def B_addr(v, base, stride, t):
    a(f"v_and_b32 v{t}, 7, v0")
    a(f"v_mul_u32_u24 v{v}, {stride}, v{t}")
    a(f"v_lshl_add_u32 v{v}, v{vG}, 4, v{v}")
    a(f"v_add_u32 v{v}, {base}, v{v}")

def zflag_wait(vt):
    L = a.newlabel("ZF")
    a(f"v_and_b32 v{vt}, 7, v0")
    a(f"v_lshlrev_b32 v{vt}, 7, v{vt}")
    a(f"s_mov_b32 s60, {WS_ZF}")
    a.label(L)
    a(f"buffer_load_dword v{vt+1}, v{vt}, {R('ws')}, s60 offen sc1")
    budget()
    a("s_waitcnt vmcnt(0)")
    a(f"v_cmp_eq_u32 vcc, s{sTAG}, v{vt+1}")
    a("s_cmp_eq_u64 vcc, -1")
    a(f"s_cbranch_scc0 {L}")

def masked_gather(n, load, tags, consume, sleep):
    L = a.newlabel("MG")
    a(f"s_mov_b32 s62, {(1 << n) - 1}")
    a.label(L)
    for i in range(n):
        a(f"s_bitcmp1_b32 s62, {i}")
        a(f"s_cbranch_scc0 {L}_l{i}")
        load(i)
        a.label(f"{L}_l{i}")
    budget()
    a("s_waitcnt vmcnt(0)")
    for i in range(n):
        a(f"s_bitcmp1_b32 s62, {i}")
        a(f"s_cbranch_scc0 {L}_c{i}")
        t = tags(i)
        a(f"v_cmp_eq_u32 vcc, s{sTAG}, v{t[0]}")
        if len(t) > 1:
            a(f"v_cmp_eq_u32 s[56:57], s{sTAG}, v{t[1]}")
            a("s_and_b64 vcc, vcc, s[56:57]")
        a("s_cmp_eq_u64 vcc, -1")
        a(f"s_cbranch_scc0 {L}_c{i}")
        consume(i)
        a(f"s_bitset0_b32 s62, {i}")
        a.label(f"{L}_c{i}")
    a("s_cmp_eq_u32 s62, 0")
    a(f"s_cbranch_scc1 {L}_ok")
    if sleep: a(f"s_sleep {sleep}")
    a(f"s_branch {L}")
    a.label(f"{L}_ok")

def tags_ok(regs, t0, t1):
    for k, r in enumerate(regs):
        t = t0 if k % 2 == 0 else t1
        a(f"v_bitop3_b32 v{t}, v{r}, s{sTAG}, {'0' if k < 2 else 'v%d' % t} bitop3:0xbe")
    a(f"v_or_b32 v{t0}, v{t0}, v{t1}")
    a(f"v_cmp_ne_u32 vcc, 0, v{t0}")
    a("s_cmp_eq_u64 vcc, 0")

def capture(fn):
    save = a.items; a.items = []
    fn()
    got = a.items; a.items = save
    return got

def dma(n, voff, srdname, soff, sstep, mstep=1024, pol=None):
    if pol is None: pol = NT
    for i in range(n):
        v = voff(i) if callable(voff) else voff
        a(f"buffer_load_dwordx4 v{v}, {R(srdname)}, s{soff} offen {pol} lds")
        if i < n-1:
            ms = mstep(i) if callable(mstep) else mstep
            ss = sstep(i) if callable(sstep) else sstep
            a(f"s_add_u32 m0, m0, {ms}")
            a(f"s_add_u32 s{soff}, s{soff}, {ss}")

vLANE, vZ, vG, vC, vSC, vONE = 0, 1, 2, 3, 4, 5
vFL = 7
vX = 8
vL16 = 12
vA1 = 64
vA2 = 128
vB1, vCS = 192, 196
vYR, vH1W, vH1R, vSTO, vABR, vGC = 232, 233, 234, 235, 236, 237


def tr_swz_addr(dst, rowbytes, slot_s, slot_add, t0, t1, base_s=None, base_imm=0):
    a(f"v_bfe_u32 v{t0}, v0, 2, 2")
    if rowbytes == 128:
        a(f"v_lshrrev_b32 v{t1}, 1, v{t0}")
        a(f"v_and_b32 v{dst}, 1, v{vG}")
        a(f"v_lshl_add_u32 v{t1}, v{dst}, 1, v{t1}")
    else:
        a(f"v_and_b32 v{t1}, 1, v{vG}")
        a(f"v_lshl_add_u32 v{t1}, v{t1}, 2, v{t0}")
    a(f"v_lshlrev_b32 v{t1}, 1, v{t1}")
    a(f"v_bfe_u32 v{dst}, v0, 1, 1")
    a(f"v_xor_b32 v{t1}, v{t1}, v{dst}")
    a(f"v_xor_b32 v{t1}, s{slot_s}, v{t1}")
    if slot_add: a(f"v_xor_b32 v{t1}, {slot_add*2}, v{t1}")
    a(f"v_lshl_add_u32 v{t0}, v{vG}, 3, v{t0}")
    a(f"v_mul_u32_u24 v{t0}, {rowbytes}, v{t0}")
    a(f"v_lshl_add_u32 v{t0}, v{t1}, 4, v{t0}")
    a(f"v_and_b32 v{t1}, 1, v0")
    a(f"v_lshl_add_u32 v{dst}, v{t1}, 3, v{t0}")
    if base_imm: a(f"v_add_u32 v{dst}, {base_imm}, v{dst}")

def src128(dst, stride, t):
    a(f"v_lshrrev_b32 v{dst}, 3, v0")
    a(f"v_mul_u32_u24 v{dst}, {stride}, v{dst}") if stride < (1 << 24) else None
    a(f"v_bfe_u32 v{t}, v0, 4, 1")
    a(f"v_lshlrev_b32 v{t}, 1, v{t}")
    a(f"v_and_b32 v{dst+1}, 7, v0")
    a(f"v_xor_b32 v{t}, v{t}, v{dst+1}")
    a(f"v_xor_b32 v{dst+1}, 4, v{t}")
    a(f"v_lshl_add_u32 v{dst+1}, v{dst+1}, 4, v{dst}")
    a(f"v_lshl_add_u32 v{dst}, v{t}, 4, v{dst}")
vBIG = 238
vWO = 200
if STAMPS:
    a("s_memrealtime s[92:93]")
a("s_cmp_ge_u32 s2, 256")
a("s_cbranch_scc1 L_END")
a("s_load_dwordx16 s[64:79], s[0:1], 0")
a("s_load_dwordx2 s[88:89], s[0:1], 96")
a("s_load_dwordx8 s[80:87], s[0:1], 64")
a("v_lshrrev_b32 v1, 6, v0")
a("v_and_b32 v0, 63, v0")
a(f"v_readfirstlane_b32 s{sW}, v1")
a(f"v_mov_b32 v{vZ}, 0")
a(f"v_lshrrev_b32 v{vG}, 4, v0")
a(f"v_and_b32 v{vC}, 15, v0")
a(f"v_mov_b32 v{vSC}, {SC}")
a(f"v_mov_b32 v{vONE}, 1")
a(f"s_and_b32 s{sHKV}, s2, 7")
a(f"s_lshr_b32 s{sB}, s2, 5")
a(f"s_bfe_u32 s{sS}, s2, 0x20003")
a(f"s_mov_b32 s{sBUD}, 400000")
a(f"s_and_b32 s{sAW}, s{sW}, 3")
a(f"s_lshl_b32 s60, s{sAW}, 2")
a(f"v_add_u32 v{vFL}, s60, v{vSC}")
a(f"v_lshlrev_b32 v{vL16}, 4, v0")
a(f"v_mov_b32 v{vSTO}, 0")
a(f"v_mov_b32 v{vBIG}, 0x7fff0000")
a(f"s_lshl_b32 s58, s{sB}, 3")
a(f"s_add_u32 s58, s58, s{sHKV}")
a("s_mov_b32 s63, s58")
a("s_lshl_b32 s58, s58, 20")
a(f"s_lshl_b32 s59, s{sS}, 16")
a("s_add_u32 s58, s58, s59")
a("s_add_u32 s58, s58, 786432")
for nm in ("ws", "x", "k", "wq"):
    a(f"s_mov_b32 s{SRD[nm]+2}, {SIZES[nm]}")
    a(f"s_mov_b32 s{SRD[nm]+3}, 0x20000")
def srd_lo(name):
    d = SRD[name]; p = PTR[name]
    a(f"s_mov_b32 s{d}, s{p}")
    a(f"s_and_b32 s{d+1}, s{p+1}, 0xffff")
if STAMPS:
    for i in range(12): a(f"v_mov_b32 v{240+i}, 0")
a(f"s_cmp_ge_u32 s{sW}, 4")
a("s_cbranch_scc1 L_VW")

a("s_setprio 2")
a(f"s_lshl_b32 s61, s{sW}, 10")
if WOFILL:
    a(f"s_cmp_lt_u32 s{sS}, 2")
    a("s_cbranch_scc1 L_K_WOF")
a(f"s_lshl_b32 s60, s{sW}, 14")
a("s_add_u32 s59, s60, s58")
a(f"s_add_u32 m0, s60, {L_K}")
for j in range(4):
    a(f"v_xor_b32 v{16+j}, {j*4}, v{vG}")
    a(f"v_xor_b32 v{16+j}, v{16+j}, v{vC}")
    a(f"v_lshlrev_b32 v{16+j}, 4, v{16+j}")
    a(f"v_lshl_add_u32 v{16+j}, v{vG}, 8, v{16+j}")
a("s_waitcnt lgkmcnt(0)")
srd_lo("k")
a("s_barrier")
dma(NK1, lambda i: 16 + (i & 3), "k", 59, 1024)
a("s_branch L_K_MAIN")
if WOFILL:
    a.label("L_K_WOF")
    a(f"s_lshl_b32 s62, s{sB}, 1")
    a(f"s_add_u32 s62, s62, s{sS}")
    a("s_lshr_b32 s59, s62, 2")
    a("s_and_b32 s60, s62, 3")
    a(f"s_lshl_b32 s62, s{sHKV}, 2")
    a("s_add_u32 s60, s60, s62")
    a("s_lshl_b32 s60, s60, 17")
    a("s_lshl_b32 s59, s59, 8")
    a("s_add_u32 s59, s59, s60")
    a(f"s_lshl_b32 s60, s{sW}, 15")
    a("s_add_u32 s59, s59, s60")
    a(f"s_lshl_b32 m0, s{sW}, 13")
    a(f"v_lshlrev_b32 v16, 1, v{vG}")
    a(f"v_xor_b32 v16, v16, v{vC}")
    a("v_xor_b32 v17, 8, v16")
    a("v_lshlrev_b32 v16, 4, v16")
    a("v_lshlrev_b32 v17, 4, v17")
    a(f"v_lshl_add_u32 v16, v{vG}, 10, v16")
    a(f"v_lshl_add_u32 v17, v{vG}, 10, v17")
    a("s_waitcnt lgkmcnt(0)")
    a(f"s_mov_b32 s{SRD['wq']}, s{PTR['wo']}")
    a(f"s_and_b32 s{SRD['wq']+1}, s{PTR['wo']+1}, 0xffff")
    a("s_barrier")
    dma(8, lambda i: 16 + ((i >> 1) & 1), "wq", 59, 4096)
    a("s_branch L_K_MAIN")

a.label("L_VW")
a("s_setprio 3")
a(f"s_cmp_lg_u32 s{sAW}, 0")
a("s_cbranch_scc1 L_V_NZ")
a(f"v_lshl_add_u32 v13, v0, 2, v{vSC}")
a("v_mov_b32 v14, 1.0")
a(f"v_cmp_eq_u32 vcc, {(C_ONE-SC)//4}, v0")
a("v_cndmask_b32 v14, 0, v14, vcc")
a("ds_write_b32 v13, v14")
a(f"ds_write_b32 v13, v{vZ} offset:256")
a(f"ds_write_b32 v13, v{vZ} offset:512")
a.label("L_V_NZ")
a(f"s_lshl_b32 s60, s{sAW}, 12")
a(f"s_add_u32 m0, s60, {L_WQ}")
a(f"s_lshl_b32 s59, s{sHKV}, 10")
a(f"s_lshl_b32 s60, s{sB}, 7")
a("s_add_u32 s59, s59, s60")
a(f"s_lshl_b32 s60, s{sS}, 20")
a("s_add_u32 s59, s59, s60")
a(f"s_lshl_b32 s60, s{sAW}, 18")
a("s_add_u32 s59, s59, s60")
src128(74, 8192, 14)
a("v_lshrrev_b32 v15, 5, v0")
a("v_lshlrev_b32 v15, 10, v15")
a("v_and_b32 v14, 31, v0")
a("v_lshl_add_u32 v15, v14, 3, v15")
a(f"s_lshl_b32 s60, s{sS}, 8")
a("v_add_u32 v15, s60, v15")
a(f"s_lshl_b32 s60, s{sAW}, 11")
a(f"s_lshl_b32 s61, s{sW}, 10")
a("s_waitcnt lgkmcnt(0)")
srd_lo("x"); srd_lo("wq"); srd_lo("ws")
a(f"s_lshl_b32 s54, s{sHKV}, 5")
a(f"s_add_u32 s54, s54, s{sHKV}")
a("s_add_u32 s54, s54, 24")
a("s_sub_u32 s54, s54, s2")
a(f"s_xor_b32 s55, s{sW}, 5")
a("s_or_b32 s74, s54, s55")
a("s_cbranch_scc1 L_V_NOZ")
for i in range(4): a(f"v_mov_b32 v{76+i}, 0")
a(f"s_mul_i32 s54, s{sB}, 3072")
a(f"s_add_u32 s54, s54, {WS_HACC}")
for j in range(3):
    a(f"buffer_store_dwordx4 v[76:79], v{vL16}, {R('ws')}, s54 offen offset:{j*1024} sc1")
if AO:
    a(f"s_add_u32 s54, s54, {WS_OACC - WS_HACC}")
    for j in range(3):
        a(f"buffer_store_dwordx4 v[76:79], v{vL16}, {R('ws')}, s54 offen offset:{j*1024} sc1")
a.label("L_V_NOZ")
a(f"buffer_load_dwordx4 v[16:19], v{vL16}, {R('x')}, s60 offen")
a(f"buffer_load_dwordx4 v[20:23], v{vL16}, {R('x')}, s60 offen offset:1024")
a(f"buffer_load_dwordx2 v[64:65], v15, {R('x')}, s60 offen")
dma(4, lambda i: 74 + (i & 1), "wq", 59, 65536)
a(f"buffer_load_dword v6, v{vZ}, {R('ws')}, 0 offen sc1")
a("s_barrier")
if STAMPS:
    a("v_mov_b32 v240, s92")
a(f"s_mul_i32 s60, s{sAW}, {2*Y_STR}")
a(f"s_add_u32 s60, s60, {L_Y}")
a("v_lshrrev_b32 v15, 5, v0")
a(f"v_mul_u32_u24 v15, {Y_STR}, v15")
a("v_and_b32 v14, 31, v0")
a("v_lshl_add_u32 v15, v14, 3, v15")
a("v_add_u32 v15, s60, v15")
a("s_mov_b32 s98, 0"); a("s_mov_b32 s99, -1")
a(f"s_lshl_b32 s60, s{sAW}, 1")
tr_swz_addr(70, 128, 60, 0, 14, 24, base_imm=L_WQ)
B_addr(71, L_Y, Y_STR, 14)
a("v_and_b32 v72, 7, v0")
a("v_lshlrev_b32 v72, 17, v72")
a(f"v_lshl_add_u32 v72, v{vG}, 5, v72")
a("v_bfe_u32 v14, v0, 3, 1")
a("v_lshl_add_u32 v72, v14, 4, v72")
a(f"s_lshl_b32 s62, s{sHKV}, 2")
a(f"s_add_u32 s62, s62, s{sS}")
a("s_lshl_b32 s62, s62, 12")
a(f"s_lshl_b32 s60, s{sB}, 9")
a("s_add_u32 s62, s62, s60")
a(f"s_lshl_b32 s60, s{sAW}, 7")
a("s_add_u32 s62, s62, s60")
a(f"s_add_u32 s62, s62, {WS_QP}")
a("s_mov_b32 s100, 0xff00ff00"); a("s_mov_b32 s101, 0xff00ff00")
PQ = 1 if (FQ and PREW) else 0
if PQ:
    for i in range(4): a(f"v_mov_b32 v{76+i}, 0")
    a(f"s_add_u32 s60, s62, {WS_FAST}")
    a(f"buffer_store_dwordx4 v[76:79], v72, {R('ws')}, s60 offen")
a(f"s_waitcnt vmcnt({6+PQ})")
def st0():
    for i in range(4): unpack(16+i, 24+2*i, 25+2*i)
    row_stats(24, 40, 55)
def st1():
    for i in range(4): unpack(20+i, 32+2*i, 33+2*i)
    row_stats(32, 52, 94)
A_, B_ = capture(st0), capture(st1)
for x_, y_ in zip(A_, B_):
    a.items += [x_, y_]
a("v_cndmask_b32 v40, v40, v52, s[98:99]")
a("v_cndmask_b32 v41, v41, v53, s[98:99]")
rnd2(40, 41, 42)
sd_of(41, 42)
rcp_nr(42, 41, 43)
a(f"s_waitcnt vmcnt({5+PQ})")
unpack(64, 66, 67); unpack(65, 68, 69)
for i in range(4):
    a(f"v_sub_f32 v{66+i}, v{66+i}, v40")
rnd2(66, 67, 44); rnd2(68, 69, 45)
for i in range(4):
    a(f"v_mul_f32 v{44+i}, v{66+i}, v42")
for i in range(4):
    a(f"v_fma_f32 v{66+i}, -v{44+i}, v41, v{66+i}")
for i in range(4):
    a(f"v_fma_f32 v{66+i}, v{66+i}, v42, v{44+i}")
a("v_cvt_pk_bf16_f32 v44, v66, v67")
a("v_cvt_pk_bf16_f32 v45, v68, v69")
a("ds_write_b64 v15, v[44:45]")
a(f"s_waitcnt vmcnt({1+PQ})")
set_flag(F_LN1)
a(f"s_waitcnt vmcnt({PQ})")
a("v_add_u32 v53, 1, v6")
a("v_max_u32 v53, 1, v53")
a("v_mov_b32 v55, v53")
a(f"v_readfirstlane_b32 s{sTAG}, v53")
a("s_cmp_lg_u32 s74, 0")
a("s_cbranch_scc1 L_V_NOZF")
a(f"s_lshl_b32 s60, s{sB}, 7")
a(f"s_add_u32 s60, s60, {WS_ZF}")
a("s_mov_b64 exec, 1")
a(f"buffer_store_dword v53, v{vZ}, {R('ws')}, s60 offen sc1")
a("s_mov_b64 exec, -1")
a.label("L_V_NOZF")
stamp(1)
lds_wait4(F_LN1, 16)
for kk in range(4):
    a(f"ds_read_b128 v[{16+kk*4}:{19+kk*4}], v71 offset:{kk*64}")
    for hh in range(2):
        a(f"ds_read_b64_tr_b16 v[{32+kk*4+hh*2}:{33+kk*4+hh*2}], v70 offset:{kk*4096+hh*512}")
for kk in range(4):
    a(f"s_waitcnt lgkmcnt({(3-kk)*3})")
    c = "0" if kk == 0 else "v[56:59]"
    a(f"v_mfma_f32_16x16x32_bf16 v[56:59], v[{32+kk*4}:{35+kk*4}], v[{16+kk*4}:{19+kk*4}], {c}")
a(f"ds_write_b32 v{vSC}, v53 offset:{F_TAG-SC}")
a("v_cndmask_b32 v52, v56, v58, s[100:101]")
a("v_cndmask_b32 v54, v57, v59, s[100:101]")
if FQ:
    a(f"s_add_u32 s60, s62, {WS_FAST}")
    a(f"buffer_store_dwordx4 v[52:55], v72, {R('ws')}, s60 offen")
a(f"buffer_store_dwordx4 v[52:55], v72, {R('ws')}, s62 offen sc1")
if FE1:
    a(f"s_cmp_lg_u32 s{sAW}, 0")
    a("s_cbranch_scc1 L_V_NOXC")
    a("s_getreg_b32 s60, hwreg(HW_REG_XCC_ID, 0, 4)")
    a("v_mov_b32 v56, s60")
    a("v_mov_b32 v57, v53")
    a(f"s_lshl_b32 s60, s{sHKV}, 5")
    a("s_lshr_b32 s59, s2, 3")
    a("s_add_u32 s60, s60, s59")
    a("s_lshl_b32 s60, s60, 3")
    a(f"s_add_u32 s60, s60, {WS_XC}")
    a("s_mov_b64 exec, 1")
    a(f"buffer_store_dwordx2 v[56:57], v{vZ}, {R('ws')}, s60 offen sc1")
    a("s_mov_b64 exec, -1")
    a.label("L_V_NOXC")
a("s_lshl_b32 s59, s63, 14")
a(f"s_lshl_b32 s60, s{sAW}, 10")
a("s_add_u32 s59, s59, s60")
a(f"s_add_u32 s64, s59, {WS_QP}")
for i in range(1, 4): a(f"s_add_u32 s{64+i}, s{63+i}, 4096")
a(f"s_lshl_b32 s60, s{sAW}, 8")
a(f"s_add_u32 s60, s60, {L_QL}")
a("v_lshl_add_u32 v73, v0, 2, s60")
if QACK: a("s_waitcnt vmcnt(0)")
set_flag(F_Q)
stamp(2)
lds_wait4(F_Q, 16)
a(f"s_sleep {SL_Q}")
if FQ:
    a(f"v_add_u32 v74, {WS_FAST}, v{vL16}")
    a("s_mov_b32 s62, 0")
else:
    a(f"v_mov_b32 v74, v{vL16}")
a.label("L_QG")
for i in range(4):
    a(f"buffer_load_dwordx4 v[{32+i*4}:{35+i*4}], v74, {R('ws')}, s{64+i} offen sc1")
set_flag(F_GI)
budget()
if FQ:
    a("s_add_u32 s62, s62, 1")
    a("s_cmp_lt_u32 s62, 3")
    a("s_cselect_b32 s60, 0, s62")
    a("s_and_b32 s60, s60, 1")
    a("s_xor_b32 s60, s60, 1")
    a(f"s_mul_i32 s60, s60, {WS_FAST}")
    a(f"v_add_u32 v74, s60, v{vL16}")
a("s_waitcnt vmcnt(0)")
tags_ok([32+r for r in (1, 3, 5, 7, 9, 11, 13, 15)], 48, 49)
if SL_QR:
    a("s_cbranch_scc1 L_QG_OK")
    a(f"s_sleep {SL_QR}")
    a("s_branch L_QG")
    a.label("L_QG_OK")
else:
    a("s_cbranch_scc0 L_QG")
a("v_add_f32 v48, v32, v36")
a("v_add_f32 v49, v34, v38")
a("v_add_f32 v50, v40, v44")
a("v_add_f32 v51, v42, v46")
a("v_pk_add_f32 v[48:49], v[48:49], v[50:51]")
a("v_cvt_pk_bf16_f32 v48, v48, v49")
a("ds_write_b32 v73, v48")
a("v_mov_b32 v14, 2")
set_flag(F_Q, 14)
stamp(5)
a("s_setprio 1")
a(f"buffer_load_dwordx4 v[{vX}:{vX+3}], v{vL16}, {R('x')}, s61 offen")
srd("v")
a(f"s_and_b32 s60, s{sAW}, 1")
a("s_lshl_b32 s60, s60, 3")
a(f"v_lshlrev_b32 v13, 1, v{vG}")
a("v_or_b32 v13, s60, v13")
a(f"v_xor_b32 v13, v13, v{vC}")
a("v_lshlrev_b32 v13, 4, v13")
a(f"v_lshl_add_u32 v13, v{vG}, 8, v13")
a(f"s_lshl_b32 s60, s{sAW}, 11")
a(f"s_add_u32 s60, s60, {NVK*8192}")
a("s_add_u32 s59, s58, s60")
a(f"s_add_u32 m0, s60, {L_V}")
if WOFILL:
    a(f"s_cmp_ge_u32 s{sS}, 2")
    a("s_cbranch_scc1 L_V_NOWOR")
    a(f"s_lshl_b32 s60, s{sAW}, 2")
    tr_swz_addr(70, 256, 60, 0, 14, 16)
    tr_swz_addr(71, 256, 60, 1, 14, 16)
    lds_wait4(F_W, 16, sleep=1)
    for nt_ in range(2):
        for kk in range(4):
            for hh in range(2):
                r = vWO + (nt_*4+kk)*4 + hh*2
                a(f"ds_read_b64_tr_b16 v[{r}:{r+1}], v{70+nt_} offset:{kk*8192 + hh*1024}")
        a("s_waitcnt lgkmcnt(0)")
    set_flag(F_WR)
    lds_wait4(F_WR, 16)
    a.label("L_V_NOWOR")
step = lambda i: 1024 if i % 2 == 0 else 7168
lds_wait4(F_KI, 16, sleep=1)
dma(16-2*NVK, 13, "v", 59, step, step)
stamp(3)
vPR, vOPA, vTR = 120, 121, 122
a("v_and_b32 v15, 3, v0")
a(f"v_mul_u32_u24 v{vPR}, {P_STR}, v15")
a(f"v_add_u32 v{vPR}, {L_P}, v{vPR}")
a(f"v_lshl_add_u32 v{vPR}, v{vG}, 4, v{vPR}")
a(f"s_lshl_b32 s60, s{sHKV}, 2")
a(f"v_add_u32 v{vOPA}, s60, v15")
a("s_lshr_b32 s60, s2, 3")
a(f"v_lshlrev_b32 v{vOPA}, 5, v{vOPA}")
a(f"v_add_u32 v{vOPA}, s60, v{vOPA}")
a(f"v_lshlrev_b32 v{vOPA}, 10, v{vOPA}")
a("v_bfe_u32 v15, v0, 3, 1")
a(f"v_lshl_add_u32 v{vOPA}, v15, 7, v{vOPA}")
a(f"v_lshl_add_u32 v{vOPA}, v{vG}, 5, v{vOPA}")
a("v_bfe_u32 v15, v0, 2, 1")
a(f"v_lshl_add_u32 v{vOPA}, v15, 4, v{vOPA}")
a("v_bfe_u32 v14, v0, 2, 2")
a(f"v_and_b32 v15, 1, v{vG}")
a("v_lshl_add_u32 v15, v15, 2, v14")
a("v_lshlrev_b32 v15, 1, v15")
a("v_bfe_u32 v16, v0, 1, 1")
a("v_xor_b32 v15, v15, v16")
a(f"v_lshl_add_u32 v14, v{vG}, 3, v14")
a("v_lshlrev_b32 v14, 8, v14")
a("v_and_b32 v16, 1, v0")
a("v_lshl_add_u32 v14, v16, 3, v14")
for dt in range(2):
    a(f"s_lshl_b32 s60, s{sAW}, 2")
    if dt: a("s_add_u32 s60, s60, 2")
    a("v_xor_b32 v16, s60, v15")
    a(f"v_lshl_add_u32 v{vTR+dt}, v16, 4, v14")
a("s_mov_b32 s94, 0x00f000f0"); a("s_mov_b32 s95, 0x00f000f0")
a("s_mov_b32 s96, 0x0f000f00"); a("s_mov_b32 s97, 0x0f000f00")
a("s_mov_b32 s98, 0xf000f000"); a("s_mov_b32 s99, 0xf000f000")
a(f"s_lshl_b32 s60, s{sAW}, 8")
a(f"s_add_u32 s60, s60, {WS_OP}")
a(f"v_mov_b32 v105, s{sTAG}")
a(f"v_mov_b32 v107, s{sTAG}")
a(f"s_lshl_b32 s61, s{sHKV}, 5")
a("s_lshr_b32 s62, s2, 3")
a("s_add_u32 s61, s61, s62")
a("s_lshl_b32 s61, s61, 7")
a(f"s_add_u32 s61, s61, {WS_OF}")
a(f"s_lshl_b32 s62, s{sAW}, {2 if E1F == 3 else 15}")
a("s_add_u32 s61, s61, s62")
PO = 1 if (FE1 and PREW) else 0
if PO:
    a(f"v_not_b32 v76, v105")
    a("v_mov_b32 v77, v76"); a("v_mov_b32 v78, v76"); a("v_mov_b32 v79, v76")
    a(f"s_add_u32 s62, s60, {WS_FAST}")
    a(f"buffer_store_dwordx4 v[76:79], v{vOPA}, {R('ws')}, s62 offen")
lds_wait4(F_B, 16, sleep=1)
vP = 16
for kk in range(8):
    a(f"ds_read_b128 v[{vP+kk*4}:{vP+kk*4+3}], v{vPR} offset:{kk*64}")
stamp(9)
vA = 48
vO = 96
def pv_reads(kk):
    base = vA + (kk % 6)*8
    for dt in range(2):
        for hh in range(2):
            r = base + dt*4 + hh*2
            a(f"ds_read_b64_tr_b16 v[{r}:{r+1}], v{vTR+dt} offset:{kk*8192 + hh*1024}")
def pv_mfma(kk, dt):
    base = vA + (kk % 6)*8
    c = "0" if kk == 0 else f"v[{vO+dt*4}:{vO+dt*4+3}]"
    a(f"v_mfma_f32_16x16x32_bf16 v[{vO+dt*4}:{vO+dt*4+3}], v[{base+dt*4}:{base+dt*4+3}], v[{vP+kk*4}:{vP+kk*4+3}], {c}")
extra = PO
for gi, grp in enumerate((list(range(NVK)), list(range(NVK, 7)), [7])):
    last = grp[-1]
    if gi == 0:
        lds_wait4(F_VK, 108)
    else:
        a(f"v_mov_b32 v14, {last+1}")
        a(f"s_waitcnt vmcnt({14-2*last+extra})")
        set_flag(F_V, 14)
        lds_wait4(F_V, 108, minval=last+1)
    if E1F and gi == E1F:
        a("s_mov_b64 exec, 1")
        a(f"buffer_store_dword v105, v{vZ}, {R('ws')}, s61 offen sc1")
        a("s_mov_b64 exec, -1")
        extra += 1
    pend = list(grp)
    issued = []
    for kk in pend[:3]:
        pv_reads(kk); issued.append(kk)
    for idx, kk in enumerate(pend):
        after = len(issued) - 1 - idx
        for dt in range(2):
            a(f"s_waitcnt lgkmcnt({after*4 + 2 - 2*dt})")
            pv_mfma(kk, dt)
        if idx + 3 < len(pend):
            pv_reads(pend[idx+3]); issued.append(pend[idx+3])
a("v_mov_b32 v14, 9")
a(f"v_cndmask_b32 v104, v{vO}, v{vO+2}, s[94:95]")
a(f"v_cndmask_b32 v106, v{vO+1}, v{vO+3}, s[94:95]")
a(f"v_cndmask_b32 v104, v104, v{vO+4}, s[96:97]")
a(f"v_cndmask_b32 v106, v106, v{vO+5}, s[96:97]")
a(f"v_cndmask_b32 v104, v104, v{vO+6}, s[98:99]")
a(f"v_cndmask_b32 v106, v106, v{vO+7}, s[98:99]")
if FE1:
    a(f"s_add_u32 s62, s60, {WS_FAST}")
    a(f"buffer_store_dwordx4 v[104:107], v{vOPA}, {R('ws')}, s62 offen")
a(f"buffer_store_dwordx4 v[104:107], v{vOPA}, {R('ws')}, s60 offen sc1")
if E1F == 3:
    a("s_mov_b64 exec, 1")
    a(f"buffer_store_dword v105, v{vZ}, {R('ws')}, s61 offen sc1")
    a("s_mov_b64 exec, -1")
stamp(4)
a(f"s_cmp_ge_u32 s{sS}, 2")
a("s_cbranch_scc1 L_V_NOTWO")

a(f"s_lshl_b32 s58, s{sB}, 1")
a(f"s_add_u32 s58, s58, s{sS}")
a("s_lshl_b32 s64, s58, 3")
a(f"s_add_u32 s64, s64, s{sHKV}")
a("s_lshl_b32 s64, s64, 7")
a(f"s_add_u32 s64, s64, {WS_FL}")
a("s_lshr_b32 s63, s58, 2")
a("s_lshl_b32 s63, s63, 2")
a(f"s_add_u32 s63, s63, s{sAW}")
a("s_waitcnt vmcnt(0)")
set_flag(F_V, 14)
B_addr(14, L_OL, OL_STR, 15)
a(f"s_mul_i32 s60, s{sAW}, {8*RL_STR}")
a(f"s_add_u32 s60, s60, {L_RL}")
a("v_and_b32 v15, 7, v0")
a(f"v_mul_u32_u24 v15, {RL_STR}, v15")
a("v_bfe_u32 v16, v0, 3, 1")
a("v_lshl_add_u32 v15, v16, 6, v15")
a(f"v_lshl_add_u32 v15, v{vG}, 4, v15")
a("v_add_u32 v15, s60, v15")
a("v_bfe_u32 v16, v0, 2, 2")
a("v_and_b32 v17, 3, v0")
a(f"v_mul_u32_u24 v18, {RL_STR}, v{vG}")
a("v_lshl_add_u32 v18, v16, 5, v18")
a("v_lshl_add_u32 v18, v17, 2, v18")
a("v_add_u32 v18, s60, v18")
a(f"v_mov_b32 v19, {C_ONE}")
a(f"v_mov_b32 v20, {C_ZERO}")
a("v_cmp_eq_u32 s[56:57], 3, v17")
a("v_cmp_eq_u32 s[58:59], 2, v17")
for j in range(3):
    for bh in range(2):
        r = 24 + j*2 + bh
        a(f"v_add_u32 v{r}, {j*12 + bh*4*RL_STR}, v18")
        a(f"v_cndmask_b32 v{r}, v{r}, v19, s[56:57]")
        if j == 2:
            a(f"v_cndmask_b32 v{r}, v{r}, v20, s[58:59]")
a(f"v_mul_u32_u24 v21, 3072, v{vG}")
a("v_and_b32 v22, 15, v0")
a("v_lshl_add_u32 v21, v22, 2, v21")
a("s_lshl_b32 s63, s63, 6")
a(f"s_add_u32 s63, s63, {WS_HACC}")
a("s_add_u32 s61, s63, 12288")
vA = vWO
if not WOFILL:
    a(f"s_lshl_b32 s60, s{sAW}, 2")
    tr_swz_addr(70, 256, 60, 0, 30, 31, base_imm=L_K)
    tr_swz_addr(71, 256, 60, 1, 30, 31, base_imm=L_K)
    lds_wait4(F_W, 32)
    for nt_ in range(2):
        for kk in range(4):
            for hh in range(2):
                r = vWO + (nt_*4+kk)*4 + hh*2
                a(f"ds_read_b64_tr_b16 v[{r}:{r+1}], v{70+nt_} offset:{kk*8192 + hh*1024}")
        a("s_waitcnt lgkmcnt(0)")
stamp(10)
if BAR: a("s_barrier")
else: lds_wait4(F_C, 64)
stamp(5)
vB = 64
for kk in range(4):
    a(f"ds_read_b128 v[{vB+kk*4}:{vB+kk*4+3}], v14 offset:{kk*64}")
for kk in range(4):
    a(f"s_waitcnt lgkmcnt({3-kk})")
    for nt_ in range(2):
        c = "0" if kk == 0 else f"v[{80+nt_*4}:{83+nt_*4}]"
        r = vA + (nt_*4+kk)*4
        a(f"v_mfma_f32_16x16x32_bf16 v[{80+nt_*4}:{83+nt_*4}], v[{r}:{r+3}], v[{vB+kk*4}:{vB+kk*4+3}], {c}")
for i in range(4):
    a(f"v_cndmask_b32 v{88+i}, v{80+i}, v{84+i}, s[100:101]")
a("ds_write_b128 v15, v[88:91]")
for r in range(6):
    a(f"ds_read_b32 v{92+r}, v{24+r}")
for j in range(3):
    for bh in range(2):
        r = j*2 + bh
        a(f"s_waitcnt lgkmcnt({5-r})")
        a(f"buffer_atomic_add_f32 v{92+r}, v21, {R('ws')}, {'s63' if bh == 0 else 's61'} offen offset:{j*1024}")
a(f"s_cmp_lg_u32 s{sAW}, {99 if FLEARLY else 3}")
a("s_cbranch_scc1 L_V_NOFL")
a("s_mov_b64 exec, 1")
a(f"buffer_store_dword v105, v{vZ}, {R('ws')}, s64 offen sc1")
a("s_mov_b64 exec, -1")
a.label("L_V_NOFL")
stamp(6)
if STAMPS == 1:
    a("s_waitcnt vmcnt(0)")
    stamp(7)
a("s_branch L_FIN")


a.label("L_K_MAIN")
if STAMPS:
    a("v_mov_b32 v240, s92")
srd_lo("k"); srd_lo("x"); srd_lo("ws"); srd("v")
a(f"buffer_load_dwordx4 v[{vX}:{vX+3}], v{vL16}, {R('x')}, s61 offen")
if CODEPF:
    a("s_getpc_b64 s[68:69]")
    a.label("L_PCREF")
    a("s_sub_u32 s68, s68, L_PCREF-L_VW")
    a("s_subb_u32 s69, s69, 0")
    a("s_and_b32 s68, s68, 0xfffffff0")
    a("s_lshr_b32 s60, s2, 3")
    a("s_lshl_b32 s60, s60, 2")
    a(f"s_add_u32 s60, s60, s{sW}")
    a(f"s_cmp_ge_u32 s60, CODE_KB")
    a("s_cbranch_scc1 L_K_NOCP")
    a("s_lshl_b32 s60, s60, 10")
    a(f"v_add_u32 v14, s60, v{vL16}")
    a("global_load_dwordx4 v[20:23], v14, s[68:69]")
    a.label("L_K_NOCP")
vQA, vMXA, vMXW, vPW, vSTA, vQW = 120, 121, 122, 123, 124, 125
vKR = 126
a("v_and_b32 v15, 3, v0")
a(f"v_lshlrev_b32 v{vQA}, 8, v15")
a(f"v_lshl_add_u32 v{vQA}, v{vG}, 4, v{vQA}")
a(f"v_add_u32 v{vQA}, {L_QL}, v{vQA}")
a(f"v_lshl_add_u32 v{vMXA}, v15, 4, v{vSC}")
a(f"s_lshl_b32 s60, s{sW}, 2")
a(f"v_add_u32 v{vMXW}, s60, v{vMXA}")
a(f"v_mul_u32_u24 v14, {P_STR}, v15")
a(f"v_add_u32 v14, {L_P}, v14")
a(f"v_bfe_u32 v{vPW}, v0, 2, 2")
a(f"v_lshlrev_b32 v{vPW}, 5, v{vPW}")
a(f"v_lshl_add_u32 v{vPW}, v{vG}, 3, v{vPW}")
a(f"s_lshl_b32 s60, s{sW}, 7")
a(f"v_add3_u32 v{vPW}, v{vPW}, s60, v14")
a(f"s_lshl_b32 s60, s{sHKV}, 2")
a(f"v_add_u32 v{vSTA}, s60, v15")
a("s_lshr_b32 s60, s2, 3")
a(f"v_lshlrev_b32 v{vSTA}, 5, v{vSTA}")
a(f"v_add_u32 v{vSTA}, s60, v{vSTA}")
a(f"v_lshlrev_b32 v{vSTA}, 4, v{vSTA}")
a(f"s_lshl_b32 s60, s{sW}, 8")
a(f"s_add_u32 s60, s60, {L_QL}")
a(f"v_lshl_add_u32 v{vQW}, v0, 2, s60")
a(f"s_lshl_b32 s60, s{sW}, 14")
a(f"s_add_u32 s60, s60, {L_K}")
for kk in range(4):
    a(f"v_xor_b32 v{vKR+kk}, {kk*4}, v{vG}")
    a(f"v_xor_b32 v{vKR+kk}, v{vKR+kk}, v{vC}")
    a(f"v_lshlrev_b32 v{vKR+kk}, 4, v{vKR+kk}")
    a(f"v_lshl_add_u32 v{vKR+kk}, v{vC}, 8, v{vKR+kk}")
    a(f"v_add_u32 v{vKR+kk}, s60, v{vKR+kk}")
a("s_mov_b32 s94, 0x00f000f0"); a("s_mov_b32 s95, 0x00f000f0")
a("s_mov_b32 s96, 0x0f000f00"); a("s_mov_b32 s97, 0x0f000f00")
a("s_mov_b32 s98, 0xf000f000"); a("s_mov_b32 s99, 0xf000f000")
a("s_lshl_b32 s59, s63, 14")
a(f"s_lshl_b32 s60, s{sW}, 10")
a("s_add_u32 s59, s59, s60")
a(f"s_add_u32 s64, s59, {WS_QP}")
for i in range(1, 4): a(f"s_add_u32 s{64+i}, s{63+i}, 4096")
for j in range(4):
    a(f"v_xor_b32 v{16+j}, {j*4}, v{vG}")
    a(f"v_xor_b32 v{16+j}, v{16+j}, v{vC}")
    a(f"v_lshlrev_b32 v{16+j}, 4, v{16+j}")
    a(f"v_lshl_add_u32 v{16+j}, v{vG}, 8, v{16+j}")
a(f"s_lshl_b32 s60, s{sW}, 14")
a("s_add_u32 s68, s60, s58")
a(f"s_add_u32 m0, s60, {L_K}")
a(f"s_add_u32 s68, s68, {NK1*1024}")
a(f"s_add_u32 m0, m0, {NK1*1024}")
a(f"s_and_b32 s60, s{sW}, 1")
a("s_lshl_b32 s60, s60, 3")
a(f"v_lshlrev_b32 v13, 1, v{vG}")
a("v_or_b32 v13, s60, v13")
a(f"v_xor_b32 v13, v13, v{vC}")
a("v_lshlrev_b32 v13, 4, v13")
a(f"v_lshl_add_u32 v13, v{vG}, 8, v13")
a(f"s_lshl_b32 s61, s{sW}, 11")
a("s_add_u32 s69, s58, s61")
NTOT = 16 + 2*NVK
def stream_item(i):
    if i < 16:
        a(f"buffer_load_dwordx4 v{16 + (i & 3)}, {R('k')}, s68 offen {NT} lds")
        if i < 15:
            a("s_add_u32 m0, m0, 1024")
            a("s_add_u32 s68, s68, 1024")
        else:
            a("s_mov_b32 m0, s61")
    else:
        j = i - 16
        a(f"buffer_load_dwordx4 v13, {R('v')}, s69 offen {NT} lds")
        st_ = 1024 if j % 2 == 0 else 7168
        a(f"s_add_u32 m0, m0, {st_}")
        a(f"s_add_u32 s69, s69, {st_}")
for i in range(NK1, NTOT):
    a(f"ds_read_b128 v[24:27], v{vSC} offset:{F_GI-SC}")
    a(f"s_waitcnt vmcnt({THR}) lgkmcnt(0)")
    a("v_and_b32 v24, v24, v25")
    a("v_and_b32 v26, v26, v27")
    a("v_and_b32 v24, v24, v26")
    a("v_readfirstlane_b32 s54, v24")
    a("s_cmp_lg_u32 s54, 0")
    a(f"s_cbranch_scc1 L_KF{i}")
    stream_item(i)
a("s_branch L_KFE")
for i in range(NK1, NTOT):
    a.label(f"L_KF{i}")
    stream_item(i)
a.label("L_KFE")
set_flag(F_KI)
stamp(1)
vK = 132
lds_wait4(F_Q, 56, minval=2, sleep=1)
a(f"ds_read_b32 v14, v{vSC} offset:{F_TAG-SC}")
stamp(2)
a("s_setprio 3")
vQ = 80
for kk in range(4):
    a(f"ds_read_b128 v[{vQ+kk*4}:{vQ+kk*4+3}], v{vQA} offset:{kk*64}")
vS = 96
a("s_waitcnt lgkmcnt(4)")
a(f"v_readfirstlane_b32 s{sTAG}, v14")
for t in range(4):
    a(f"s_waitcnt vmcnt({(3-t)*4 + 2*NVK})")
    for kk in range(4):
        r = vK + (t*4+kk)*4
        a(f"ds_read_b128 v[{r}:{r+3}], v{vKR+kk} offset:{t*4096}")
    for kk in range(4):
        a(f"s_waitcnt lgkmcnt({3-kk})")
        r = vK + (t*4+kk)*4
        c = "0" if kk == 0 else f"v[{vS+t*4}:{vS+t*4+3}]"
        a(f"v_mfma_f32_16x16x32_bf16 v[{vS+t*4}:{vS+t*4+3}], v[{r}:{r+3}], v[{vQ+kk*4}:{vQ+kk*4+3}], {c}")
vE = 112
for i in range(4):
    a(f"v_cndmask_b32 v{vE+i}, v{vS+i}, v{vS+4+i}, s[94:95]")
for i in range(4):
    a(f"v_cndmask_b32 v{vE+i}, v{vE+i}, v{vS+8+i}, s[96:97]")
for i in range(4):
    a(f"v_cndmask_b32 v{vE+i}, v{vE+i}, v{vS+12+i}, s[98:99]")
rnd2(vE, vE+1, 116); rnd2(vE+2, vE+3, 117)
a(f"s_mov_b32 s55, {SCALE}")
for i in range(4):
    a(f"v_mul_f32 v{vE+i}, s55, v{vE+i}")
rnd2(vE, vE+1, 116); rnd2(vE+2, vE+3, 117)
vM, vL = 118, 119
a(f"v_max_f32 v{vM}, v{vE}, v{vE+1}")
a(f"v_max3_f32 v{vM}, v{vM}, v{vE+2}, v{vE+3}")
head_reduce(vM, 119, "max")
a(f"ds_write_b32 v{vMXW}, v{vM} offset:{L_MX-SC}")
set_flag(F_A)
lds_wait4(F_A, 56)
a(f"ds_read_b128 v[56:59], v{vMXA} offset:{L_MX-SC}")
a("s_waitcnt lgkmcnt(0)")
a(f"v_max3_f32 v{vM}, v56, v57, v58")
a(f"v_max_f32 v{vM}, v{vM}, v59")
a(f"s_mov_b32 s55, {LOG2E}")
for i in range(4):
    a(f"v_sub_f32 v{vE+i}, v{vE+i}, v{vM}")
for i in range(4):
    a(f"v_mul_f32 v{vE+i}, s55, v{vE+i}")
for i in range(4):
    a(f"v_exp_f32 v{vE+i}, v{vE+i}")
a(f"v_add_f32 v{vL}, v{vE}, v{vE+1}")
a(f"v_add_f32 v56, v{vE+2}, v{vE+3}")
a(f"v_add_f32 v{vL}, v{vL}, v56")
a(f"v_cvt_pk_bf16_f32 v116, v{vE}, v{vE+1}")
a(f"v_cvt_pk_bf16_f32 v117, v{vE+2}, v{vE+3}")
a(f"ds_write_b64 v{vPW}, v[116:117]")
head_reduce(vL, 56, "add")
a(f"ds_write_b32 v{vMXW}, v{vL} offset:{L_SUM-SC}")
set_flag(F_B)
lds_wait4(F_B, 56)
a(f"ds_read_b128 v[56:59], v{vMXA} offset:{L_SUM-SC}")
a("s_waitcnt lgkmcnt(0)")
a(f"v_add_f32 v{vL}, v56, v57")
a("v_add_f32 v58, v58, v59")
a(f"v_add_f32 v58, v{vL}, v58")
a(f"v_mov_b32 v56, v{vM}")
a(f"v_mov_b32 v57, s{sTAG}")
a(f"v_mov_b32 v59, s{sTAG}")
a(f"s_lshl_b64 s[56:57], 1, s{sW}")
a(f"s_mov_b32 s61, {WS_ST}")
a("s_mov_b64 exec, s[56:57]")
a(f"buffer_store_dwordx4 v[56:59], v{vSTA}, {R('ws')}, s61 offen sc1")
if FE1:
    a(f"s_mov_b32 s61, {WS_ST + WS_FAST}")
    a(f"buffer_store_dwordx4 v[56:59], v{vSTA}, {R('ws')}, s61 offen")
a("s_mov_b64 exec, -1")
stamp(3)
a("s_setprio 0")
a(f"s_cmp_ge_u32 s{sS}, 2")
a("s_cbranch_scc1 L_K_NOTWO")

if not WOFILL:
    a(f"s_lshl_b32 s62, s{sB}, 1")
    a(f"s_add_u32 s62, s62, s{sS}")
    a("s_lshr_b32 s59, s62, 2")
    a("s_and_b32 s60, s62, 3")
    a(f"s_lshl_b32 s62, s{sHKV}, 2")
    a("s_add_u32 s60, s60, s62")
    a("s_lshl_b32 s60, s60, 17")
    a("s_lshl_b32 s59, s59, 8")
    a("s_add_u32 s59, s59, s60")
    a(f"s_lshl_b32 s60, s{sW}, 15")
    a("s_add_u32 s59, s59, s60")
    a(f"s_lshl_b32 s60, s{sW}, 13")
    a(f"s_add_u32 m0, s60, {L_K}")
    a(f"v_lshlrev_b32 v16, 1, v{vG}")
    a(f"v_xor_b32 v16, v16, v{vC}")
    a("v_xor_b32 v17, 8, v16")
    a("v_lshlrev_b32 v16, 4, v16")
    a("v_lshlrev_b32 v17, 4, v17")
    a(f"v_lshl_add_u32 v16, v{vG}, 10, v16")
    a(f"v_lshl_add_u32 v17, v{vG}, 10, v17")
    a(f"s_mov_b32 s{SRD['wq']}, s{PTR['wo']}")
    a(f"s_and_b32 s{SRD['wq']+1}, s{PTR['wo']+1}, 0xffff")
    dma(8, lambda i: 16 + ((i >> 1) & 1), "wq", 59, 4096)
def coefs():
    a(f"v_max_f32_dpp v72, v68, v68 quad_perm:[1,0,3,2] {DPPM}")
    a(f"v_max_f32_dpp v72, v72, v72 quad_perm:[2,3,0,1] {DPPM}")
    a("v_sub_f32 v72, v68, v72")
    a(f"v_mul_f32 v72, {LOG2E}, v72")
    a("v_exp_f32 v72, v72")
    a("v_mul_f32 v73, v72, v70")
    a(f"v_add_f32_dpp v73, v73, v73 quad_perm:[1,0,3,2] {DPPM}")
    a(f"v_add_f32_dpp v73, v73, v73 quad_perm:[2,3,0,1] {DPPM}")
    a("v_rcp_f32 v74, v73")
    a("v_mul_f32 v72, v72, v74")
    for i in range(8):
        a(f"v_readlane_b32 s{66+i}, v72, {i}")
    a("s_nop 1")
def fl_load():
    if E1F == 3: a(f"buffer_load_dwordx4 v[60:63], v15, {R('ws')}, s61 offen sc1")
    else: a(f"buffer_load_dword v60, v15, {R('ws')}, s61 offen sc1")
a(f"s_waitcnt vmcnt({9+FE1})")
set_flag(F_VK)
a(f"s_lshl_b32 s58, s{sB}, 1")
a(f"s_add_u32 s58, s58, s{sS}")
a("s_and_b32 s58, s58, 3")
a(f"s_lshl_b32 s60, s{sHKV}, 2")
a("s_add_u32 s58, s58, s60")
a("s_setprio 3")
a("s_lshl_b32 s65, s58, 9")
a(f"s_lshl_b32 s60, s{sW}, 7")
a("s_add_u32 s65, s65, s60")
a(f"s_add_u32 s65, s65, {WS_ST}")
a("s_lshl_b32 s58, s58, 15")
a(f"s_lshl_b32 s60, s{sW}, 13")
a("s_add_u32 s58, s58, s60")
a(f"s_add_u32 s58, s58, {WS_OP}")
a("s_add_u32 s59, s58, 4096")
a(f"s_mul_i32 s60, s{sW}, {2*OL_STR}")
a(f"s_add_u32 s60, s60, {L_OL}")
a("v_lshl_add_u32 v13, v0, 2, s60")
a("v_and_b32 v14, 7, v0")
a("v_lshlrev_b32 v15, 7, v14")
a("v_lshlrev_b32 v14, 4, v14")
a(f"s_lshl_b32 s61, s{sHKV}, 12")
a(f"s_lshl_b32 s60, s{sW}, 10")
a("s_add_u32 s61, s61, s60")
a(f"s_add_u32 s61, s61, {WS_OF}")
a("s_mov_b32 s62, 0xff")
a(f"s_lshl_b32 s75, s{sB}, 1")
a(f"s_add_u32 s75, s75, s{sS}")
a("s_lshl_b32 s75, s75, 3")
a(f"s_add_u32 s75, s75, s{sHKV}")
a("s_lshl_b32 s75, s75, 7")
a(f"s_add_u32 s75, s75, {WS_FL}")
if FE1:
    a("v_and_b32 v66, 31, v0")
    a("v_lshlrev_b32 v66, 3, v66")
    a(f"s_lshl_b32 s64, s{sHKV}, 8")
    a(f"s_add_u32 s64, s64, {WS_XC}")
    a(f"buffer_load_dwordx2 v[76:77], v66, {R('ws')}, s64 offen sc1")
zflag_wait(64)
set_flag(F_W)
stamp(4)
vD = 16
if FE1:
    a("s_getreg_b32 s60, hwreg(HW_REG_XCC_ID, 0, 4)")
    a("v_cmp_eq_u32 vcc, s60, v76")
    a(f"v_cmp_eq_u32 s[56:57], s{sTAG}, v77")
    a("s_and_b64 vcc, vcc, s[56:57]")
    a("s_cmp_eq_u64 vcc, -1")
    a("s_cbranch_scc0 L_E1")
    a(f"v_add_u32 v66, {WS_FAST}, v{vL16}")
    a(f"v_add_u32 v67, {WS_FAST}, v14")
    a("s_mov_b32 s64, 3000")
    def fld(i):
        if i < 8: a(f"buffer_load_dwordx4 v[{vD+i*4}:{vD+i*4+3}], v66, {R('ws')}, {'s58' if i < 4 else 's59'} offen offset:{(i%4)*1024} {FLD}")
        else: a(f"buffer_load_dwordx4 v[68:71], v67, {R('ws')}, s65 offen {FLD}")
    if F1WAIT: lds_wait4(F_V, 60, minval=F1WAIT)
    fld(8)
    for i in range(8): fld(i)
    a("s_waitcnt vmcnt(8)")
    coefs()
    a.label("L_F1")
    a("s_waitcnt vmcnt(0)")
    tags_ok([vD+i*4+k for i in range(8) for k in (1, 3)] + [69, 71], 60, 61)
    a("s_cbranch_scc1 L_E1_FMA")
    if SL_F1: a(f"s_sleep {SL_F1}")
    for i in (8, 0, 1, 2, 3, 4, 5, 6, 7):
        t0, t1 = (vD+i*4+1, vD+i*4+3) if i < 8 else (69, 71)
        a(f"v_cmp_eq_u32 vcc, s{sTAG}, v{t0}")
        a(f"v_cmp_eq_u32 s[56:57], s{sTAG}, v{t1}")
        a("s_and_b64 vcc, vcc, s[56:57]")
        a("s_cmp_eq_u64 vcc, -1")
        a(f"s_cbranch_scc1 L_F1_c{i}")
        fld(i)
        if i == 8:
            a("s_waitcnt vmcnt(0)")
            coefs()
        a.label(f"L_F1_c{i}")
    a("s_sub_u32 s64, s64, 1")
    a("s_cbranch_scc0 L_F1")
    a("s_waitcnt vmcnt(0)")
    a("s_mov_b32 s62, 0xff")
def ld(i): a(f"buffer_load_dwordx4 v[{vD+i*4}:{vD+i*4+3}], v{vL16}, {R('ws')}, {'s58' if i < 4 else 's59'} offen offset:{(i%4)*1024} sc1")
a.label("L_E1")
fl_load()
budget()
a("s_waitcnt vmcnt(0)")
a(f"v_cmp_eq_u32 vcc, s{sTAG}, v60")
if E1F == 3:
    for r in (61, 62, 63):
        a(f"v_cmp_eq_u32 s[56:57], s{sTAG}, v{r}")
        a("s_and_b64 vcc, vcc, s[56:57]")
a("s_and_b32 s60, vcc_lo, s62")
a("s_cbranch_scc1 L_E1_GO")
if SL_P1: a(f"s_sleep {SL_P1}")
a("s_branch L_E1")
a.label("L_E1_GO")
for i in range(8):
    a(f"s_bitcmp1_b32 s60, {i}")
    a(f"s_cbranch_scc0 L_E1_l{i}")
    ld(i)
    a.label(f"L_E1_l{i}")
a("s_cmp_lg_u32 s60, s62")
a("s_cbranch_scc1 L_E1_NS")
a.label("L_E1_ST")
a(f"buffer_load_dwordx4 v[68:71], v14, {R('ws')}, s65 offen sc1")
a.label("L_E1_NS")
a("s_waitcnt vmcnt(0)")
for i in range(8):
    a(f"s_bitcmp1_b32 s60, {i}")
    a(f"s_cbranch_scc0 L_E1_c{i}")
    a(f"v_cmp_eq_u32 vcc, s{sTAG}, v{vD+i*4+1}")
    a(f"v_cmp_eq_u32 s[56:57], s{sTAG}, v{vD+i*4+3}")
    a("s_and_b64 vcc, vcc, s[56:57]")
    a("s_cmp_eq_u64 vcc, -1")
    a(f"s_cbranch_scc0 L_E1_c{i}")
    a(f"s_bitset0_b32 s62, {i}")
    a.label(f"L_E1_c{i}")
a("s_cmp_lg_u32 s62, 0")
a("s_cbranch_scc1 L_E1")
a(f"v_cmp_eq_u32 vcc, s{sTAG}, v69")
a(f"v_cmp_eq_u32 s[56:57], s{sTAG}, v71")
a("s_and_b64 vcc, vcc, s[56:57]")
a("s_mov_b32 s60, 0")
budget()
a("s_cmp_eq_u64 vcc, -1")
a("s_cbranch_scc0 L_E1_ST")
coefs()
a.label("L_E1_FMA")
if FLEARLY == 2:
    a(f"s_cmp_lg_u32 s{sW}, 3")
    a("s_cbranch_scc1 L_K_NOFL2")
    a("s_mov_b64 exec, 1")
    a(f"buffer_store_dword v17, v{vZ}, {R('ws')}, s75 offen sc1")
    a("s_mov_b64 exec, -1")
    a.label("L_K_NOFL2")
stamp(5)
for i in range(8):
    bb = i // 4
    op = "v_mul_f32" if i % 4 == 0 else "v_fmac_f32"
    a(f"{op} v{56+bb*2}, s{66+i}, v{vD+i*4}")
    a(f"{op} v{57+bb*2}, s{66+i}, v{vD+i*4+2}")
a("v_cvt_pk_bf16_f32 v56, v56, v57")
a("v_cvt_pk_bf16_f32 v58, v58, v59")
a("ds_write_b32 v13, v56")
a(f"ds_write_b32 v13, v58 offset:{OL_STR}")
if BAR:
    a("s_waitcnt lgkmcnt(0)")
    a("s_barrier")
else:
    set_flag(F_C)
if FLEARLY == 1:
    a(f"s_cmp_lg_u32 s{sW}, 3")
    a("s_cbranch_scc1 L_K_NOFL")
    if not BAR: lds_wait4(F_C, 60)
    a("s_mov_b64 exec, 1")
    a(f"buffer_store_dword v17, v{vZ}, {R('ws')}, s75 offen sc1")
    a("s_mov_b64 exec, -1")
    a.label("L_K_NOFL")
stamp(6)
if AO: a("s_branch L_FIN")
a(f"s_cmp_lg_u32 s{sS}, 0")
a("s_cbranch_scc1 L_FIN")

srd("b2"); srd("out")
a("v_and_b32 v13, 7, v0")
a("v_lshlrev_b32 v14, 2, v13")
a(f"s_lshl_b32 s58, s{sHKV}, 7")
a(f"s_lshl_b32 s59, s{sW}, 5")
a("s_add_u32 s58, s58, s59")
a(f"s_lshl_b32 s59, s{sB}, 10")
a("s_add_u32 s59, s59, s58")
a(f"buffer_load_dword v15, v14, {R('b2')}, s58 offen")
a("s_lshl_b32 s60, s63, 2")
a(f"s_add_u32 s60, s60, s{sW}")
a("s_lshl_b32 s60, s60, 12")
a(f"s_add_u32 s60, s60, {WS_OUTP}")
a("v_lshlrev_b32 v16, 3, v13")
a("v_and_b32 v17, 31, v0")
a("v_lshlrev_b32 v17, 4, v17")
a("v_mov_b32 v18, 0")
a("v_mov_b32 v19, 0")
a("v_mov_b32 v20, 1.0")
a("v_cmp_gt_u32 vcc, 32, v0")
a("v_cndmask_b32 v20, 0, v20, vcc")
a("s_waitcnt vmcnt(0)")
unpack(15, 22, 23)
vD = 24
def ld(i):
    if i < 3: a(f"buffer_load_dwordx4 v[{vD+i*4}:{vD+i*4+3}], v{vL16}, {R('ws')}, s60 offen offset:{i*1024} sc1")
    elif i == 3: a(f"buffer_load_dwordx4 v[{vD+12}:{vD+15}], v17, {R('ws')}, s60 offen offset:3072 sc1")
    else: a(f"buffer_load_dwordx2 v[40:41], v16, {R('ws')}, s60 offen offset:{NMLP*128} sc1")
def tg(i): return [vD+i*4+1, vD+i*4+3] if i < 4 else [41]
def cons(i):
    if i < 3:
        a(f"v_add_f32 v18, v18, v{vD+i*4}")
        a(f"v_add_f32 v19, v19, v{vD+i*4+2}")
    elif i == 3:
        a(f"v_fmac_f32 v18, v20, v{vD+12}")
        a(f"v_fmac_f32 v19, v20, v{vD+14}")
    else:
        unpack(40, 42, 43)
if E3F:
    a(f"s_lshr_b32 s61, s{sB}, {LM}")
    if NS == 2:
        a("s_lshl_b32 s61, s61, 1")
        a(f"s_lshr_b32 s62, s{sHKV}, 2")
        a("s_add_u32 s61, s61, s62")
    a("s_lshl_b32 s61, s61, 12")
    a(f"s_add_u32 s61, s61, {WS_RF}")
    a(f"v_min_u32 v44, {NMLP-1}, v0")
    a("v_lshlrev_b32 v44, 7, v44")
    if P1R:
        a(f"s_cmp_lg_u32 s{sW}, 0")
        a("s_cbranch_scc1 L_RF_OK")
    a.label("L_RF")
    a(f"buffer_load_dword v45, v44, {R('ws')}, s61 offen sc1")
    budget()
    a("s_waitcnt vmcnt(0)")
    a(f"v_cmp_eq_u32 vcc, s{sTAG}, v45")
    a("s_cmp_eq_u64 vcc, -1")
    a("s_cbranch_scc1 L_RF_OK")
    if SL_RED: a(f"s_sleep {SL_RED}")
    a("s_branch L_RF")
    a.label("L_RF_OK")
    if P1R: a("s_barrier")
    if SL_E3: a(f"s_sleep {SL_E3}")
    stamp(11)
a.label("L_RG")
for i in range(5): ld(i)
budget()
a("s_waitcnt vmcnt(0)")
tags_ok([t for i in range(5) for t in tg(i)], 44, 45)
if SL_RR:
    a("s_cbranch_scc1 L_RG_OK")
    a(f"s_sleep {SL_RR}")
    a("s_branch L_RG")
    a.label("L_RG_OK")
else:
    a("s_cbranch_scc0 L_RG")
for i in range(5): cons(i)
stamp(9)
a(f"v_add_f32_dpp v18, v18, v18 row_ror:8 {DPPM}")
a(f"v_add_f32_dpp v19, v19, v19 row_ror:8 {DPPM}")
for sw in ("16", "32"):
    a("v_mov_b32 v24, v18")
    a("v_mov_b32 v25, v19")
    a(f"v_permlane{sw}_swap_b32 v18, v24")
    a(f"v_permlane{sw}_swap_b32 v19, v25")
    a("v_add_f32 v18, v18, v24")
    a("v_add_f32 v19, v19, v25")
rnd2(18, 19, 24)
a("v_add_f32 v18, v18, v22")
a("v_add_f32 v19, v19, v23")
rnd2(18, 19, 24)
a("v_add_f32 v18, v18, v42")
a("v_add_f32 v19, v19, v43")
a("v_cvt_pk_bf16_f32 v18, v18, v19")
a("s_mov_b64 exec, 0xff")
a(f"buffer_store_dword v18, v14, {R('out')}, s59 offen")
a("s_mov_b64 exec, -1")
stamp(10)
a("s_cmp_lg_u32 s2, 0")
a("s_cbranch_scc1 L_FIN")
a(f"s_cmp_lg_u32 s{sW}, 0")
a("s_cbranch_scc1 L_FIN")
a(f"v_mov_b32 v34, s{sTAG}")
a("s_mov_b64 exec, 1")
a(f"buffer_store_dword v34, v{vZ}, {R('ws')}, 0 offen sc1")
a("s_mov_b64 exec, -1")
a("s_branch L_FIN")

def mlp_decode():
    a(f"s_lshl_b32 s62, s{sB}, 1")
    a(f"s_add_u32 s62, s62, s{sS}")
    a("s_sub_u32 s62, s62, 2")
    a("s_lshr_b32 s63, s62, 2")
    a("s_lshl_b32 s63, s63, 3")
    a(f"s_add_u32 s63, s63, s{sHKV}")
    a("s_and_b32 s62, s62, 3")

def w2_common():
    RB = 1024 // NS
    a(f"s_mul_i32 s60, s{sW}, {2*NTW}")
    for nt_ in range(NTW):
        tr_swz_addr(20+nt_, RB, 60, nt_, 16, 17)
    a(f"v_and_b32 v16, {MM-1}, v0")
    a(f"v_lshlrev_b32 v{vSTO}, 17, v16")
    a(f"v_bfe_u32 v17, v0, {LM+1}, {3-LM}")
    a(f"v_lshl_add_u32 v{vSTO}, v17, 12, v{vSTO}")
    a(f"v_lshl_add_u32 v{vSTO}, v{vG}, 5, v{vSTO}")
    a(f"v_bfe_u32 v17, v0, {LM}, 1")
    a(f"v_lshl_add_u32 v{vSTO}, v17, 4, v{vSTO}")
    a(f"v_mul_u32_u24 v{vH1R}, {H1_STR}, v16")
    a(f"v_lshl_add_u32 v{vH1R}, v{vG}, 4, v{vH1R}")
    a(f"v_add_u32 v{vH1R}, {L_H1}, v{vH1R}")
    a(f"s_lshr_b32 s64, s62, {LM-1}")
    a(f"s_lshl_b32 s64, s64, {17+LM}")
    a(f"s_and_b32 s65, s62, {NS-1}")
    a(f"s_mul_i32 s65, s65, {(32//NS)*4096}")
    a("s_add_u32 s64, s64, s65")
    a(f"s_mul_i32 s65, s{sW}, {NTW*4096}")
    a("s_add_u32 s64, s64, s65")
    a("s_lshl_b32 s65, s63, 7")
    a("s_add_u32 s64, s64, s65")
    a(f"s_add_u32 s64, s64, {WS_OUTP}")
    a("s_lshl_b32 s65, s62, 5")
    a("s_add_u32 s65, s65, s63")
    a("s_lshl_b32 s65, s65, 7")
    a(f"s_add_u32 s65, s65, {WS_RF}")
    a("s_mov_b32 s94, 0xcccccccc"); a("s_mov_b32 s95, 0xcccccccc")
    a("s_mov_b32 s96, 0xf0f0f0f0"); a("s_mov_b32 s97, 0xf0f0f0f0")
    a("s_mov_b32 s98, 0xff00ff00"); a("s_mov_b32 s99, 0xff00ff00")
    a(f"v_mov_b32 v161, s{sTAG}")
    a(f"v_mov_b32 v163, s{sTAG}")
    if AO:
        srd("b2"); srd("out")
        CW = 64 // NS; RS = CW*4 + 16; SH = 6 - LM
        a(f"s_mul_i32 s60, s{sW}, {MM*RS}")
        a(f"s_add_u32 s60, s60, {L_RL}")
        a(f"v_and_b32 v16, {MM-1}, v0")
        a(f"v_mul_u32_u24 v52, {RS}, v16")
        a(f"v_bfe_u32 v17, v0, {LM}, {3-LM}")
        a("v_lshl_add_u32 v52, v17, 6, v52")
        a(f"v_lshl_add_u32 v52, v{vG}, 4, v52")
        a("v_add_u32 v52, s60, v52")
        a(f"v_lshrrev_b32 v16, {SH}, v0")
        a(f"v_bfe_u32 v17, v0, 2, {SH-2}")
        a("v_and_b32 v18, 3, v0")
        a("v_lshl_add_u32 v17, v17, 3, v18")
        a(f"v_mul_u32_u24 v19, {RS}, v16")
        a("v_lshl_add_u32 v19, v17, 2, v19")
        a("v_add_u32 v19, s60, v19")
        a(f"v_mov_b32 v56, {C_ONE}")
        a(f"v_mov_b32 v57, {C_ZERO}")
        a("v_cmp_eq_u32 s[68:69], 3, v18")
        a("v_cmp_eq_u32 s[70:71], 2, v18")
        for j in range(3):
            a(f"v_add_u32 v{53+j}, {j*12}, v19")
            a(f"v_cndmask_b32 v{53+j}, v{53+j}, v56, s[68:69]")
        a("v_cndmask_b32 v55, v55, v57, s[70:71]")
        a("s_not_b64 s[68:69], s[68:69]")
        a("s_andn2_b64 s[70:71], s[68:69], s[70:71]")
        a(f"s_and_b32 s60, s62, {NS-1}")
        a(f"s_mul_i32 s60, s60, {1024//NS}")
        a(f"s_mul_i32 s72, s{sW}, {CW*2}")
        a("s_add_u32 s60, s60, s72")
        a("v_mul_u32_u24 v56, 3072, v16")
        a(f"v_and_b32 v57, {(1<<SH)-1}, v0")
        a("v_lshl_add_u32 v56, v57, 2, v56")
        a(f"s_lshr_b32 s72, s62, {LM-1}")
        a(f"s_mul_i32 s64, s72, {MM*3072}")
        a("s_add_u32 s64, s64, s60")
        a(f"s_add_u32 s64, s64, {WS_OACC}")
        a("v_lshl_add_u32 v57, v17, 1, s60")
        a("v_lshl_add_u32 v58, v16, 10, v57")
        a(f"v_mul_u32_u24 v59, {Y_STR}, v16")
        a(f"v_add3_u32 v59, v59, v57, v{vSC}")
        a(f"s_lshl_b32 s72, s72, {10+LM}")
        for j in range(3):
            a(f"buffer_load_ushort v{60+j}, v57, {R('b2')}, 0 offen offset:{j*6}")
    lds_wait4(F_W2, 16, sleep=1)
    for nt_ in range(NTW):
        for kk in range(2):
            for hh in range(2):
                r = vA2 + (nt_*2+kk)*4 + hh*2
                a(f"ds_read_b64_tr_b16 v[{r}:{r+1}], v{20+nt_} offset:{kk*32*RB + hh*4*RB}")
        if nt_ % 2 == 1: a("s_waitcnt lgkmcnt(0)")
    stamp(10)

def flags_poll():
    a("v_lshlrev_b32 v48, 7, v0")
    a(f"s_mov_b32 s58, {WS_FL}")
    a(f"s_mov_b32 s59, {WS_FL+8192}")
    Lf = a.newlabel("FL")
    a.label(Lf)
    a(f"buffer_load_dword v49, v48, {R('ws')}, s58 offen sc1")
    a(f"buffer_load_dword v50, v48, {R('ws')}, s59 offen sc1")
    budget()
    a("s_waitcnt vmcnt(0)")
    a(f"v_cmp_eq_u32 vcc, s{sTAG}, v49")
    a(f"v_cmp_eq_u32 s[56:57], s{sTAG}, v50")
    a("s_and_b64 vcc, vcc, s[56:57]")
    a("s_cmp_eq_u64 vcc, -1")
    a(f"s_cbranch_scc1 {Lf}_ok")
    a(f"s_sleep {SL_POLL}")
    a(f"s_branch {Lf}")
    a.label(f"{Lf}_ok")
    if SL_GO: a(f"s_sleep {SL_GO}")

def h_gather():
    Lh = a.newlabel("MH")
    a.label(Lh)
    for j in range(3):
        a(f"buffer_load_dwordx4 v[{24+j*4}:{27+j*4}], v{vL16}, {R('ws')}, s60 offen offset:{j*1024} sc1")
    budget()
    a("s_waitcnt vmcnt(2)")
    a("v_cmp_eq_f32 s[56:57], s61, v27")
    a("s_waitcnt vmcnt(1)")
    a("v_cmp_eq_f32 vcc, s61, v31")
    a("s_and_b64 s[56:57], s[56:57], vcc")
    a("s_waitcnt vmcnt(0)")
    a("v_cmp_eq_f32 vcc, s61, v35")
    a("s_and_b64 s[56:57], s[56:57], vcc")
    a("s_cmp_eq_u64 s[56:57], -1")
    a(f"s_cbranch_scc1 {Lh}_ok")
    a(f"s_sleep {SL_HR}")
    a(f"s_branch {Lh}")
    a.label(f"{Lh}_ok")
    stamp(5)
    src = [24, 25, 26, 28, 29, 30, 32, 33]
    for i in range(0, 8, 2):
        a(f"v_cvt_pk_bf16_f32 v{36+i//2}, v{src[i]}, v{src[i+1]}")
    for i in range(4):
        unpack(36+i, 24+2*i, 25+2*i)
    for i in range(0, 8, 2):
        a(f"v_pk_add_f32 v[{24+i}:{25+i}], v[{24+i}:{25+i}], v[{16+i}:{17+i}]")
    for i in range(0, 8, 2):
        a(f"v_cvt_pk_bf16_f32 v{44+i//2}, v{24+i}, v{25+i}")

a.label("L_K_NOTWO")
a(f"s_waitcnt vmcnt({1+FE1})")
set_flag(F_VK)
mlp_decode()
a(f"s_cmp_lt_u32 s63, {NMLP}")
a("s_cbranch_scc1 L_K_MLP")
if AO: a("s_branch L_FIN")
a(f"s_cmp_lg_u32 s2, {HPUB_ID}")
a("s_cbranch_scc1 L_FIN")
a("s_branch L_HPUB")
a.label("L_K_MLP")
srd("w1"); srd("b1")
src128(20, 3584, 16)
a("s_lshl_b32 s58, s63, 7")
a(f"s_lshl_b32 s60, s{sW}, 5")
a("s_add_u32 s60, s60, s58")
a(f"v_lshlrev_b32 v16, 3, v{vG}")
a(f"buffer_load_dwordx2 v[14:15], v16, {R('b1')}, s60 offen")
a(f"s_mul_i32 s59, s{sW}, {32*3584}")
a("s_add_u32 s58, s59, s58")
a(f"s_lshl_b32 s61, s{sW}, 12")
a(f"s_add_u32 s61, s61, {L_K}")
W1PRIO = int(opts.get("w1prio", 0))
for q in range(4):
    if (W1AFTER == 1 and q == 0) or (W1AFTER >= 2 and q == W1AFTER - 1):
        lds_wait4(F_V, 16, minval=9, sleep=2)
        if W1PRIO: a(f"s_setprio {W1PRIO}")
    a(f"s_add_u32 s60, s62, {q}")
    a("s_and_b32 s60, s60, 3")
    a(f"s_mul_i32 s59, s60, {128*3584}")
    a("s_add_u32 s59, s59, s58")
    a("s_lshl_b32 s60, s60, 14")
    a("s_add_u32 m0, s60, s61")
    dma(4, lambda i: 20 + (i & 1), "w1", 59, 8*3584, pol=MLPP)
stamp(4)
a(f"v_and_b32 v16, {MM-1}, v0")
a(f"v_mul_u32_u24 v{vYR}, {Y_STR}, v16")
a(f"v_lshl_add_u32 v{vYR}, v{vG}, 4, v{vYR}")
a(f"v_add_u32 v{vYR}, {L_Y}, v{vYR}")
a(f"v_mul_u32_u24 v{vH1W}, {H1_STR}, v16")
a(f"v_lshl_add_u32 v{vH1W}, v{vG}, 3, v{vH1W}")
a(f"s_lshl_b32 s60, s{sW}, 5")
a(f"s_add_u32 s60, s60, {L_H1}")
a(f"v_add_u32 v{vH1W}, s60, v{vH1W}")
a(f"v_lshlrev_b32 v{vABR}, 4, v16")
a(f"v_add_u32 v{vABR}, {L_AB}, v{vABR}")
k0 = 0.7978845608028654; k1 = 0.044715; l2e = 1.4426950408889634
a(f"s_mov_b32 s67, {f2u(-2*k0*k1*l2e):#x}")
a(f"v_mov_b32 v{vGC}, {f2u(-2*k0*l2e):#x}")
a(f"s_lshl_b32 s60, s{sW}, 1")
tr_swz_addr(13, 128, 60, 0, 16, 17, base_imm=L_K)
w2_common()
a("v_mov_b32 v16, 2")
for i in range(4): a(f"v_mov_b32 v{24+i}, 0x3f803f80")
a("s_waitcnt vmcnt(0)")
if int(opts.get("dbgw", 0)): stamp(2)
set_flag(F_W, 16)
unpack(14, vB1, vB1+1); unpack(15, vB1+2, vB1+3)
lds_wait4(F_W, 16, minval=2)
def w1rd(kk):
    for hh in range(2):
        a(f"ds_read_b64_tr_b16 v[{vA1+kk*4+hh*2}:{vA1+kk*4+hh*2+1}], v13 offset:{kk*4096+hh*512}")
for kk in range(7): w1rd(kk)
for kk in range(16):
    a(f"s_waitcnt lgkmcnt({12 if kk < 10 else (15-kk)*2})")
    c = "0" if kk == 0 else f"v[{vCS}:{vCS+3}]"
    a(f"v_mfma_f32_16x16x32_bf16 v[{vCS}:{vCS+3}], v[{vA1+kk*4}:{vA1+kk*4+3}], v[24:27], {c}")
    if kk + 7 < 16: w1rd(kk+7)
if GD:
    m0_, m1_ = (("s[94:95]", "s[96:97]") if MM == 2 else ("s[96:97]", "s[98:99]"))
    for base in (vB1, vCS):
        a(f"v_cndmask_b32 v29, v{base}, v{base+1}, {m0_}")
        a(f"v_cndmask_b32 v30, v{base+2}, v{base+3}, {m0_}")
        a(f"v_cndmask_b32 v{base}, v29, v30, {m1_}")
    a(f"v_bfe_u32 v29, v0, {LM}, 2")
    a(f"v_lshl_add_u32 v{vH1W}, v29, 1, v{vH1W}")
stamp(11)
a("s_setprio 2")
if BAR:
    a("s_barrier")
else:
    Ly = a.newlabel("WY")
    a.label(Ly)
    a(f"ds_read_b64 v[16:17], v{vSC} offset:{F_Y-SC}")
    budget()
    a("s_waitcnt lgkmcnt(0)")
    a("v_and_b32 v16, v16, v17")
    a("v_readfirstlane_b32 s54, v16")
    a("s_cmp_eq_u32 s54, 0")
    a(f"s_cbranch_scc1 {Ly}")
stamp(5)
if E3F == 1 and not AO:
    a(f"s_cmp_lg_u32 s{sW}, 0")
    a("s_cbranch_scc1 L_E3F")
    a("s_mov_b64 exec, 1")
    a(f"buffer_store_dword v161, v{vZ}, {R('ws')}, s65 offen sc1")
    a("s_mov_b64 exec, -1")
    a.label("L_E3F")
vB = 164
Bq = [200+4*i for i in range(8)] + [164+4*i for i in range(7)] + [24]
for k2 in range(15):
    a(f"ds_read_b128 v[{Bq[k2]}:{Bq[k2]+3}], v{vYR} offset:{k2*64}")
for k2 in range(16):
    if k2 == 1:
        a(f"ds_read_b128 v[{Bq[15]}:{Bq[15]+3}], v{vYR} offset:{15*64}")
    a(f"s_waitcnt lgkmcnt({14 if k2 == 0 else 15-k2})")
    c = "0" if k2 == 0 else "v[16:19]"
    a(f"v_mfma_f32_16x16x32_bf16 v[16:19], v[{vA1+k2*4}:{vA1+k2*4+3}], v[{Bq[k2]}:{Bq[k2]+3}], {c}")
stamp(6)
if E3F == 2 and not AO:
    a(f"s_cmp_lg_u32 s{sW}, 0")
    a("s_cbranch_scc1 L_E3F")
    a("s_mov_b64 exec, 1")
    a(f"buffer_store_dword v161, v{vZ}, {R('ws')}, s65 offen sc1")
    a("s_mov_b64 exec, -1")
    a.label("L_E3F")
def sel4(dst, src):
    m0_, m1_ = (("s[94:95]", "s[96:97]") if MM == 2 else ("s[96:97]", "s[98:99]"))
    a(f"v_cndmask_b32 v29, v{src}, v{src+1}, {m0_}")
    a(f"v_cndmask_b32 v30, v{src+2}, v{src+3}, {m0_}")
    a(f"v_cndmask_b32 v{dst}, v29, v30, {m1_}")
a(f"ds_read_b96 v[20:22], v{vABR}")
if GD: sel4(28, 16)
a("s_waitcnt lgkmcnt(0)")
a("v_cmp_eq_u32 vcc, 1, v22")
a("s_cmp_eq_u64 vcc, -1")
a("s_cbranch_scc1 L_AB_OK")
Lab = a.newlabel("AB")
a.label(Lab)
a(f"ds_read_b96 v[20:22], v{vABR}")
budget()
a("s_waitcnt lgkmcnt(0)")
a("v_cmp_eq_u32 vcc, 1, v22")
a("s_cmp_eq_u64 vcc, -1")
a(f"s_cbranch_scc0 {Lab}")
a.label("L_AB_OK")
if GD:
    a("v_mul_f32 v16, v20, v28")
    a(f"v_fmac_f32 v16, v21, v{vCS}")
    rnd1(16, 20)
    a(f"v_add_f32 v16, v16, v{vB1}")
    rnd1(16, 20)
    a("v_mul_f32 v20, v16, v16")
    a(f"v_fma_f32 v20, v20, s67, v{vGC}")
    a("v_mul_f32 v20, v20, v16")
    a("v_exp_f32 v20, v20")
    a("v_add_f32 v20, 1.0, v20")
    a("v_rcp_f32 v20, v20")
    a("v_mul_f32 v16, v16, v20")
    a("v_cvt_pk_bf16_f32 v16, v16, v16")
    a(f"ds_write_b16 v{vH1W}, v16")
else:
    for i in range(4):
        a(f"v_mul_f32 v{16+i}, v20, v{16+i}")
    for i in range(4):
        a(f"v_fmac_f32 v{16+i}, v21, v{vCS+i}")
    rnd2(16, 17, 20); rnd2(18, 19, 21)
    for i in range(4):
        a(f"v_add_f32 v{16+i}, v{16+i}, v{vB1+i}")
    rnd2(16, 17, 20); rnd2(18, 19, 21)
    for i in range(4):
        a(f"v_mul_f32 v{20+i}, v{16+i}, v{16+i}")
    for i in range(4):
        a(f"v_fma_f32 v{20+i}, v{20+i}, s67, v{vGC}")
    for i in range(4):
        a(f"v_mul_f32 v{20+i}, v{20+i}, v{16+i}")
    for i in range(4):
        a(f"v_exp_f32 v{20+i}, v{20+i}")
    for i in range(4):
        a(f"v_add_f32 v{20+i}, 1.0, v{20+i}")
    for i in range(4):
        a(f"v_rcp_f32 v{20+i}, v{20+i}")
    for i in range(4):
        a(f"v_mul_f32 v{16+i}, v{16+i}, v{20+i}")
    a("v_cvt_pk_bf16_f32 v16, v16, v17")
    a("v_cvt_pk_bf16_f32 v17, v18, v19")
    a(f"ds_write_b64 v{vH1W}, v[16:17]")
if BAR: a("s_waitcnt lgkmcnt(0)")
else: set_flag(F_D)
if E3F == 3 and not AO:
    a(f"s_cmp_lg_u32 s{sW}, 0")
    a("s_cbranch_scc1 L_E3F")
    a("s_mov_b64 exec, 1")
    a(f"buffer_store_dword v161, v{vZ}, {R('ws')}, s65 offen sc1")
    a("s_mov_b64 exec, -1")
    a.label("L_E3F")
stamp(9)
a("s_branch L_MLP_W2")
a.label("L_MLP_W2B")
if BAR: a("s_barrier")
a.label("L_MLP_W2")
if BAR: a("s_barrier")
else: lds_wait4(F_D, 20)
a(f"ds_read_b128 v[16:19], v{vH1R}")
a(f"ds_read_b128 v[20:23], v{vH1R} offset:64")
vO = 24
for kk in range(2):
    a(f"s_waitcnt lgkmcnt({1-kk})")
    for nt_ in range(NTW):
        r = vA2 + (nt_*2+kk)*4
        c = "0" if kk == 0 else f"v[{vO+nt_*4}:{vO+nt_*4+3}]"
        a(f"v_mfma_f32_16x16x32_bf16 v[{vO+nt_*4}:{vO+nt_*4+3}], v[{r}:{r+3}], v[{16+kk*4}:{19+kk*4}], {c}")
if AO:
    if MM == 2:
        for i in range(4):
            a(f"v_cndmask_b32 v{40+i}, v{vO+i}, v{vO+4+i}, s[94:95]")
            a(f"v_cndmask_b32 v{44+i}, v{vO+8+i}, v{vO+12+i}, s[94:95]")
        for i in range(4):
            a(f"v_cndmask_b32 v{40+i}, v{40+i}, v{44+i}, s[96:97]")
    else:
        for i in range(4):
            a(f"v_cndmask_b32 v{40+i}, v{vO+i}, v{vO+4+i}, s[96:97]")
    a("ds_write_b128 v52, v[40:43]")
    for j in range(3):
        a(f"ds_read_b32 v{44+j}, v{53+j}")
    for j in range(3):
        a(f"s_waitcnt lgkmcnt({2-j})")
        a(f"v_mov_b32 v{48+j}, v{44+j}")
        a(f"buffer_atomic_add_f32 v{48+j}, v56, {R('ws')}, s64 offen offset:{j*1024} sc0")
    stamp(7)
    for j in range(3):
        a(f"ds_read_u16 v{40+j}, v59 offset:{L_Y-SC + j*6}")
    a("s_waitcnt vmcnt(3)")
    for j in range(3):
        a(f"v_lshlrev_b32 v{60+j}, 16, v{60+j}")
    a(f"s_mov_b32 s60, {f2u(float(NMLP-1)):#x}")
    a("s_waitcnt lgkmcnt(0)")
    for j in range(3):
        a(f"v_lshlrev_b32 v{40+j}, 16, v{40+j}")
    for j in range(3):
        a(f"s_waitcnt vmcnt({2 if j == 0 else 2})")
        a(f"v_mov_b32_dpp v24, v{48+j} quad_perm:[3,3,3,3] {DPPM}")
        a(f"v_add_f32 v{48+j}, v{48+j}, v{44+j}")
        a("v_cmp_eq_f32 vcc, s60, v24")
        rnd1(48+j, 25)
        a(f"v_add_f32 v{48+j}, v{48+j}, v{60+j}")
        rnd1(48+j, 25)
        a(f"v_add_f32 v{48+j}, v{48+j}, v{40+j}")
        a(f"v_cvt_pk_bf16_f32 v{48+j}, v{48+j}, v{48+j}")
        a(f"s_and_b64 vcc, vcc, {'s[68:69]' if j < 2 else 's[70:71]'}")
        a(f"v_cndmask_b32 v{26+j}, v{vBIG}, v58, vcc")
        a(f"buffer_store_short v{48+j}, v{26+j}, {R('out')}, s72 offen offset:{j*6}")
    stamp(1)
    a(f"s_cmp_lg_u32 s2, 16")
    a("s_cbranch_scc1 L_FIN")
    a(f"s_cmp_lg_u32 s{sW}, 0")
    a("s_cbranch_scc1 L_FIN")
    a("s_mov_b64 exec, 1")
    a(f"buffer_store_dword v161, v{vZ}, {R('ws')}, 0 offen sc1")
    a("s_mov_b64 exec, -1")
    a("s_branch L_FIN")
else:
    if MM == 2:
        for nt_ in range(4):
            a(f"v_cndmask_b32 v{40+nt_*2}, v{vO+nt_*4}, v{vO+nt_*4+2}, s[94:95]")
            a(f"v_cndmask_b32 v{41+nt_*2}, v{vO+nt_*4+1}, v{vO+nt_*4+3}, s[94:95]")
        for q in range(2):
            a(f"v_cndmask_b32 v{40+q*4}, v{40+q*4}, v{42+q*4}, s[96:97]")
            a(f"v_cndmask_b32 v{41+q*4}, v{41+q*4}, v{43+q*4}, s[96:97]")
        a("v_cndmask_b32 v160, v40, v44, s[98:99]")
        a("v_cndmask_b32 v162, v41, v45, s[98:99]")
    else:
        for nt_ in range(2):
            a(f"v_cndmask_b32 v{40+nt_*2}, v{vO+nt_*4}, v{vO+nt_*4+2}, s[96:97]")
            a(f"v_cndmask_b32 v{41+nt_*2}, v{vO+nt_*4+1}, v{vO+nt_*4+3}, s[96:97]")
        a("v_cndmask_b32 v160, v40, v42, s[98:99]")
        a("v_cndmask_b32 v162, v41, v43, s[98:99]")
    a(f"buffer_store_dwordx4 v[160:163], v{vSTO}, {R('ws')}, s64 offen sc1")
stamp(7)
a("s_branch L_FIN")

a.label("L_V_NOTWO")
set_flag(F_V, 14)
mlp_decode()
a(f"s_cmp_lt_u32 s63, {NMLP}")
a("s_cbranch_scc1 L_V_MLP")
if AO: a("s_branch L_FIN")
a(f"s_cmp_lg_u32 s2, {HPUB_ID}")
a("s_cbranch_scc1 L_FIN")
a("s_branch L_HPUB")
a.label("L_V_MLP")
srd("w2")
a(f"s_lshr_b32 s60, s62, {LM-1}")
a(f"s_lshl_b32 s60, s60, {LM}")
a(f"s_add_u32 s66, s60, s{sAW}")
a("s_and_b32 s66, s66, 7")
a("s_lshl_b32 s60, s66, 10")
a(f"buffer_load_dwordx4 v[{vX}:{vX+3}], v{vL16}, {R('x')}, s60 offen")
if MM == 2:
    a("s_lshl_b32 s58, s63, 16")
    a(f"s_lshl_b32 s61, s{sAW}, 12")
    a("s_add_u32 s58, s58, s61")
    a(f"s_lshr_b32 s60, s{sAW}, 1")
    a("s_lshl_b32 s60, s60, 3")
    for i in range(4):
        a(f"v_xor_b32 v{20+i}, {i*2}, v0")
        a(f"v_xor_b32 v{20+i}, s60, v{20+i}")
        a(f"v_lshlrev_b32 v{20+i}, 4, v{20+i}")
    lds_wait4(F_V, 16, minval=9)
    for q in range(4):
        a(f"s_add_u32 s60, s62, {q}")
        a("s_and_b32 s60, s60, 3")
        a("s_lshl_b32 s60, s60, 14")
        a("s_add_u32 s59, s60, s58")
        a("s_add_u32 m0, s60, s61")
        dma(4, lambda i: 20 + i, "w2", 59, 1024, pol=MLPP)
else:
    a("s_lshl_b32 s58, s63, 16")
    a(f"s_lshl_b32 s61, s{sAW}, 14")
    a("s_add_u32 s58, s58, s61")
    a("s_and_b32 s60, s62, 1")
    a("s_lshl_b32 s60, s60, 9")
    a("s_add_u32 s58, s58, s60")
    a(f"s_lshl_b32 s61, s{sAW}, 13")
    a("v_lshrrev_b32 v16, 5, v0")
    a("v_and_b32 v17, 31, v0")
    for i in range(2):
        a(f"v_lshlrev_b32 v{22+i}, 1, v16")
        a(f"v_xor_b32 v{22+i}, {i*4}, v{22+i}")
        a(f"v_xor_b32 v{22+i}, v17, v{22+i}")
        a(f"v_lshlrev_b32 v{22+i}, 4, v{22+i}")
        a(f"v_lshl_add_u32 v{22+i}, v16, 10, v{22+i}")
    lds_wait4(F_V, 16, minval=9)
    for q in range(2):
        a("s_lshr_b32 s60, s62, 1")
        a(f"s_add_u32 s60, s60, {q}")
        a("s_and_b32 s60, s60, 1")
        a("s_lshl_b32 s59, s60, 7")
        a("v_xor_b32 v20, s59, v22")
        a("v_xor_b32 v21, s59, v23")
        a("s_lshl_b32 s59, s60, 13")
        a("s_add_u32 s59, s59, s58")
        a("s_lshl_b32 s60, s60, 12")
        a("s_add_u32 m0, s60, s61")
        dma(4, lambda i: 20 + (i & 1), "w2", 59, 2048, pol=MLPP)
a("s_waitcnt vmcnt(0)")
set_flag(F_W2)
w2_common()
if MM == 2:
    a(f"s_cmp_ge_u32 s{sAW}, 2")
    a("s_cbranch_scc1 L_MLP_W2B")
a("s_setprio 3")
a("s_mul_i32 s60, s66, 3072")
a(f"s_add_u32 s60, s60, {WS_HACC}")
a("s_mov_b32 s61, 0x42000000")
for i in range(4):
    unpack(vX+i, 16+2*i, 17+2*i)
a(f"s_mul_i32 s58, s{sAW}, {Y_STR}")
a(f"s_add_u32 s58, s58, {L_Y}")
a(f"v_add_u32 v13, s58, v{vL16}")
a(f"s_lshl_b32 s58, s{sAW}, 4")
a(f"v_add_u32 v14, s58, v{vSC}")
if P1M:
    a(f"s_cmp_lg_u32 s{sAW}, 0")
    a("s_cbranch_scc1 L_V_GOW")
    flags_poll()
    a(f"ds_write_b32 v{vSC}, v{vONE} offset:{F_GO-SC}")
    a("s_branch L_V_GO")
    a.label("L_V_GOW")
    lds_wait1(F_GO, 48)
    a.label("L_V_GO")
else:
    flags_poll()
stamp(11)
h_gather()
a("ds_write_b128 v13, v[44:47]")
if BAR:
    a("s_waitcnt lgkmcnt(0)")
    a("s_barrier")
else:
    set_flag(F_Y)
for i in range(4):
    unpack(44+i, 24+2*i, 25+2*i)
row_stats(24, 32)
a("v_mov_b32 v34, v32")
a("v_mov_b32 v35, v33")
rnd2(34, 35, 36)
sd_of(35, 36)
rcp_nr(36, 35, 37)
a("v_sub_f32 v32, v32, v34")
a("v_mul_f32 v32, v32, v36")
a("v_mul_f32 v33, v33, v36")
a("v_mul_f32 v33, v33, v36")
rnd2(32, 33, 37)
sd_of(33, 37)
rcp_nr(37, 33, 38)
a("v_mul_f32 v40, v36, v37")
a("v_fma_f32 v41, v32, v35, v34")
a("v_mul_f32 v41, -v41, v40")
a("v_mov_b32 v42, 1")
a(f"ds_write_b96 v14, v[40:42] offset:{L_AB-SC}")
stamp(6)
a("s_branch L_MLP_W2")

a.label("L_HPUB")
a(f"s_mul_i32 s60, s{sW}, 3072")
a(f"s_add_u32 s60, s60, {WS_HACC}")
a("s_mov_b32 s61, 0x42000000")
for i in range(4):
    unpack(vX+i, 16+2*i, 17+2*i)
a("v_lshrrev_b32 v13, 1, v0")
a("v_lshlrev_b32 v13, 12, v13")
a("v_and_b32 v14, 1, v0")
a("v_lshl_add_u32 v13, v14, 5, v13")
a(f"s_lshl_b32 s62, s{sW}, 17")
a(f"s_add_u32 s62, s62, {WS_OUTP + NMLP*128}")
a(f"s_cmp_lg_u32 s{sW}, 0")
a("s_cbranch_scc1 L_HP_B")
flags_poll()
a.label("L_HP_B")
a("s_barrier")
h_gather()
for i in range(4):
    a(f"v_mov_b32 v{24+2*i}, v{44+i}")
    a(f"v_mov_b32 v{25+2*i}, s{sTAG}")
a(f"buffer_store_dwordx4 v[24:27], v13, {R('ws')}, s62 offen sc1")
a(f"buffer_store_dwordx4 v[28:31], v13, {R('ws')}, s62 offen offset:16 sc1")

a.label("L_FIN")
if STAMPS:
    stamp(8)
    if CAL:
        cw, cs = map(int, CAL.split(":"))
        a(f"s_cmp_lg_u32 s2, {CALWG}")
        a("s_cbranch_scc1 L_END")
        a(f"s_cmp_lg_u32 s{sW}, {cw}")
        a("s_cbranch_scc1 L_END")
        a(f"v_readfirstlane_b32 s60, v{240+cs}")
        a("v_readfirstlane_b32 s61, v240")
        a("s_sub_u32 s60, s60, s61")
        a("s_lshl_b32 s60, s60, 1")
        a("s_add_u32 s60, s60, 4000")
        a.label("L_CAL")
        a("s_memrealtime s[90:91]")
        a("s_waitcnt lgkmcnt(0)")
        a("s_sub_u32 s62, s90, s61")
        a("s_cmp_lt_u32 s62, s60")
        a("s_cbranch_scc1 L_CAL")
        a("s_branch L_END")
    a("s_lshl_b32 s60, s2, 3")
    a(f"s_add_u32 s60, s60, s{sW}")
    a("s_mul_i32 s60, s60, 48")
    a(f"s_add_u32 s60, s60, {WS_STAMP}")
    a("s_mov_b64 exec, 1")
    for i in range(3):
        a(f"buffer_store_dwordx4 v[{240+4*i}:{243+4*i}], v{vZ}, {R('ws')}, s60 offen offset:{16*i}")
    if DBGST:
        a("v_not_b32 v252, v240")
        for i in range(13):
            a(f"global_atomic_umax v{vZ}, v{240+i}, s[86:87] offset:{4*i}")
a.label("L_END")
a("s_endpgm")

hdr = open("sequential_preLN__sliding_block_cached__mixer_channel_mlp__decode.s.ref").read().split("; Override launch")[0]
txt = a.text().replace("CODE_KB", "(L_END-L_VW)/1024")
open(out, "w").write(wrap(txt, 256, 512, LDS_BYTES, vgpr=256, header_comment=hdr))
```

```python
import sys, struct
from asmgen import *

out = sys.argv[1]
opts = dict(kv.split("=") for kv in sys.argv[2:])
STAMPS = int(opts.get("stamps", 0))
DBGST = int(opts.get("dbgst", 0))
if DBGST: STAMPS = 1
CAL = opts.get("cal")
CALWG = int(opts.get("calwg", 0))
if CAL: STAMPS = 1
NT = "nt" if int(opts.get("nt", 1)) else ""
SL_GO = int(opts.get("sl_go", 0))
SL_POLL = int(opts.get("sl_poll", 2))
SL_RED = int(opts.get("sl_red", 4))
SL_Q = int(opts.get("sl_q", 10))
FLEARLY = int(opts.get("flearly", 1))
WOFILL = int(opts.get("wofill", 0))
SL_E1 = int(opts.get("sl_e1", 0))
QACK = int(opts.get("qack", 1))
THR = int(opts.get("thr", 4))
FQ = int(opts.get("fq", 0))
FE1 = int(opts.get("fe1", 1))
SL_F1 = int(opts.get("sl_f1", 1))
PREW = int(opts.get("prew", 0))
F1WAIT = int(opts.get("f1wait", 8))
BAR = 1
P1M = int(opts.get("p1m", 1))
GD = int(opts.get("gd", 1))
GIE = int(opts.get("gie", 0))
AO = int(opts.get("ao", 1))
SL_HR = int(opts.get("sl_hr", 4))
SL_QR = int(opts.get("sl_qr", 0))
SL_RR = int(opts.get("sl_rr", 0))
P1R = int(opts.get("p1r", 1))
MM = int(opts.get("mm", 2))
NS = MM // 2
LM = {2: 1, 4: 2}[MM]
NTW = 4 // NS
FLD = opts.get("fld", "sc1").replace("+", " ")
if FLD == "none": FLD = ""
NVK = int(opts.get("nvk", 4))
E1F = int(opts.get("e1f", 2))
E3F = int(opts.get("e3f", 2))
SL_E3 = int(opts.get("sl_e3", 0))
SL_P1 = int(opts.get("sl_p1", 2))
SL_Q2 = int(opts.get("sl_q2", 14))
NK1 = int(opts.get("nk1", 6))
QFL = int(opts.get("qfl", 1))
PFP = opts.get("pfp", "nt")
if PFP == "none": PFP = ""
MLPP = opts.get("mlpp", "nt")
if MLPP == "none": MLPP = ""

def f2u(x): return struct.unpack("<I", struct.pack("<f", x))[0]

WS_ZF = 1024
WS_ST = 4096
WS_HACC = 32768
WS_FL = 65536
WS_OF = 0x380000
WS_HF = 0x28000
WS_RF = 0x340000
WS_QP = 0x40000
WS_OP = 0x140000
WS_OUTP = 0x240000
WS_FAST = 0x400000
WS_OACC = 0x38000
WS_XC = 0x30000
WS_STAMP = 128 << 20
NMLP = 28
HPUB_ID = ((6*4+2)*8+4)
SL_W = int(opts.get("sl_w", 0))
SL_QW = int(opts.get("sl_qw", 8))
PF = int(opts.get("pf", 1))
PFPRIO = int(opts.get("pfprio", 0))
SL_WO = int(opts.get("sl_wo", 0))
NQ = int(opts.get("nq", 8))
NV1 = int(opts.get("nv1", 6))
CODEPF = int(opts.get("codepf", 1))
W1AFTER = int(opts.get("w1after", 1))

L_V = 0
L_K = 65536
L_WQ = 131072
L_QL = L_WQ
L_P = L_WQ + 1024; P_STR = 528
L_OL = L_WQ + 3200; OL_STR = 272
L_H1 = L_WQ + 5376; H1_STR = 144
L_RL = L_WQ + 6528; RL_STR = 144
SC = 147456
F_TAG = SC + 0
F_TRDY = SC + 4
F_GO = SC + 8
F_CF = SC + 12
F_LN1 = SC + 16
F_Q = SC + 32
F_A = SC + 48
F_B = SC + 64
F_V = SC + 80
F_W = SC + 96
F_C = SC + 112
F_D = SC + 128
F_W2 = SC + 144
F_KI = SC + 304
F_QGO = SC + 168
F_Y = SC + 512
F_WR = SC + 528
F_GI = SC + 544
F_VK = SC + 560
C_ONE = SC + 160
C_ZERO = SC + 164
L_AB = SC + 176
L_MX = SC + 320
L_SUM = SC + 384
L_CF = L_WQ + 12288
L_Y = SC + 640; Y_STR = 1040
LDS_BYTES = SC + 640 + 8*Y_STR
assert LDS_BYTES <= 163840

sW, sHKV, sB, sS, sAW = 3, 4, 5, 6, 7
SRD = dict(ws=8, k=12, v=16, x=20, wq=24, wo=28, w1=32, w2=36, b1=40, b2=44, out=48)
sTAG, sBUD = 52, 53
PTR = dict(x=64, k=66, v=68, wq=70, wo=72, bx=74, w1=76, b1=78, w2=80, b2=82, out=84, dbg=86, ws=88)
LOG2E = 0x3FB8AA3B
SCALE = 0x3DB504F3
DPPM = "row_mask:0xf bank_mask:0xf"

a = Asm()

def srd(name):
    d = SRD[name]; p = PTR[name]
    a(f"s_mov_b32 s{d}, s{p}")
    a(f"s_and_b32 s{d+1}, s{p+1}, 0xffff")
    a(f"s_mov_b32 s{d+2}, {SIZES[name]}")
    a(f"s_mov_b32 s{d+3}, 0x20000")
def R(name): d = SRD[name]; return f"s[{d}:{d+3}]"

def stamp(i):
    if not STAMPS: return
    if STAMPS == 2 and i != 8: return
    a("s_memrealtime s[90:91]")
    a("s_waitcnt lgkmcnt(0)")
    a(f"v_mov_b32 v{240+i}, s90")

def budget():
    a(f"s_sub_u32 s{sBUD}, s{sBUD}, 1")
    a("s_cbranch_scc1 L_END")

def set_flag(flag, val=None):
    a(f"ds_write_b32 v{vFL}, v{vONE if val is None else val} offset:{flag-SC}")

def lds_wait4(flag, vt, sleep=0, minval=None):
    L = a.newlabel("W4")
    a.label(L)
    a(f"ds_read_b128 v[{vt}:{vt+3}], v{vSC} offset:{flag-SC}")
    budget()
    a("s_waitcnt lgkmcnt(0)")
    a(f"v_min3_u32 v{vt}, v{vt}, v{vt+1}, v{vt+2}")
    a(f"v_min_u32 v{vt}, v{vt}, v{vt+3}")
    a(f"v_readfirstlane_b32 s54, v{vt}")
    if sleep: a(f"s_sleep {sleep}")
    a(f"s_cmp_lt_u32 s54, {1 if minval is None else minval}")
    a(f"s_cbranch_scc1 {L}")

def lds_wait1(flag, vt, sleep=0):
    L = a.newlabel("W1")
    a.label(L)
    a(f"ds_read_b32 v{vt}, v{vSC} offset:{flag-SC}")
    budget()
    a("s_waitcnt lgkmcnt(0)")
    a(f"v_readfirstlane_b32 s54, v{vt}")
    if sleep: a(f"s_sleep {sleep}")
    a("s_cmp_eq_u32 s54, 0")
    a(f"s_cbranch_scc1 {L}")

def rnd1(v, t):
    a(f"v_cvt_pk_bf16_f32 v{t}, v{v}, v{v}")
    a(f"v_lshlrev_b32 v{v}, 16, v{t}")
def rnd2(v0, v1, t):
    a(f"v_cvt_pk_bf16_f32 v{t}, v{v0}, v{v1}")
    a(f"v_lshlrev_b32 v{v0}, 16, v{t}")
    a(f"v_and_b32 v{v1}, 0xffff0000, v{t}")
def unpack(src, lo, hi):
    a(f"v_lshlrev_b32 v{lo}, 16, v{src}")
    a(f"v_and_b32 v{hi}, 0xffff0000, v{src}")

def wave_sum2(va, vb, sa, sb):
    for mod in ("quad_perm:[1,0,3,2]", "quad_perm:[2,3,0,1]", "row_half_mirror", "row_mirror"):
        a(f"v_add_f32_dpp v{va}, v{va}, v{va} {mod} {DPPM}")
        a(f"v_add_f32_dpp v{vb}, v{vb}, v{vb} {mod} {DPPM}")
    a(f"v_add_f32_dpp v{va}, v{va}, v{va} row_bcast:15 row_mask:0xa bank_mask:0xf")
    a(f"v_add_f32_dpp v{vb}, v{vb}, v{vb} row_bcast:15 row_mask:0xa bank_mask:0xf")
    a(f"v_add_f32_dpp v{va}, v{va}, v{va} row_bcast:31 row_mask:0xc bank_mask:0xf")
    a(f"v_add_f32_dpp v{vb}, v{vb}, v{vb} row_bcast:31 row_mask:0xc bank_mask:0xf")
    a(f"v_readlane_b32 s{sa}, v{va}, 63")
    a(f"v_readlane_b32 s{sb}, v{vb}, 63")

def row_stats(e, t, sg=55):
    a(f"v_readfirstlane_b32 s{sg}, v{e}")
    a(f"v_mov_b32 v{t+10}, s{sg}")
    a(f"v_mov_b32 v{t+11}, s{sg}")
    for i in range(0, 8, 2):
        a(f"v_pk_add_f32 v[{t+i}:{t+i+1}], v[{e+i}:{e+i+1}], v[{t+10}:{t+11}] neg_lo:[0,1] neg_hi:[0,1]")
    a(f"v_pk_add_f32 v[{t+8}:{t+9}], v[{t}:{t+1}], v[{t+2}:{t+3}]")
    a(f"v_pk_mul_f32 v[{t+10}:{t+11}], v[{t}:{t+1}], v[{t}:{t+1}]")
    a(f"v_pk_add_f32 v[{t}:{t+1}], v[{t+4}:{t+5}], v[{t+6}:{t+7}]")
    for i in (2, 4, 6):
        a(f"v_pk_fma_f32 v[{t+10}:{t+11}], v[{t+i}:{t+i+1}], v[{t+i}:{t+i+1}], v[{t+10}:{t+11}]")
    a(f"v_pk_add_f32 v[{t+8}:{t+9}], v[{t+8}:{t+9}], v[{t}:{t+1}]")
    a(f"v_add_f32 v{t+10}, v{t+10}, v{t+11}")
    a(f"v_add_f32 v{t+8}, v{t+8}, v{t+9}")
    wave_sum2(t+8, t+10, sg+1, sg+2)
    a(f"v_mov_b32 v{t+2}, 0x3b000000")
    a(f"v_mul_f32 v{t}, s{sg+1}, v{t+2}")
    a(f"v_mul_f32 v{t+1}, s{sg+2}, v{t+2}")
    a(f"v_fma_f32 v{t+1}, -v{t}, v{t}, v{t+1}")
    a(f"v_max_f32 v{t+1}, 0, v{t+1}")
    a(f"v_add_f32 v{t}, s{sg}, v{t}")

def sd_of(v, t):
    a(f"v_add_f32 v{v}, 0x3727c5ac, v{v}")
    rnd1(v, t)
    a(f"v_sqrt_f32 v{v}, v{v}")
    rnd1(v, t)

def rcp_nr(dst, src, t):
    a(f"v_rcp_f32 v{dst}, v{src}")
    a(f"v_fma_f32 v{t}, -v{src}, v{dst}, 1.0")
    a(f"v_fma_f32 v{dst}, v{t}, v{dst}, v{dst}")

def layernorm(e, t, last_pack):
    row_stats(e, t)
    rnd2(t, t+1, t+2)
    sd_of(t+1, t+2)
    rcp_nr(t+2, t+1, t+3)
    for i in range(8):
        a(f"v_sub_f32 v{e+i}, v{e+i}, v{t}")
    for i in range(0, 8, 2):
        rnd2(e+i, e+i+1, t+4+i//2)
    for i in range(8):
        a(f"v_mul_f32 v{t+4+i}, v{e+i}, v{t+2}")
    for i in range(8):
        a(f"v_fma_f32 v{e+i}, -v{t+4+i}, v{t+1}, v{e+i}")
    for i in range(8):
        a(f"v_fma_f32 v{e+i}, v{e+i}, v{t+2}, v{t+4+i}")
    for i in range(0, 8, 2):
        a(f"v_cvt_pk_bf16_f32 v{last_pack+i//2}, v{e+i}, v{e+i+1}")

def head_reduce(v, t, op):
    a(f"v_{op}_f32_dpp v{v}, v{v}, v{v} row_ror:4 {DPPM}")
    a(f"v_{op}_f32_dpp v{v}, v{v}, v{v} row_ror:8 {DPPM}")
    a(f"v_mov_b32 v{t}, v{v}")
    a(f"v_permlane16_swap_b32 v{v}, v{t}")
    a(f"v_{op}_f32 v{v}, v{v}, v{t}")
    a(f"v_mov_b32 v{t}, v{v}")
    a(f"v_permlane32_swap_b32 v{v}, v{t}")
    a(f"v_{op}_f32 v{v}, v{v}, v{t}")

def trA_addr(v, rowbytes, t):
    a(f"v_bfe_u32 v{v}, v0, 2, 2")
    a(f"v_lshl_add_u32 v{v}, v{vG}, 3, v{v}")
    a(f"v_mul_u32_u24 v{v}, {rowbytes}, v{v}")
    a(f"v_and_b32 v{t}, 3, v0")
    a(f"v_lshl_add_u32 v{v}, v{t}, 3, v{v}")
def B_addr(v, base, stride, t):
    a(f"v_and_b32 v{t}, 7, v0")
    a(f"v_mul_u32_u24 v{v}, {stride}, v{t}")
    a(f"v_lshl_add_u32 v{v}, v{vG}, 4, v{v}")
    a(f"v_add_u32 v{v}, {base}, v{v}")

def zflag_wait(vt):
    L = a.newlabel("ZF")
    a(f"v_and_b32 v{vt}, 7, v0")
    a(f"v_lshlrev_b32 v{vt}, 7, v{vt}")
    a(f"s_mov_b32 s60, {WS_ZF}")
    a.label(L)
    a(f"buffer_load_dword v{vt+1}, v{vt}, {R('ws')}, s60 offen sc1")
    budget()
    a("s_waitcnt vmcnt(0)")
    a(f"v_cmp_eq_u32 vcc, s{sTAG}, v{vt+1}")
    a("s_cmp_eq_u64 vcc, -1")
    a(f"s_cbranch_scc0 {L}")

def masked_gather(n, load, tags, consume, sleep):
    L = a.newlabel("MG")
    a(f"s_mov_b32 s62, {(1 << n) - 1}")
    a.label(L)
    for i in range(n):
        a(f"s_bitcmp1_b32 s62, {i}")
        a(f"s_cbranch_scc0 {L}_l{i}")
        load(i)
        a.label(f"{L}_l{i}")
    budget()
    a("s_waitcnt vmcnt(0)")
    for i in range(n):
        a(f"s_bitcmp1_b32 s62, {i}")
        a(f"s_cbranch_scc0 {L}_c{i}")
        t = tags(i)
        a(f"v_cmp_eq_u32 vcc, s{sTAG}, v{t[0]}")
        if len(t) > 1:
            a(f"v_cmp_eq_u32 s[56:57], s{sTAG}, v{t[1]}")
            a("s_and_b64 vcc, vcc, s[56:57]")
        a("s_cmp_eq_u64 vcc, -1")
        a(f"s_cbranch_scc0 {L}_c{i}")
        consume(i)
        a(f"s_bitset0_b32 s62, {i}")
        a.label(f"{L}_c{i}")
    a("s_cmp_eq_u32 s62, 0")
    a(f"s_cbranch_scc1 {L}_ok")
    if sleep: a(f"s_sleep {sleep}")
    a(f"s_branch {L}")
    a.label(f"{L}_ok")

def tags_ok(regs, t0, t1):
    for k, r in enumerate(regs):
        t = t0 if k % 2 == 0 else t1
        a(f"v_bitop3_b32 v{t}, v{r}, s{sTAG}, {'0' if k < 2 else 'v%d' % t} bitop3:0xbe")
    a(f"v_or_b32 v{t0}, v{t0}, v{t1}")
    a(f"v_cmp_ne_u32 vcc, 0, v{t0}")
    a("s_cmp_eq_u64 vcc, 0")

def capture(fn):
    save = a.items; a.items = []
    fn()
    got = a.items; a.items = save
    return got

def dma(n, voff, srdname, soff, sstep, mstep=1024, pol=None):
    if pol is None: pol = NT
    for i in range(n):
        v = voff(i) if callable(voff) else voff
        a(f"buffer_load_dwordx4 v{v}, {R(srdname)}, s{soff} offen {pol} lds")
        if i < n-1:
            ms = mstep(i) if callable(mstep) else mstep
            ss = sstep(i) if callable(sstep) else sstep
            a(f"s_add_u32 m0, m0, {ms}")
            a(f"s_add_u32 s{soff}, s{soff}, {ss}")

vLANE, vZ, vG, vC, vSC, vONE = 0, 1, 2, 3, 4, 5
vFL = 7
vX = 8
vL16 = 12
vA1 = 64
vA2 = 128
vB1, vCS = 192, 196
vYR, vH1W, vH1R, vSTO, vABR, vGC = 232, 233, 234, 235, 236, 237


def tr_swz_addr(dst, rowbytes, slot_s, slot_add, t0, t1, base_s=None, base_imm=0):
    a(f"v_bfe_u32 v{t0}, v0, 2, 2")
    if rowbytes == 128:
        a(f"v_lshrrev_b32 v{t1}, 1, v{t0}")
        a(f"v_and_b32 v{dst}, 1, v{vG}")
        a(f"v_lshl_add_u32 v{t1}, v{dst}, 1, v{t1}")
    else:
        a(f"v_and_b32 v{t1}, 1, v{vG}")
        a(f"v_lshl_add_u32 v{t1}, v{t1}, 2, v{t0}")
    a(f"v_lshlrev_b32 v{t1}, 1, v{t1}")
    a(f"v_bfe_u32 v{dst}, v0, 1, 1")
    a(f"v_xor_b32 v{t1}, v{t1}, v{dst}")
    a(f"v_xor_b32 v{t1}, s{slot_s}, v{t1}")
    if slot_add: a(f"v_xor_b32 v{t1}, {slot_add*2}, v{t1}")
    a(f"v_lshl_add_u32 v{t0}, v{vG}, 3, v{t0}")
    a(f"v_mul_u32_u24 v{t0}, {rowbytes}, v{t0}")
    a(f"v_lshl_add_u32 v{t0}, v{t1}, 4, v{t0}")
    a(f"v_and_b32 v{t1}, 1, v0")
    a(f"v_lshl_add_u32 v{dst}, v{t1}, 3, v{t0}")
    if base_imm: a(f"v_add_u32 v{dst}, {base_imm}, v{dst}")

def src128(dst, stride, t):
    a(f"v_lshrrev_b32 v{dst}, 3, v0")
    a(f"v_mul_u32_u24 v{dst}, {stride}, v{dst}") if stride < (1 << 24) else None
    a(f"v_bfe_u32 v{t}, v0, 4, 1")
    a(f"v_lshlrev_b32 v{t}, 1, v{t}")
    a(f"v_and_b32 v{dst+1}, 7, v0")
    a(f"v_xor_b32 v{t}, v{t}, v{dst+1}")
    a(f"v_xor_b32 v{dst+1}, 4, v{t}")
    a(f"v_lshl_add_u32 v{dst+1}, v{dst+1}, 4, v{dst}")
    a(f"v_lshl_add_u32 v{dst}, v{t}, 4, v{dst}")
vBIG = 238
vWO = 200
if STAMPS:
    a("s_memrealtime s[92:93]")
a("s_cmp_ge_u32 s2, 256")
a("s_cbranch_scc1 L_END")
a("s_load_dwordx16 s[64:79], s[0:1], 0")
a("s_load_dwordx2 s[88:89], s[0:1], 96")
a("s_load_dwordx8 s[80:87], s[0:1], 64")
a("v_lshrrev_b32 v1, 6, v0")
a("v_and_b32 v0, 63, v0")
a(f"v_readfirstlane_b32 s{sW}, v1")
a(f"v_mov_b32 v{vZ}, 0")
a(f"v_lshrrev_b32 v{vG}, 4, v0")
a(f"v_and_b32 v{vC}, 15, v0")
a(f"v_mov_b32 v{vSC}, {SC}")
a(f"v_mov_b32 v{vONE}, 1")
a(f"s_and_b32 s{sHKV}, s2, 7")
a(f"s_lshr_b32 s{sB}, s2, 5")
a(f"s_bfe_u32 s{sS}, s2, 0x20003")
a(f"s_mov_b32 s{sBUD}, 400000")
a(f"s_and_b32 s{sAW}, s{sW}, 3")
a(f"s_lshl_b32 s60, s{sAW}, 2")
a(f"v_add_u32 v{vFL}, s60, v{vSC}")
a(f"v_lshlrev_b32 v{vL16}, 4, v0")
a(f"v_mov_b32 v{vBIG}, 0x7fff0000")
a(f"s_lshl_b32 s58, s{sB}, 3")
a(f"s_add_u32 s58, s58, s{sHKV}")
a("s_mov_b32 s63, s58")
a("s_lshl_b32 s58, s58, 20")
a(f"s_lshl_b32 s59, s{sS}, 16")
a("s_add_u32 s58, s58, s59")
a("s_add_u32 s58, s58, 786432")
for nm in ("ws", "x", "k", "wq"):
    a(f"s_mov_b32 s{SRD[nm]+2}, {SIZES[nm]}")
    a(f"s_mov_b32 s{SRD[nm]+3}, 0x20000")
def srd_lo(name):
    d = SRD[name]; p = PTR[name]
    a(f"s_mov_b32 s{d}, s{p}")
    a(f"s_and_b32 s{d+1}, s{p+1}, 0xffff")
if STAMPS:
    for i in range(12): a(f"v_mov_b32 v{240+i}, 0")
a(f"s_cmp_ge_u32 s{sW}, 4")
a("s_cbranch_scc1 L_VW")

a("s_setprio 2")
a(f"s_lshl_b32 s61, s{sW}, 10")
if WOFILL:
    a(f"s_cmp_lt_u32 s{sS}, 2")
    a("s_cbranch_scc1 L_K_WOF")
a(f"s_lshl_b32 s60, s{sW}, 14")
a("s_add_u32 s59, s60, s58")
a(f"s_add_u32 m0, s60, {L_K}")
for j in range(4):
    a(f"v_xor_b32 v{16+j}, {j*4}, v{vG}")
    a(f"v_xor_b32 v{16+j}, v{16+j}, v{vC}")
    a(f"v_lshlrev_b32 v{16+j}, 4, v{16+j}")
    a(f"v_lshl_add_u32 v{16+j}, v{vG}, 8, v{16+j}")
a("s_waitcnt lgkmcnt(0)")
srd_lo("k")
a("s_barrier")
dma(NK1, lambda i: 16 + (i & 3), "k", 59, 1024)
a("s_branch L_K_MAIN")
if WOFILL:
    a.label("L_K_WOF")
    a(f"s_lshl_b32 s62, s{sB}, 1")
    a(f"s_add_u32 s62, s62, s{sS}")
    a("s_lshr_b32 s59, s62, 2")
    a("s_and_b32 s60, s62, 3")
    a(f"s_lshl_b32 s62, s{sHKV}, 2")
    a("s_add_u32 s60, s60, s62")
    a("s_lshl_b32 s60, s60, 17")
    a("s_lshl_b32 s59, s59, 8")
    a("s_add_u32 s59, s59, s60")
    a(f"s_lshl_b32 s60, s{sW}, 15")
    a("s_add_u32 s59, s59, s60")
    a(f"s_lshl_b32 m0, s{sW}, 13")
    a(f"v_lshlrev_b32 v16, 1, v{vG}")
    a(f"v_xor_b32 v16, v16, v{vC}")
    a("v_xor_b32 v17, 8, v16")
    a("v_lshlrev_b32 v16, 4, v16")
    a("v_lshlrev_b32 v17, 4, v17")
    a(f"v_lshl_add_u32 v16, v{vG}, 10, v16")
    a(f"v_lshl_add_u32 v17, v{vG}, 10, v17")
    a("s_waitcnt lgkmcnt(0)")
    a(f"s_mov_b32 s{SRD['wq']}, s{PTR['wo']}")
    a(f"s_and_b32 s{SRD['wq']+1}, s{PTR['wo']+1}, 0xffff")
    a("s_barrier")
    dma(8, lambda i: 16 + ((i >> 1) & 1), "wq", 59, 4096)
    a("s_branch L_K_MAIN")

a.label("L_VW")
a("s_setprio 3")
a(f"s_cmp_lg_u32 s{sAW}, 0")
a("s_cbranch_scc1 L_V_NZ")
a(f"v_lshl_add_u32 v13, v0, 2, v{vSC}")
a("v_mov_b32 v14, 1.0")
a(f"v_cmp_eq_u32 vcc, {(C_ONE-SC)//4}, v0")
a("v_cndmask_b32 v14, 0, v14, vcc")
a("ds_write_b32 v13, v14")
a(f"ds_write_b32 v13, v{vZ} offset:256")
a(f"ds_write_b32 v13, v{vZ} offset:512")
a.label("L_V_NZ")
a(f"s_lshl_b32 s60, s{sAW}, 12")
a(f"s_add_u32 m0, s60, {L_WQ}")
a(f"s_lshl_b32 s59, s{sHKV}, 10")
a(f"s_lshl_b32 s60, s{sB}, 7")
a("s_add_u32 s59, s59, s60")
a(f"s_lshl_b32 s60, s{sS}, 20")
a("s_add_u32 s59, s59, s60")
a(f"s_lshl_b32 s60, s{sAW}, 18")
a("s_add_u32 s59, s59, s60")
src128(74, 8192, 14)
a("v_lshrrev_b32 v15, 5, v0")
a("v_lshlrev_b32 v15, 10, v15")
a("v_and_b32 v14, 31, v0")
a("v_lshl_add_u32 v15, v14, 3, v15")
a(f"s_lshl_b32 s60, s{sS}, 8")
a("v_add_u32 v15, s60, v15")
a(f"s_lshl_b32 s60, s{sAW}, 11")
a(f"s_lshl_b32 s61, s{sW}, 10")
a("s_waitcnt lgkmcnt(0)")
srd_lo("x"); srd_lo("wq"); srd_lo("ws")
a(f"s_lshl_b32 s54, s{sHKV}, 5")
a(f"s_add_u32 s54, s54, s{sHKV}")
a("s_add_u32 s54, s54, 24")
a("s_sub_u32 s54, s54, s2")
a(f"s_xor_b32 s55, s{sW}, 5")
a("s_or_b32 s74, s54, s55")
a("s_cbranch_scc1 L_V_NOZ")
for i in range(4): a(f"v_mov_b32 v{76+i}, 0")
a(f"s_mul_i32 s54, s{sB}, 3072")
a(f"s_add_u32 s54, s54, {WS_HACC}")
for j in range(3):
    a(f"buffer_store_dwordx4 v[76:79], v{vL16}, {R('ws')}, s54 offen offset:{j*1024} sc1")
if AO:
    a(f"s_add_u32 s54, s54, {WS_OACC - WS_HACC}")
    for j in range(3):
        a(f"buffer_store_dwordx4 v[76:79], v{vL16}, {R('ws')}, s54 offen offset:{j*1024} sc1")
a.label("L_V_NOZ")
a(f"buffer_load_dwordx4 v[16:19], v{vL16}, {R('x')}, s60 offen")
a(f"buffer_load_dwordx4 v[20:23], v{vL16}, {R('x')}, s60 offen offset:1024")
a(f"buffer_load_dwordx2 v[64:65], v15, {R('x')}, s60 offen")
dma(4, lambda i: 74 + (i & 1), "wq", 59, 65536)
a(f"buffer_load_dword v6, v{vZ}, {R('ws')}, 0 offen sc1")
a("s_barrier")
if STAMPS:
    a("v_mov_b32 v240, s92")
a(f"s_mul_i32 s60, s{sAW}, {2*Y_STR}")
a(f"s_add_u32 s60, s60, {L_Y}")
a("v_lshrrev_b32 v15, 5, v0")
a(f"v_mul_u32_u24 v15, {Y_STR}, v15")
a("v_and_b32 v14, 31, v0")
a("v_lshl_add_u32 v15, v14, 3, v15")
a("v_add_u32 v15, s60, v15")
a("s_mov_b32 s98, 0"); a("s_mov_b32 s99, -1")
a(f"s_lshl_b32 s60, s{sAW}, 1")
tr_swz_addr(70, 128, 60, 0, 14, 24, base_imm=L_WQ)
B_addr(71, L_Y, Y_STR, 14)
a("v_and_b32 v72, 7, v0")
a("v_lshlrev_b32 v72, 17, v72")
a(f"v_lshl_add_u32 v72, v{vG}, 5, v72")
a("v_bfe_u32 v14, v0, 3, 1")
a("v_lshl_add_u32 v72, v14, 4, v72")
a(f"s_lshl_b32 s62, s{sHKV}, 2")
a(f"s_add_u32 s62, s62, s{sS}")
a("s_lshl_b32 s62, s62, 12")
a(f"s_lshl_b32 s60, s{sB}, 9")
a("s_add_u32 s62, s62, s60")
a(f"s_lshl_b32 s60, s{sAW}, 7")
a("s_add_u32 s62, s62, s60")
a(f"s_add_u32 s62, s62, {WS_QP}")
a("s_mov_b32 s100, 0xff00ff00"); a("s_mov_b32 s101, 0xff00ff00")
PQ = 1 if (FQ and PREW) else 0
if PQ:
    for i in range(4): a(f"v_mov_b32 v{76+i}, 0")
    a(f"s_add_u32 s60, s62, {WS_FAST}")
    a(f"buffer_store_dwordx4 v[76:79], v72, {R('ws')}, s60 offen")
a(f"s_waitcnt vmcnt({6+PQ})")
def st0():
    for i in range(4): unpack(16+i, 24+2*i, 25+2*i)
    row_stats(24, 40, 55)
def st1():
    for i in range(4): unpack(20+i, 32+2*i, 33+2*i)
    row_stats(32, 52, 94)
A_, B_ = capture(st0), capture(st1)
for x_, y_ in zip(A_, B_):
    a.items += [x_, y_]
a("v_cndmask_b32 v40, v40, v52, s[98:99]")
a("v_cndmask_b32 v41, v41, v53, s[98:99]")
rnd2(40, 41, 42)
sd_of(41, 42)
rcp_nr(42, 41, 43)
a(f"s_waitcnt vmcnt({5+PQ})")
unpack(64, 66, 67); unpack(65, 68, 69)
for i in range(4):
    a(f"v_sub_f32 v{66+i}, v{66+i}, v40")
rnd2(66, 67, 44); rnd2(68, 69, 45)
for i in range(4):
    a(f"v_mul_f32 v{44+i}, v{66+i}, v42")
for i in range(4):
    a(f"v_fma_f32 v{66+i}, -v{44+i}, v41, v{66+i}")
for i in range(4):
    a(f"v_fma_f32 v{66+i}, v{66+i}, v42, v{44+i}")
a("v_cvt_pk_bf16_f32 v44, v66, v67")
a("v_cvt_pk_bf16_f32 v45, v68, v69")
a("ds_write_b64 v15, v[44:45]")
a(f"s_waitcnt vmcnt({1+PQ})")
set_flag(F_LN1)
a(f"s_waitcnt vmcnt({PQ})")
a("v_add_u32 v53, 1, v6")
a("v_max_u32 v53, 1, v53")
a("v_mov_b32 v55, v53")
a(f"v_readfirstlane_b32 s{sTAG}, v53")
a("s_cmp_lg_u32 s74, 0")
a("s_cbranch_scc1 L_V_NOZF")
a(f"s_lshl_b32 s60, s{sB}, 7")
a(f"s_add_u32 s60, s60, {WS_ZF}")
a("s_mov_b64 exec, 1")
a(f"buffer_store_dword v53, v{vZ}, {R('ws')}, s60 offen sc1")
a("s_mov_b64 exec, -1")
a.label("L_V_NOZF")
stamp(1)
lds_wait4(F_LN1, 16)
for kk in range(4):
    a(f"ds_read_b128 v[{16+kk*4}:{19+kk*4}], v71 offset:{kk*64}")
    for hh in range(2):
        a(f"ds_read_b64_tr_b16 v[{32+kk*4+hh*2}:{33+kk*4+hh*2}], v70 offset:{kk*4096+hh*512}")
for kk in range(4):
    a(f"s_waitcnt lgkmcnt({(3-kk)*3})")
    c = "0" if kk == 0 else "v[56:59]"
    a(f"v_mfma_f32_16x16x32_bf16 v[56:59], v[{32+kk*4}:{35+kk*4}], v[{16+kk*4}:{19+kk*4}], {c}")
a(f"ds_write_b32 v{vSC}, v53 offset:{F_TAG-SC}")
a("v_cndmask_b32 v52, v56, v58, s[100:101]")
a("v_cndmask_b32 v54, v57, v59, s[100:101]")
if FQ:
    a(f"s_add_u32 s60, s62, {WS_FAST}")
    a(f"buffer_store_dwordx4 v[52:55], v72, {R('ws')}, s60 offen")
a(f"buffer_store_dwordx4 v[52:55], v72, {R('ws')}, s62 offen sc1")
if FE1:
    a(f"s_cmp_lg_u32 s{sAW}, 0")
    a("s_cbranch_scc1 L_V_NOXC")
    a("s_getreg_b32 s60, hwreg(HW_REG_XCC_ID, 0, 4)")
    a("v_mov_b32 v56, s60")
    a("v_mov_b32 v57, v53")
    a(f"s_lshl_b32 s60, s{sHKV}, 5")
    a("s_lshr_b32 s59, s2, 3")
    a("s_add_u32 s60, s60, s59")
    a("s_lshl_b32 s60, s60, 3")
    a(f"s_add_u32 s60, s60, {WS_XC}")
    a("s_mov_b64 exec, 1")
    a(f"buffer_store_dwordx2 v[56:57], v{vZ}, {R('ws')}, s60 offen sc1")
    a("s_mov_b64 exec, -1")
    a.label("L_V_NOXC")
a("s_lshl_b32 s59, s63, 14")
a(f"s_lshl_b32 s60, s{sAW}, 10")
a("s_add_u32 s59, s59, s60")
a(f"s_add_u32 s64, s59, {WS_QP}")
for i in range(1, 4): a(f"s_add_u32 s{64+i}, s{63+i}, 4096")
a(f"s_lshl_b32 s60, s{sAW}, 8")
a(f"s_add_u32 s60, s60, {L_QL}")
a("v_lshl_add_u32 v73, v0, 2, s60")
if GIE == 1: set_flag(F_GI)
if QACK: a("s_waitcnt vmcnt(0)")
if GIE == 2: set_flag(F_GI)
set_flag(F_Q)
stamp(2)
lds_wait4(F_Q, 16)
a(f"s_sleep {SL_Q}")
if FQ:
    a(f"v_add_u32 v74, {WS_FAST}, v{vL16}")
    a("s_mov_b32 s62, 0")
else:
    a(f"v_mov_b32 v74, v{vL16}")
a.label("L_QG")
for i in range(4):
    a(f"buffer_load_dwordx4 v[{32+i*4}:{35+i*4}], v74, {R('ws')}, s{64+i} offen sc1")
set_flag(F_GI)
budget()
if FQ:
    a("s_add_u32 s62, s62, 1")
    a("s_cmp_lt_u32 s62, 3")
    a("s_cselect_b32 s60, 0, s62")
    a("s_and_b32 s60, s60, 1")
    a("s_xor_b32 s60, s60, 1")
    a(f"s_mul_i32 s60, s60, {WS_FAST}")
    a(f"v_add_u32 v74, s60, v{vL16}")
a("s_waitcnt vmcnt(0)")
tags_ok([32+r for r in (1, 3, 5, 7, 9, 11, 13, 15)], 48, 49)
if SL_QR:
    a("s_cbranch_scc1 L_QG_OK")
    a(f"s_sleep {SL_QR}")
    a("s_branch L_QG")
    a.label("L_QG_OK")
else:
    a("s_cbranch_scc0 L_QG")
a("v_add_f32 v48, v32, v36")
a("v_add_f32 v49, v34, v38")
a("v_add_f32 v50, v40, v44")
a("v_add_f32 v51, v42, v46")
a("v_pk_add_f32 v[48:49], v[48:49], v[50:51]")
a("v_cvt_pk_bf16_f32 v48, v48, v49")
a("ds_write_b32 v73, v48")
a("v_mov_b32 v14, 2")
set_flag(F_Q, 14)
stamp(5)
a("s_setprio 1")
srd("v")
a(f"s_and_b32 s60, s{sAW}, 1")
a("s_lshl_b32 s60, s60, 3")
a(f"v_lshlrev_b32 v13, 1, v{vG}")
a("v_or_b32 v13, s60, v13")
a(f"v_xor_b32 v13, v13, v{vC}")
a("v_lshlrev_b32 v13, 4, v13")
a(f"v_lshl_add_u32 v13, v{vG}, 8, v13")
a(f"s_lshl_b32 s60, s{sAW}, 11")
a(f"s_add_u32 s60, s60, {NVK*8192}")
a("s_add_u32 s59, s58, s60")
a(f"s_add_u32 m0, s60, {L_V}")
if WOFILL:
    a(f"s_cmp_ge_u32 s{sS}, 2")
    a("s_cbranch_scc1 L_V_NOWOR")
    a(f"s_lshl_b32 s60, s{sAW}, 2")
    tr_swz_addr(70, 256, 60, 0, 14, 16)
    tr_swz_addr(71, 256, 60, 1, 14, 16)
    lds_wait4(F_W, 16, sleep=1)
    for nt_ in range(2):
        for kk in range(4):
            for hh in range(2):
                r = vWO + (nt_*4+kk)*4 + hh*2
                a(f"ds_read_b64_tr_b16 v[{r}:{r+1}], v{70+nt_} offset:{kk*8192 + hh*1024}")
        a("s_waitcnt lgkmcnt(0)")
    set_flag(F_WR)
    lds_wait4(F_WR, 16)
    a.label("L_V_NOWOR")
step = lambda i: 1024 if i % 2 == 0 else 7168
lds_wait4(F_KI, 16, sleep=1)
dma(16-2*NVK, 13, "v", 59, step, step)
stamp(3)
vPR, vOPA, vTR = 120, 121, 122
a("v_and_b32 v15, 3, v0")
a(f"v_mul_u32_u24 v{vPR}, {P_STR}, v15")
a(f"v_add_u32 v{vPR}, {L_P}, v{vPR}")
a(f"v_lshl_add_u32 v{vPR}, v{vG}, 4, v{vPR}")
a(f"s_lshl_b32 s60, s{sHKV}, 2")
a(f"v_add_u32 v{vOPA}, s60, v15")
a("s_lshr_b32 s60, s2, 3")
a(f"v_lshlrev_b32 v{vOPA}, 5, v{vOPA}")
a(f"v_add_u32 v{vOPA}, s60, v{vOPA}")
a(f"v_lshlrev_b32 v{vOPA}, 10, v{vOPA}")
a("v_bfe_u32 v15, v0, 3, 1")
a(f"v_lshl_add_u32 v{vOPA}, v15, 7, v{vOPA}")
a(f"v_lshl_add_u32 v{vOPA}, v{vG}, 5, v{vOPA}")
a("v_bfe_u32 v15, v0, 2, 1")
a(f"v_lshl_add_u32 v{vOPA}, v15, 4, v{vOPA}")
a("v_bfe_u32 v14, v0, 2, 2")
a(f"v_and_b32 v15, 1, v{vG}")
a("v_lshl_add_u32 v15, v15, 2, v14")
a("v_lshlrev_b32 v15, 1, v15")
a("v_bfe_u32 v16, v0, 1, 1")
a("v_xor_b32 v15, v15, v16")
a(f"v_lshl_add_u32 v14, v{vG}, 3, v14")
a("v_lshlrev_b32 v14, 8, v14")
a("v_and_b32 v16, 1, v0")
a("v_lshl_add_u32 v14, v16, 3, v14")
for dt in range(2):
    a(f"s_lshl_b32 s60, s{sAW}, 2")
    if dt: a("s_add_u32 s60, s60, 2")
    a("v_xor_b32 v16, s60, v15")
    a(f"v_lshl_add_u32 v{vTR+dt}, v16, 4, v14")
a("s_mov_b32 s94, 0x00f000f0"); a("s_mov_b32 s95, 0x00f000f0")
a("s_mov_b32 s96, 0x0f000f00"); a("s_mov_b32 s97, 0x0f000f00")
a("s_mov_b32 s98, 0xf000f000"); a("s_mov_b32 s99, 0xf000f000")
a(f"s_lshl_b32 s60, s{sAW}, 8")
a(f"s_add_u32 s60, s60, {WS_OP}")
a(f"v_mov_b32 v105, s{sTAG}")
a(f"v_mov_b32 v107, s{sTAG}")
a(f"s_lshl_b32 s61, s{sHKV}, 5")
a("s_lshr_b32 s62, s2, 3")
a("s_add_u32 s61, s61, s62")
a("s_lshl_b32 s61, s61, 7")
a(f"s_add_u32 s61, s61, {WS_OF}")
a(f"s_lshl_b32 s62, s{sAW}, {2 if E1F == 3 else 15}")
a("s_add_u32 s61, s61, s62")
PO = 1 if (FE1 and PREW) else 0
if PO:
    a(f"v_not_b32 v76, v105")
    a("v_mov_b32 v77, v76"); a("v_mov_b32 v78, v76"); a("v_mov_b32 v79, v76")
    a(f"s_add_u32 s62, s60, {WS_FAST}")
    if PREW == 1: a(f"buffer_store_dwordx4 v[76:79], v{vOPA}, {R('ws')}, s62 offen")
    else: a(f"buffer_load_dwordx4 v[112:115], v{vOPA}, {R('ws')}, s62 offen {'sc1' if PREW == 2 else ''}")
lds_wait4(F_B, 16, sleep=1)
vP = 16
for kk in range(8):
    a(f"ds_read_b128 v[{vP+kk*4}:{vP+kk*4+3}], v{vPR} offset:{kk*64}")
stamp(9)
vA = 48
vO = 96
def pv_reads(kk):
    base = vA + (kk % 6)*8
    for dt in range(2):
        for hh in range(2):
            r = base + dt*4 + hh*2
            a(f"ds_read_b64_tr_b16 v[{r}:{r+1}], v{vTR+dt} offset:{kk*8192 + hh*1024}")
def pv_mfma(kk, dt):
    base = vA + (kk % 6)*8
    c = "0" if kk == 0 else f"v[{vO+dt*4}:{vO+dt*4+3}]"
    a(f"v_mfma_f32_16x16x32_bf16 v[{vO+dt*4}:{vO+dt*4+3}], v[{base+dt*4}:{base+dt*4+3}], v[{vP+kk*4}:{vP+kk*4+3}], {c}")
extra = PO
for gi, grp in enumerate((list(range(NVK)), list(range(NVK, 7)), [7])):
    last = grp[-1]
    if gi == 0:
        lds_wait4(F_VK, 108)
    else:
        a(f"v_mov_b32 v14, {last+1}")
        a(f"s_waitcnt vmcnt({14-2*last+extra})")
        set_flag(F_V, 14)
        lds_wait4(F_V, 108, minval=last+1)
    if E1F and gi == E1F:
        a("s_mov_b64 exec, 1")
        a(f"buffer_store_dword v105, v{vZ}, {R('ws')}, s61 offen sc1")
        a("s_mov_b64 exec, -1")
        extra += 1
    pend = list(grp)
    issued = []
    for kk in pend[:3]:
        pv_reads(kk); issued.append(kk)
    for idx, kk in enumerate(pend):
        after = len(issued) - 1 - idx
        for dt in range(2):
            a(f"s_waitcnt lgkmcnt({after*4 + 2 - 2*dt})")
            pv_mfma(kk, dt)
        if idx + 3 < len(pend):
            pv_reads(pend[idx+3]); issued.append(pend[idx+3])
a("v_mov_b32 v14, 9")
a(f"v_cndmask_b32 v104, v{vO}, v{vO+2}, s[94:95]")
a(f"v_cndmask_b32 v106, v{vO+1}, v{vO+3}, s[94:95]")
a(f"v_cndmask_b32 v104, v104, v{vO+4}, s[96:97]")
a(f"v_cndmask_b32 v106, v106, v{vO+5}, s[96:97]")
a(f"v_cndmask_b32 v104, v104, v{vO+6}, s[98:99]")
a(f"v_cndmask_b32 v106, v106, v{vO+7}, s[98:99]")
if FE1:
    a(f"s_add_u32 s62, s60, {WS_FAST}")
    a(f"buffer_store_dwordx4 v[104:107], v{vOPA}, {R('ws')}, s62 offen")
a(f"buffer_store_dwordx4 v[104:107], v{vOPA}, {R('ws')}, s60 offen sc1")
if E1F == 3:
    a("s_mov_b64 exec, 1")
    a(f"buffer_store_dword v105, v{vZ}, {R('ws')}, s61 offen sc1")
    a("s_mov_b64 exec, -1")
stamp(4)
a(f"s_cmp_ge_u32 s{sS}, 2")
a("s_cbranch_scc1 L_V_NOTWO")

a(f"s_lshl_b32 s58, s{sB}, 1")
a(f"s_add_u32 s58, s58, s{sS}")
a("s_lshl_b32 s64, s58, 3")
a(f"s_add_u32 s64, s64, s{sHKV}")
a("s_lshl_b32 s64, s64, 7")
a(f"s_add_u32 s64, s64, {WS_FL}")
a("s_lshr_b32 s63, s58, 2")
a("s_lshl_b32 s63, s63, 2")
a(f"s_add_u32 s63, s63, s{sAW}")
a("s_waitcnt vmcnt(0)")
set_flag(F_V, 14)
B_addr(14, L_OL, OL_STR, 15)
a(f"s_mul_i32 s60, s{sAW}, {8*RL_STR}")
a(f"s_add_u32 s60, s60, {L_RL}")
a("v_and_b32 v15, 7, v0")
a(f"v_mul_u32_u24 v15, {RL_STR}, v15")
a("v_bfe_u32 v16, v0, 3, 1")
a("v_lshl_add_u32 v15, v16, 6, v15")
a(f"v_lshl_add_u32 v15, v{vG}, 4, v15")
a("v_add_u32 v15, s60, v15")
a("v_bfe_u32 v16, v0, 2, 2")
a("v_and_b32 v17, 3, v0")
a(f"v_mul_u32_u24 v18, {RL_STR}, v{vG}")
a("v_lshl_add_u32 v18, v16, 5, v18")
a("v_lshl_add_u32 v18, v17, 2, v18")
a("v_add_u32 v18, s60, v18")
a(f"v_mov_b32 v19, {C_ONE}")
a(f"v_mov_b32 v20, {C_ZERO}")
a("v_cmp_eq_u32 s[56:57], 3, v17")
a("v_cmp_eq_u32 s[58:59], 2, v17")
for j in range(3):
    for bh in range(2):
        r = 24 + j*2 + bh
        a(f"v_add_u32 v{r}, {j*12 + bh*4*RL_STR}, v18")
        a(f"v_cndmask_b32 v{r}, v{r}, v19, s[56:57]")
        if j == 2:
            a(f"v_cndmask_b32 v{r}, v{r}, v20, s[58:59]")
a(f"v_mul_u32_u24 v21, 3072, v{vG}")
a("v_and_b32 v22, 15, v0")
a("v_lshl_add_u32 v21, v22, 2, v21")
a("s_lshl_b32 s63, s63, 6")
a(f"s_add_u32 s63, s63, {WS_HACC}")
a("s_add_u32 s61, s63, 12288")
vA = vWO
if not WOFILL:
    a(f"s_lshl_b32 s60, s{sAW}, 2")
    tr_swz_addr(70, 256, 60, 0, 30, 31, base_imm=L_K)
    tr_swz_addr(71, 256, 60, 1, 30, 31, base_imm=L_K)
    lds_wait4(F_W, 32)
    for nt_ in range(2):
        for kk in range(4):
            for hh in range(2):
                r = vWO + (nt_*4+kk)*4 + hh*2
                a(f"ds_read_b64_tr_b16 v[{r}:{r+1}], v{70+nt_} offset:{kk*8192 + hh*1024}")
        a("s_waitcnt lgkmcnt(0)")
stamp(10)
if BAR: a("s_barrier")
else: lds_wait4(F_C, 64)
stamp(5)
vB = 64
for kk in range(4):
    a(f"ds_read_b128 v[{vB+kk*4}:{vB+kk*4+3}], v14 offset:{kk*64}")
for kk in range(4):
    a(f"s_waitcnt lgkmcnt({3-kk})")
    for nt_ in range(2):
        c = "0" if kk == 0 else f"v[{80+nt_*4}:{83+nt_*4}]"
        r = vA + (nt_*4+kk)*4
        a(f"v_mfma_f32_16x16x32_bf16 v[{80+nt_*4}:{83+nt_*4}], v[{r}:{r+3}], v[{vB+kk*4}:{vB+kk*4+3}], {c}")
for i in range(4):
    a(f"v_cndmask_b32 v{88+i}, v{80+i}, v{84+i}, s[100:101]")
a("ds_write_b128 v15, v[88:91]")
for r in range(6):
    a(f"ds_read_b32 v{92+r}, v{24+r}")
for j in range(3):
    for bh in range(2):
        r = j*2 + bh
        a(f"s_waitcnt lgkmcnt({5-r})")
        a(f"buffer_atomic_add_f32 v{92+r}, v21, {R('ws')}, {'s63' if bh == 0 else 's61'} offen offset:{j*1024}")
a(f"s_cmp_lg_u32 s{sAW}, {99 if FLEARLY else 3}")
a("s_cbranch_scc1 L_V_NOFL")
a("s_mov_b64 exec, 1")
a(f"buffer_store_dword v105, v{vZ}, {R('ws')}, s64 offen sc1")
a("s_mov_b64 exec, -1")
a.label("L_V_NOFL")
stamp(6)
if STAMPS == 1:
    a("s_waitcnt vmcnt(0)")
    stamp(7)
a("s_branch L_FIN")


a.label("L_K_MAIN")
if STAMPS:
    a("v_mov_b32 v240, s92")
srd_lo("k"); srd_lo("ws"); srd("v")
if CODEPF:
    a("s_getpc_b64 s[68:69]")
    a.label("L_PCREF")
    a("s_sub_u32 s68, s68, L_PCREF-L_VW")
    a("s_subb_u32 s69, s69, 0")
    a("s_and_b32 s68, s68, 0xfffffff0")
    a("s_lshr_b32 s60, s2, 3")
    a("s_lshl_b32 s60, s60, 2")
    a(f"s_add_u32 s60, s60, s{sW}")
    a(f"s_cmp_ge_u32 s60, CODE_KB")
    a("s_cbranch_scc1 L_K_NOCP")
    a("s_lshl_b32 s60, s60, 10")
    a(f"v_add_u32 v14, s60, v{vL16}")
    a("global_load_dwordx4 v[20:23], v14, s[68:69]")
    a.label("L_K_NOCP")
vQA, vMXA, vMXW, vPW, vSTA, vQW = 120, 121, 122, 123, 124, 125
vKR = 126
a("v_and_b32 v15, 3, v0")
a(f"v_lshlrev_b32 v{vQA}, 8, v15")
a(f"v_lshl_add_u32 v{vQA}, v{vG}, 4, v{vQA}")
a(f"v_add_u32 v{vQA}, {L_QL}, v{vQA}")
a(f"v_lshl_add_u32 v{vMXA}, v15, 4, v{vSC}")
a(f"s_lshl_b32 s60, s{sW}, 2")
a(f"v_add_u32 v{vMXW}, s60, v{vMXA}")
a(f"v_mul_u32_u24 v14, {P_STR}, v15")
a(f"v_add_u32 v14, {L_P}, v14")
a(f"v_bfe_u32 v{vPW}, v0, 2, 2")
a(f"v_lshlrev_b32 v{vPW}, 5, v{vPW}")
a(f"v_lshl_add_u32 v{vPW}, v{vG}, 3, v{vPW}")
a(f"s_lshl_b32 s60, s{sW}, 7")
a(f"v_add3_u32 v{vPW}, v{vPW}, s60, v14")
a(f"s_lshl_b32 s60, s{sHKV}, 2")
a(f"v_add_u32 v{vSTA}, s60, v15")
a("s_lshr_b32 s60, s2, 3")
a(f"v_lshlrev_b32 v{vSTA}, 5, v{vSTA}")
a(f"v_add_u32 v{vSTA}, s60, v{vSTA}")
a(f"v_lshlrev_b32 v{vSTA}, 4, v{vSTA}")
a(f"s_lshl_b32 s60, s{sW}, 8")
a(f"s_add_u32 s60, s60, {L_QL}")
a(f"v_lshl_add_u32 v{vQW}, v0, 2, s60")
a(f"s_lshl_b32 s60, s{sW}, 14")
a(f"s_add_u32 s60, s60, {L_K}")
for kk in range(4):
    a(f"v_xor_b32 v{vKR+kk}, {kk*4}, v{vG}")
    a(f"v_xor_b32 v{vKR+kk}, v{vKR+kk}, v{vC}")
    a(f"v_lshlrev_b32 v{vKR+kk}, 4, v{vKR+kk}")
    a(f"v_lshl_add_u32 v{vKR+kk}, v{vC}, 8, v{vKR+kk}")
    a(f"v_add_u32 v{vKR+kk}, s60, v{vKR+kk}")
a("s_mov_b32 s94, 0x00f000f0"); a("s_mov_b32 s95, 0x00f000f0")
a("s_mov_b32 s96, 0x0f000f00"); a("s_mov_b32 s97, 0x0f000f00")
a("s_mov_b32 s98, 0xf000f000"); a("s_mov_b32 s99, 0xf000f000")
a("s_lshl_b32 s59, s63, 14")
a(f"s_lshl_b32 s60, s{sW}, 10")
a("s_add_u32 s59, s59, s60")
a(f"s_add_u32 s64, s59, {WS_QP}")
for i in range(1, 4): a(f"s_add_u32 s{64+i}, s{63+i}, 4096")
for j in range(4):
    a(f"v_xor_b32 v{16+j}, {j*4}, v{vG}")
    a(f"v_xor_b32 v{16+j}, v{16+j}, v{vC}")
    a(f"v_lshlrev_b32 v{16+j}, 4, v{16+j}")
    a(f"v_lshl_add_u32 v{16+j}, v{vG}, 8, v{16+j}")
a(f"s_lshl_b32 s60, s{sW}, 14")
a("s_add_u32 s68, s60, s58")
a(f"s_add_u32 m0, s60, {L_K}")
a(f"s_add_u32 s68, s68, {NK1*1024}")
a(f"s_add_u32 m0, m0, {NK1*1024}")
a(f"s_and_b32 s60, s{sW}, 1")
a("s_lshl_b32 s60, s60, 3")
a(f"v_lshlrev_b32 v13, 1, v{vG}")
a("v_or_b32 v13, s60, v13")
a(f"v_xor_b32 v13, v13, v{vC}")
a("v_lshlrev_b32 v13, 4, v13")
a(f"v_lshl_add_u32 v13, v{vG}, 8, v13")
a(f"s_lshl_b32 s61, s{sW}, 11")
a("s_add_u32 s69, s58, s61")
NTOT = 16 + 2*NVK
def stream_item(i):
    if i < 16:
        a(f"buffer_load_dwordx4 v{16 + (i & 3)}, {R('k')}, s68 offen {NT} lds")
        if i < 15:
            a("s_add_u32 m0, m0, 1024")
            a("s_add_u32 s68, s68, 1024")
        else:
            a("s_mov_b32 m0, s61")
    else:
        j = i - 16
        a(f"buffer_load_dwordx4 v13, {R('v')}, s69 offen {NT} lds")
        st_ = 1024 if j % 2 == 0 else 7168
        a(f"s_add_u32 m0, m0, {st_}")
        a(f"s_add_u32 s69, s69, {st_}")
for i in range(NK1, NTOT):
    a(f"ds_read_b128 v[24:27], v{vSC} offset:{F_GI-SC}")
    a(f"s_waitcnt vmcnt({THR}) lgkmcnt(0)")
    a("v_and_b32 v24, v24, v25")
    a("v_and_b32 v26, v26, v27")
    a("v_and_b32 v24, v24, v26")
    a("v_readfirstlane_b32 s54, v24")
    a("s_cmp_lg_u32 s54, 0")
    a(f"s_cbranch_scc1 L_KF{i}")
    stream_item(i)
a("s_branch L_KFE")
for i in range(NK1, NTOT):
    a.label(f"L_KF{i}")
    stream_item(i)
a.label("L_KFE")
set_flag(F_KI)
stamp(1)
vK = 132
lds_wait4(F_Q, 56, minval=2, sleep=1)
a(f"ds_read_b32 v14, v{vSC} offset:{F_TAG-SC}")
stamp(2)
a("s_setprio 3")
vQ = 80
for kk in range(4):
    a(f"ds_read_b128 v[{vQ+kk*4}:{vQ+kk*4+3}], v{vQA} offset:{kk*64}")
vS = 96
a("s_waitcnt lgkmcnt(4)")
a(f"v_readfirstlane_b32 s{sTAG}, v14")
for t in range(4):
    a(f"s_waitcnt vmcnt({(3-t)*4 + 2*NVK})")
    for kk in range(4):
        r = vK + (t*4+kk)*4
        a(f"ds_read_b128 v[{r}:{r+3}], v{vKR+kk} offset:{t*4096}")
    for kk in range(4):
        a(f"s_waitcnt lgkmcnt({3-kk})")
        r = vK + (t*4+kk)*4
        c = "0" if kk == 0 else f"v[{vS+t*4}:{vS+t*4+3}]"
        a(f"v_mfma_f32_16x16x32_bf16 v[{vS+t*4}:{vS+t*4+3}], v[{r}:{r+3}], v[{vQ+kk*4}:{vQ+kk*4+3}], {c}")
vE = 112
for i in range(4):
    a(f"v_cndmask_b32 v{vE+i}, v{vS+i}, v{vS+4+i}, s[94:95]")
for i in range(4):
    a(f"v_cndmask_b32 v{vE+i}, v{vE+i}, v{vS+8+i}, s[96:97]")
for i in range(4):
    a(f"v_cndmask_b32 v{vE+i}, v{vE+i}, v{vS+12+i}, s[98:99]")
rnd2(vE, vE+1, 116); rnd2(vE+2, vE+3, 117)
a(f"s_mov_b32 s55, {SCALE}")
for i in range(4):
    a(f"v_mul_f32 v{vE+i}, s55, v{vE+i}")
rnd2(vE, vE+1, 116); rnd2(vE+2, vE+3, 117)
vM, vL = 118, 119
a(f"v_max_f32 v{vM}, v{vE}, v{vE+1}")
a(f"v_max3_f32 v{vM}, v{vM}, v{vE+2}, v{vE+3}")
head_reduce(vM, 119, "max")
a(f"ds_write_b32 v{vMXW}, v{vM} offset:{L_MX-SC}")
set_flag(F_A)
lds_wait4(F_A, 56)
a(f"ds_read_b128 v[56:59], v{vMXA} offset:{L_MX-SC}")
a("s_waitcnt lgkmcnt(0)")
a(f"v_max3_f32 v{vM}, v56, v57, v58")
a(f"v_max_f32 v{vM}, v{vM}, v59")
a(f"s_mov_b32 s55, {LOG2E}")
for i in range(4):
    a(f"v_sub_f32 v{vE+i}, v{vE+i}, v{vM}")
for i in range(4):
    a(f"v_mul_f32 v{vE+i}, s55, v{vE+i}")
for i in range(4):
    a(f"v_exp_f32 v{vE+i}, v{vE+i}")
a(f"v_add_f32 v{vL}, v{vE}, v{vE+1}")
a(f"v_add_f32 v56, v{vE+2}, v{vE+3}")
a(f"v_add_f32 v{vL}, v{vL}, v56")
a(f"v_cvt_pk_bf16_f32 v116, v{vE}, v{vE+1}")
a(f"v_cvt_pk_bf16_f32 v117, v{vE+2}, v{vE+3}")
a(f"ds_write_b64 v{vPW}, v[116:117]")
head_reduce(vL, 56, "add")
a(f"ds_write_b32 v{vMXW}, v{vL} offset:{L_SUM-SC}")
set_flag(F_B)
lds_wait4(F_B, 56)
a(f"ds_read_b128 v[56:59], v{vMXA} offset:{L_SUM-SC}")
a("s_waitcnt lgkmcnt(0)")
a(f"v_add_f32 v{vL}, v56, v57")
a("v_add_f32 v58, v58, v59")
a(f"v_add_f32 v58, v{vL}, v58")
a(f"v_mov_b32 v56, v{vM}")
a(f"v_mov_b32 v57, s{sTAG}")
a(f"v_mov_b32 v59, s{sTAG}")
a(f"s_lshl_b64 s[56:57], 1, s{sW}")
a(f"s_mov_b32 s61, {WS_ST}")
a("s_mov_b64 exec, s[56:57]")
a(f"buffer_store_dwordx4 v[56:59], v{vSTA}, {R('ws')}, s61 offen sc1")
if FE1:
    a(f"s_mov_b32 s61, {WS_ST + WS_FAST}")
    a(f"buffer_store_dwordx4 v[56:59], v{vSTA}, {R('ws')}, s61 offen")
a("s_mov_b64 exec, -1")
stamp(3)
a("s_setprio 0")
a(f"s_cmp_ge_u32 s{sS}, 2")
a("s_cbranch_scc1 L_K_NOTWO")

if not WOFILL:
    a(f"s_lshl_b32 s62, s{sB}, 1")
    a(f"s_add_u32 s62, s62, s{sS}")
    a("s_lshr_b32 s59, s62, 2")
    a("s_and_b32 s60, s62, 3")
    a(f"s_lshl_b32 s62, s{sHKV}, 2")
    a("s_add_u32 s60, s60, s62")
    a("s_lshl_b32 s60, s60, 17")
    a("s_lshl_b32 s59, s59, 8")
    a("s_add_u32 s59, s59, s60")
    a(f"s_lshl_b32 s60, s{sW}, 15")
    a("s_add_u32 s59, s59, s60")
    a(f"s_lshl_b32 s60, s{sW}, 13")
    a(f"s_add_u32 m0, s60, {L_K}")
    a(f"v_lshlrev_b32 v16, 1, v{vG}")
    a(f"v_xor_b32 v16, v16, v{vC}")
    a("v_xor_b32 v17, 8, v16")
    a("v_lshlrev_b32 v16, 4, v16")
    a("v_lshlrev_b32 v17, 4, v17")
    a(f"v_lshl_add_u32 v16, v{vG}, 10, v16")
    a(f"v_lshl_add_u32 v17, v{vG}, 10, v17")
    a(f"s_mov_b32 s{SRD['wq']}, s{PTR['wo']}")
    a(f"s_and_b32 s{SRD['wq']+1}, s{PTR['wo']+1}, 0xffff")
    dma(8, lambda i: 16 + ((i >> 1) & 1), "wq", 59, 4096)
def coefs():
    a(f"v_max_f32_dpp v72, v68, v68 quad_perm:[1,0,3,2] {DPPM}")
    a(f"v_max_f32_dpp v72, v72, v72 quad_perm:[2,3,0,1] {DPPM}")
    a("v_sub_f32 v72, v68, v72")
    a(f"v_mul_f32 v72, {LOG2E}, v72")
    a("v_exp_f32 v72, v72")
    a("v_mul_f32 v73, v72, v70")
    a(f"v_add_f32_dpp v73, v73, v73 quad_perm:[1,0,3,2] {DPPM}")
    a(f"v_add_f32_dpp v73, v73, v73 quad_perm:[2,3,0,1] {DPPM}")
    a("v_rcp_f32 v74, v73")
    a("v_mul_f32 v72, v72, v74")
    for i in range(8):
        a(f"v_readlane_b32 s{66+i}, v72, {i}")
    a("s_nop 1")
def fl_load():
    if E1F == 3: a(f"buffer_load_dwordx4 v[60:63], v15, {R('ws')}, s61 offen sc1")
    else: a(f"buffer_load_dword v60, v15, {R('ws')}, s61 offen sc1")
a(f"s_waitcnt vmcnt({9+FE1})")
set_flag(F_VK)
a(f"s_lshl_b32 s58, s{sB}, 1")
a(f"s_add_u32 s58, s58, s{sS}")
a("s_and_b32 s58, s58, 3")
a(f"s_lshl_b32 s60, s{sHKV}, 2")
a("s_add_u32 s58, s58, s60")
a("s_setprio 3")
a("s_lshl_b32 s65, s58, 9")
a(f"s_lshl_b32 s60, s{sW}, 7")
a("s_add_u32 s65, s65, s60")
a(f"s_add_u32 s65, s65, {WS_ST}")
a("s_lshl_b32 s58, s58, 15")
a(f"s_lshl_b32 s60, s{sW}, 13")
a("s_add_u32 s58, s58, s60")
a(f"s_add_u32 s58, s58, {WS_OP}")
a("s_add_u32 s59, s58, 4096")
a(f"s_mul_i32 s60, s{sW}, {2*OL_STR}")
a(f"s_add_u32 s60, s60, {L_OL}")
a("v_lshl_add_u32 v13, v0, 2, s60")
a("v_and_b32 v14, 7, v0")
a("v_lshlrev_b32 v15, 7, v14")
a("v_lshlrev_b32 v14, 4, v14")
a(f"s_lshl_b32 s61, s{sHKV}, 12")
a(f"s_lshl_b32 s60, s{sW}, 10")
a("s_add_u32 s61, s61, s60")
a(f"s_add_u32 s61, s61, {WS_OF}")
a("s_mov_b32 s62, 0xff")
a(f"s_lshl_b32 s75, s{sB}, 1")
a(f"s_add_u32 s75, s75, s{sS}")
a("s_lshl_b32 s75, s75, 3")
a(f"s_add_u32 s75, s75, s{sHKV}")
a("s_lshl_b32 s75, s75, 7")
a(f"s_add_u32 s75, s75, {WS_FL}")
if FE1:
    a("v_and_b32 v66, 31, v0")
    a("v_lshlrev_b32 v66, 3, v66")
    a(f"s_lshl_b32 s64, s{sHKV}, 8")
    a(f"s_add_u32 s64, s64, {WS_XC}")
    a(f"buffer_load_dwordx2 v[76:77], v66, {R('ws')}, s64 offen sc1")
zflag_wait(64)
set_flag(F_W)
stamp(4)
vD = 16
if FE1:
    a("s_getreg_b32 s60, hwreg(HW_REG_XCC_ID, 0, 4)")
    a("v_cmp_eq_u32 vcc, s60, v76")
    a(f"v_cmp_eq_u32 s[56:57], s{sTAG}, v77")
    a("s_and_b64 vcc, vcc, s[56:57]")
    a("s_cmp_eq_u64 vcc, -1")
    a("s_cbranch_scc0 L_E1")
    a(f"v_add_u32 v66, {WS_FAST}, v{vL16}")
    a(f"v_add_u32 v67, {WS_FAST}, v14")
    a("s_mov_b32 s64, 3000")
    def fld(i):
        if i < 8: a(f"buffer_load_dwordx4 v[{vD+i*4}:{vD+i*4+3}], v66, {R('ws')}, {'s58' if i < 4 else 's59'} offen offset:{(i%4)*1024} {FLD}")
        else: a(f"buffer_load_dwordx4 v[68:71], v67, {R('ws')}, s65 offen {FLD}")
    if F1WAIT: lds_wait4(F_V, 60, minval=F1WAIT)
    fld(8)
    for i in range(8): fld(i)
    a("s_waitcnt vmcnt(8)")
    coefs()
    a.label("L_F1")
    a("s_waitcnt vmcnt(0)")
    tags_ok([vD+i*4+k for i in range(8) for k in (1, 3)] + [69, 71], 60, 61)
    a("s_cbranch_scc1 L_E1_FMA")
    if SL_F1: a(f"s_sleep {SL_F1}")
    for i in (8, 0, 1, 2, 3, 4, 5, 6, 7):
        t0, t1 = (vD+i*4+1, vD+i*4+3) if i < 8 else (69, 71)
        a(f"v_cmp_eq_u32 vcc, s{sTAG}, v{t0}")
        a(f"v_cmp_eq_u32 s[56:57], s{sTAG}, v{t1}")
        a("s_and_b64 vcc, vcc, s[56:57]")
        a("s_cmp_eq_u64 vcc, -1")
        a(f"s_cbranch_scc1 L_F1_c{i}")
        fld(i)
        if i == 8:
            a("s_waitcnt vmcnt(0)")
            coefs()
        a.label(f"L_F1_c{i}")
    a("s_sub_u32 s64, s64, 1")
    a("s_cbranch_scc0 L_F1")
    a("s_waitcnt vmcnt(0)")
    a("s_mov_b32 s62, 0xff")
def ld(i): a(f"buffer_load_dwordx4 v[{vD+i*4}:{vD+i*4+3}], v{vL16}, {R('ws')}, {'s58' if i < 4 else 's59'} offen offset:{(i%4)*1024} sc1")
a.label("L_E1")
fl_load()
budget()
a("s_waitcnt vmcnt(0)")
a(f"v_cmp_eq_u32 vcc, s{sTAG}, v60")
if E1F == 3:
    for r in (61, 62, 63):
        a(f"v_cmp_eq_u32 s[56:57], s{sTAG}, v{r}")
        a("s_and_b64 vcc, vcc, s[56:57]")
a("s_and_b32 s60, vcc_lo, s62")
a("s_cbranch_scc1 L_E1_GO")
if SL_P1: a(f"s_sleep {SL_P1}")
a("s_branch L_E1")
a.label("L_E1_GO")
for i in range(8):
    a(f"s_bitcmp1_b32 s60, {i}")
    a(f"s_cbranch_scc0 L_E1_l{i}")
    ld(i)
    a.label(f"L_E1_l{i}")
a("s_cmp_lg_u32 s60, s62")
a("s_cbranch_scc1 L_E1_NS")
a.label("L_E1_ST")
a(f"buffer_load_dwordx4 v[68:71], v14, {R('ws')}, s65 offen sc1")
a.label("L_E1_NS")
a("s_waitcnt vmcnt(0)")
for i in range(8):
    a(f"s_bitcmp1_b32 s60, {i}")
    a(f"s_cbranch_scc0 L_E1_c{i}")
    a(f"v_cmp_eq_u32 vcc, s{sTAG}, v{vD+i*4+1}")
    a(f"v_cmp_eq_u32 s[56:57], s{sTAG}, v{vD+i*4+3}")
    a("s_and_b64 vcc, vcc, s[56:57]")
    a("s_cmp_eq_u64 vcc, -1")
    a(f"s_cbranch_scc0 L_E1_c{i}")
    a(f"s_bitset0_b32 s62, {i}")
    a.label(f"L_E1_c{i}")
a("s_cmp_lg_u32 s62, 0")
a("s_cbranch_scc1 L_E1")
a(f"v_cmp_eq_u32 vcc, s{sTAG}, v69")
a(f"v_cmp_eq_u32 s[56:57], s{sTAG}, v71")
a("s_and_b64 vcc, vcc, s[56:57]")
a("s_mov_b32 s60, 0")
budget()
a("s_cmp_eq_u64 vcc, -1")
a("s_cbranch_scc0 L_E1_ST")
coefs()
a.label("L_E1_FMA")
if FLEARLY == 2:
    a(f"s_cmp_lg_u32 s{sW}, 3")
    a("s_cbranch_scc1 L_K_NOFL2")
    a("s_mov_b64 exec, 1")
    a(f"buffer_store_dword v17, v{vZ}, {R('ws')}, s75 offen sc1")
    a("s_mov_b64 exec, -1")
    a.label("L_K_NOFL2")
stamp(5)
for i in range(8):
    bb = i // 4
    op = "v_mul_f32" if i % 4 == 0 else "v_fmac_f32"
    a(f"{op} v{56+bb*2}, s{66+i}, v{vD+i*4}")
    a(f"{op} v{57+bb*2}, s{66+i}, v{vD+i*4+2}")
a("v_cvt_pk_bf16_f32 v56, v56, v57")
a("v_cvt_pk_bf16_f32 v58, v58, v59")
a("ds_write_b32 v13, v56")
a(f"ds_write_b32 v13, v58 offset:{OL_STR}")
if BAR:
    a("s_waitcnt lgkmcnt(0)")
    a("s_barrier")
else:
    set_flag(F_C)
if FLEARLY == 1:
    a(f"s_cmp_lg_u32 s{sW}, 3")
    a("s_cbranch_scc1 L_K_NOFL")
    if not BAR: lds_wait4(F_C, 60)
    a("s_mov_b64 exec, 1")
    a(f"buffer_store_dword v17, v{vZ}, {R('ws')}, s75 offen sc1")
    a("s_mov_b64 exec, -1")
    a.label("L_K_NOFL")
stamp(6)
if AO:
    a("s_branch L_FIN")
else:
    a(f"s_cmp_lg_u32 s{sS}, 0")
    a("s_cbranch_scc1 L_FIN")

if not AO:
    srd("b2"); srd("out")
    a("v_and_b32 v13, 7, v0")
    a("v_lshlrev_b32 v14, 2, v13")
    a(f"s_lshl_b32 s58, s{sHKV}, 7")
    a(f"s_lshl_b32 s59, s{sW}, 5")
    a("s_add_u32 s58, s58, s59")
    a(f"s_lshl_b32 s59, s{sB}, 10")
    a("s_add_u32 s59, s59, s58")
    a(f"buffer_load_dword v15, v14, {R('b2')}, s58 offen")
    a("s_lshl_b32 s60, s63, 2")
    a(f"s_add_u32 s60, s60, s{sW}")
    a("s_lshl_b32 s60, s60, 12")
    a(f"s_add_u32 s60, s60, {WS_OUTP}")
    a("v_lshlrev_b32 v16, 3, v13")
    a("v_and_b32 v17, 31, v0")
    a("v_lshlrev_b32 v17, 4, v17")
    a("v_mov_b32 v18, 0")
    a("v_mov_b32 v19, 0")
    a("v_mov_b32 v20, 1.0")
    a("v_cmp_gt_u32 vcc, 32, v0")
    a("v_cndmask_b32 v20, 0, v20, vcc")
    a("s_waitcnt vmcnt(0)")
    unpack(15, 22, 23)
    vD = 24
    def ld(i):
        if i < 3: a(f"buffer_load_dwordx4 v[{vD+i*4}:{vD+i*4+3}], v{vL16}, {R('ws')}, s60 offen offset:{i*1024} sc1")
        elif i == 3: a(f"buffer_load_dwordx4 v[{vD+12}:{vD+15}], v17, {R('ws')}, s60 offen offset:3072 sc1")
        else: a(f"buffer_load_dwordx2 v[40:41], v16, {R('ws')}, s60 offen offset:{NMLP*128} sc1")
    def tg(i): return [vD+i*4+1, vD+i*4+3] if i < 4 else [41]
    def cons(i):
        if i < 3:
            a(f"v_add_f32 v18, v18, v{vD+i*4}")
            a(f"v_add_f32 v19, v19, v{vD+i*4+2}")
        elif i == 3:
            a(f"v_fmac_f32 v18, v20, v{vD+12}")
            a(f"v_fmac_f32 v19, v20, v{vD+14}")
        else:
            unpack(40, 42, 43)
    if E3F:
        a(f"s_lshr_b32 s61, s{sB}, {LM}")
        if NS == 2:
            a("s_lshl_b32 s61, s61, 1")
            a(f"s_lshr_b32 s62, s{sHKV}, 2")
            a("s_add_u32 s61, s61, s62")
        a("s_lshl_b32 s61, s61, 12")
        a(f"s_add_u32 s61, s61, {WS_RF}")
        a(f"v_min_u32 v44, {NMLP-1}, v0")
        a("v_lshlrev_b32 v44, 7, v44")
        if P1R:
            a(f"s_cmp_lg_u32 s{sW}, 0")
            a("s_cbranch_scc1 L_RF_OK")
        a.label("L_RF")
        a(f"buffer_load_dword v45, v44, {R('ws')}, s61 offen sc1")
        budget()
        a("s_waitcnt vmcnt(0)")
        a(f"v_cmp_eq_u32 vcc, s{sTAG}, v45")
        a("s_cmp_eq_u64 vcc, -1")
        a("s_cbranch_scc1 L_RF_OK")
        if SL_RED: a(f"s_sleep {SL_RED}")
        a("s_branch L_RF")
        a.label("L_RF_OK")
        if P1R: a("s_barrier")
        if SL_E3: a(f"s_sleep {SL_E3}")
        stamp(11)
    a.label("L_RG")
    for i in range(5): ld(i)
    budget()
    a("s_waitcnt vmcnt(0)")
    tags_ok([t for i in range(5) for t in tg(i)], 44, 45)
    if SL_RR:
        a("s_cbranch_scc1 L_RG_OK")
        a(f"s_sleep {SL_RR}")
        a("s_branch L_RG")
        a.label("L_RG_OK")
    else:
        a("s_cbranch_scc0 L_RG")
    for i in range(5): cons(i)
    stamp(9)
    a(f"v_add_f32_dpp v18, v18, v18 row_ror:8 {DPPM}")
    a(f"v_add_f32_dpp v19, v19, v19 row_ror:8 {DPPM}")
    for sw in ("16", "32"):
        a("v_mov_b32 v24, v18")
        a("v_mov_b32 v25, v19")
        a(f"v_permlane{sw}_swap_b32 v18, v24")
        a(f"v_permlane{sw}_swap_b32 v19, v25")
        a("v_add_f32 v18, v18, v24")
        a("v_add_f32 v19, v19, v25")
    rnd2(18, 19, 24)
    a("v_add_f32 v18, v18, v22")
    a("v_add_f32 v19, v19, v23")
    rnd2(18, 19, 24)
    a("v_add_f32 v18, v18, v42")
    a("v_add_f32 v19, v19, v43")
    a("v_cvt_pk_bf16_f32 v18, v18, v19")
    a("s_mov_b64 exec, 0xff")
    a(f"buffer_store_dword v18, v14, {R('out')}, s59 offen")
    a("s_mov_b64 exec, -1")
    stamp(10)
    a("s_cmp_lg_u32 s2, 0")
    a("s_cbranch_scc1 L_FIN")
    a(f"s_cmp_lg_u32 s{sW}, 0")
    a("s_cbranch_scc1 L_FIN")
    a(f"v_mov_b32 v34, s{sTAG}")
    a("s_mov_b64 exec, 1")
    a(f"buffer_store_dword v34, v{vZ}, {R('ws')}, 0 offen sc1")
    a("s_mov_b64 exec, -1")
    a("s_branch L_FIN")

def mlp_decode():
    a(f"s_lshl_b32 s62, s{sB}, 1")
    a(f"s_add_u32 s62, s62, s{sS}")
    a("s_sub_u32 s62, s62, 2")
    a("s_lshr_b32 s63, s62, 2")
    a("s_lshl_b32 s63, s63, 3")
    a(f"s_add_u32 s63, s63, s{sHKV}")
    a("s_and_b32 s62, s62, 3")

def w2_common():
    RB = 1024 // NS
    a(f"s_mul_i32 s60, s{sW}, {2*NTW}")
    for nt_ in range(NTW):
        tr_swz_addr(20+nt_, RB, 60, nt_, 16, 17)
    a(f"v_and_b32 v16, {MM-1}, v0")
    a(f"v_mul_u32_u24 v{vH1R}, {H1_STR}, v16")
    a(f"v_lshl_add_u32 v{vH1R}, v{vG}, 4, v{vH1R}")
    a(f"v_add_u32 v{vH1R}, {L_H1}, v{vH1R}")
    a("s_mov_b32 s94, 0xcccccccc"); a("s_mov_b32 s95, 0xcccccccc")
    a("s_mov_b32 s96, 0xf0f0f0f0"); a("s_mov_b32 s97, 0xf0f0f0f0")
    a("s_mov_b32 s98, 0xff00ff00"); a("s_mov_b32 s99, 0xff00ff00")
    a(f"v_mov_b32 v161, s{sTAG}")
    if AO:
        srd("b2"); srd("out")
        CW = 64 // NS; RS = CW*4 + 16; SH = 6 - LM
        a(f"s_mul_i32 s60, s{sW}, {MM*RS}")
        a(f"s_add_u32 s60, s60, {L_RL}")
        a(f"v_and_b32 v16, {MM-1}, v0")
        a(f"v_mul_u32_u24 v52, {RS}, v16")
        a(f"v_bfe_u32 v17, v0, {LM}, {3-LM}")
        a("v_lshl_add_u32 v52, v17, 6, v52")
        a(f"v_lshl_add_u32 v52, v{vG}, 4, v52")
        a("v_add_u32 v52, s60, v52")
        a(f"v_lshrrev_b32 v16, {SH}, v0")
        a(f"v_bfe_u32 v17, v0, 2, {SH-2}")
        a("v_and_b32 v18, 3, v0")
        a("v_lshl_add_u32 v17, v17, 3, v18")
        a(f"v_mul_u32_u24 v19, {RS}, v16")
        a("v_lshl_add_u32 v19, v17, 2, v19")
        a("v_add_u32 v19, s60, v19")
        a(f"v_mov_b32 v56, {C_ONE}")
        a(f"v_mov_b32 v57, {C_ZERO}")
        a("v_cmp_eq_u32 s[68:69], 3, v18")
        a("v_cmp_eq_u32 s[70:71], 2, v18")
        for j in range(3):
            a(f"v_add_u32 v{53+j}, {j*12}, v19")
            a(f"v_cndmask_b32 v{53+j}, v{53+j}, v56, s[68:69]")
        a("v_cndmask_b32 v55, v55, v57, s[70:71]")
        a("s_not_b64 s[68:69], s[68:69]")
        a("s_andn2_b64 s[70:71], s[68:69], s[70:71]")
        a(f"s_and_b32 s60, s62, {NS-1}")
        a(f"s_mul_i32 s60, s60, {1024//NS}")
        a(f"s_mul_i32 s72, s{sW}, {CW*2}")
        a("s_add_u32 s60, s60, s72")
        a("v_mul_u32_u24 v56, 3072, v16")
        a(f"v_and_b32 v57, {(1<<SH)-1}, v0")
        a("v_lshl_add_u32 v56, v57, 2, v56")
        a(f"s_lshr_b32 s72, s62, {LM-1}")
        a(f"s_mul_i32 s64, s72, {MM*3072}")
        a("s_add_u32 s64, s64, s60")
        a(f"s_add_u32 s64, s64, {WS_OACC}")
        a("v_lshl_add_u32 v57, v17, 1, s60")
        a("v_lshl_add_u32 v58, v16, 10, v57")
        a(f"v_mul_u32_u24 v59, {Y_STR}, v16")
        a(f"v_add3_u32 v59, v59, v57, v{vSC}")
        a(f"s_lshl_b32 s72, s72, {10+LM}")
        for j in range(3):
            a(f"buffer_load_ushort v{60+j}, v57, {R('b2')}, 0 offen offset:{j*6}")
    lds_wait4(F_W2, 16, sleep=1)
    for nt_ in range(NTW):
        for kk in range(2):
            for hh in range(2):
                r = vA2 + (nt_*2+kk)*4 + hh*2
                a(f"ds_read_b64_tr_b16 v[{r}:{r+1}], v{20+nt_} offset:{kk*32*RB + hh*4*RB}")
        if nt_ % 2 == 1: a("s_waitcnt lgkmcnt(0)")
    stamp(10)

def flags_poll():
    a("v_lshlrev_b32 v48, 7, v0")
    a(f"s_mov_b32 s58, {WS_FL}")
    a(f"s_mov_b32 s59, {WS_FL+8192}")
    Lf = a.newlabel("FL")
    a.label(Lf)
    a(f"buffer_load_dword v49, v48, {R('ws')}, s58 offen sc1")
    a(f"buffer_load_dword v50, v48, {R('ws')}, s59 offen sc1")
    budget()
    a("s_waitcnt vmcnt(0)")
    a(f"v_cmp_eq_u32 vcc, s{sTAG}, v49")
    a(f"v_cmp_eq_u32 s[56:57], s{sTAG}, v50")
    a("s_and_b64 vcc, vcc, s[56:57]")
    a("s_cmp_eq_u64 vcc, -1")
    a(f"s_cbranch_scc1 {Lf}_ok")
    a(f"s_sleep {SL_POLL}")
    a(f"s_branch {Lf}")
    a.label(f"{Lf}_ok")
    if SL_GO: a(f"s_sleep {SL_GO}")

def h_gather():
    Lh = a.newlabel("MH")
    a.label(Lh)
    for j in range(3):
        a(f"buffer_load_dwordx4 v[{24+j*4}:{27+j*4}], v{vL16}, {R('ws')}, s60 offen offset:{j*1024} sc1")
    budget()
    a("s_waitcnt vmcnt(2)")
    a("v_cmp_eq_f32 s[56:57], s61, v27")
    a("s_waitcnt vmcnt(1)")
    a("v_cmp_eq_f32 vcc, s61, v31")
    a("s_and_b64 s[56:57], s[56:57], vcc")
    a("s_waitcnt vmcnt(0)")
    a("v_cmp_eq_f32 vcc, s61, v35")
    a("s_and_b64 s[56:57], s[56:57], vcc")
    a("s_cmp_eq_u64 s[56:57], -1")
    a(f"s_cbranch_scc1 {Lh}_ok")
    a(f"s_sleep {SL_HR}")
    a(f"s_branch {Lh}")
    a.label(f"{Lh}_ok")
    stamp(5)
    src = [24, 25, 26, 28, 29, 30, 32, 33]
    for i in range(0, 8, 2):
        a(f"v_cvt_pk_bf16_f32 v{36+i//2}, v{src[i]}, v{src[i+1]}")
    for i in range(4):
        unpack(36+i, 24+2*i, 25+2*i)
    for i in range(0, 8, 2):
        a(f"v_pk_add_f32 v[{24+i}:{25+i}], v[{24+i}:{25+i}], v[{16+i}:{17+i}]")
    for i in range(0, 8, 2):
        a(f"v_cvt_pk_bf16_f32 v{44+i//2}, v{24+i}, v{25+i}")

a.label("L_K_NOTWO")
a(f"s_waitcnt vmcnt({1+FE1})")
set_flag(F_VK)
mlp_decode()
assert AO
a(f"s_cmp_ge_u32 s63, {NMLP}")
a("s_cbranch_scc1 L_FIN")
a.label("L_K_MLP")
srd("w1"); srd("b1")
src128(20, 3584, 16)
a("s_lshl_b32 s58, s63, 7")
a(f"s_lshl_b32 s60, s{sW}, 5")
a("s_add_u32 s60, s60, s58")
a(f"v_lshlrev_b32 v16, 3, v{vG}")
a(f"buffer_load_dwordx2 v[14:15], v16, {R('b1')}, s60 offen")
a(f"s_mul_i32 s59, s{sW}, {32*3584}")
a("s_add_u32 s58, s59, s58")
a(f"s_lshl_b32 s61, s{sW}, 12")
a(f"s_add_u32 s61, s61, {L_K}")
W1PRIO = int(opts.get("w1prio", 0))
for q in range(4):
    if (W1AFTER == 1 and q == 0) or (W1AFTER >= 2 and q == W1AFTER - 1):
        lds_wait4(F_V, 16, minval=9, sleep=2)
        if W1PRIO: a(f"s_setprio {W1PRIO}")
    a(f"s_add_u32 s60, s62, {q}")
    a("s_and_b32 s60, s60, 3")
    a(f"s_mul_i32 s59, s60, {128*3584}")
    a("s_add_u32 s59, s59, s58")
    a("s_lshl_b32 s60, s60, 14")
    a("s_add_u32 m0, s60, s61")
    dma(4, lambda i: 20 + (i & 1), "w1", 59, 8*3584, pol=MLPP)
stamp(4)
a(f"v_and_b32 v16, {MM-1}, v0")
a(f"v_mul_u32_u24 v{vYR}, {Y_STR}, v16")
a(f"v_lshl_add_u32 v{vYR}, v{vG}, 4, v{vYR}")
a(f"v_add_u32 v{vYR}, {L_Y}, v{vYR}")
a(f"v_mul_u32_u24 v{vH1W}, {H1_STR}, v16")
a(f"v_lshl_add_u32 v{vH1W}, v{vG}, 3, v{vH1W}")
a(f"s_lshl_b32 s60, s{sW}, 5")
a(f"s_add_u32 s60, s60, {L_H1}")
a(f"v_add_u32 v{vH1W}, s60, v{vH1W}")
a(f"v_lshlrev_b32 v{vABR}, 4, v16")
a(f"v_add_u32 v{vABR}, {L_AB}, v{vABR}")
k0 = 0.7978845608028654; k1 = 0.044715; l2e = 1.4426950408889634
a(f"s_mov_b32 s67, {f2u(-2*k0*k1*l2e):#x}")
a(f"v_mov_b32 v{vGC}, {f2u(-2*k0*l2e):#x}")
a(f"s_lshl_b32 s60, s{sW}, 1")
tr_swz_addr(13, 128, 60, 0, 16, 17, base_imm=L_K)
w2_common()
a("v_mov_b32 v16, 2")
for i in range(4): a(f"v_mov_b32 v{24+i}, 0x3f803f80")
a("s_waitcnt vmcnt(0)")
if int(opts.get("dbgw", 0)): stamp(2)
set_flag(F_W, 16)
unpack(14, vB1, vB1+1); unpack(15, vB1+2, vB1+3)
lds_wait4(F_W, 16, minval=2)
def w1rd(kk):
    for hh in range(2):
        a(f"ds_read_b64_tr_b16 v[{vA1+kk*4+hh*2}:{vA1+kk*4+hh*2+1}], v13 offset:{kk*4096+hh*512}")
for kk in range(7): w1rd(kk)
for kk in range(16):
    a(f"s_waitcnt lgkmcnt({12 if kk < 10 else (15-kk)*2})")
    c = "0" if kk == 0 else f"v[{vCS}:{vCS+3}]"
    a(f"v_mfma_f32_16x16x32_bf16 v[{vCS}:{vCS+3}], v[{vA1+kk*4}:{vA1+kk*4+3}], v[24:27], {c}")
    if kk + 7 < 16: w1rd(kk+7)
if GD:
    m0_, m1_ = (("s[94:95]", "s[96:97]") if MM == 2 else ("s[96:97]", "s[98:99]"))
    for base in (vB1, vCS):
        a(f"v_cndmask_b32 v29, v{base}, v{base+1}, {m0_}")
        a(f"v_cndmask_b32 v30, v{base+2}, v{base+3}, {m0_}")
        a(f"v_cndmask_b32 v{base}, v29, v30, {m1_}")
    a(f"v_bfe_u32 v29, v0, {LM}, 2")
    a(f"v_lshl_add_u32 v{vH1W}, v29, 1, v{vH1W}")
stamp(11)
a("s_setprio 2")
if BAR:
    a("s_barrier")
else:
    Ly = a.newlabel("WY")
    a.label(Ly)
    a(f"ds_read_b64 v[16:17], v{vSC} offset:{F_Y-SC}")
    budget()
    a("s_waitcnt lgkmcnt(0)")
    a("v_and_b32 v16, v16, v17")
    a("v_readfirstlane_b32 s54, v16")
    a("s_cmp_eq_u32 s54, 0")
    a(f"s_cbranch_scc1 {Ly}")
stamp(5)
if E3F == 1 and not AO:
    a(f"s_cmp_lg_u32 s{sW}, 0")
    a("s_cbranch_scc1 L_E3F")
    a("s_mov_b64 exec, 1")
    a(f"buffer_store_dword v161, v{vZ}, {R('ws')}, s65 offen sc1")
    a("s_mov_b64 exec, -1")
    a.label("L_E3F")
vB = 164
Bq = [200+4*i for i in range(8)] + [164+4*i for i in range(7)] + [24]
for k2 in range(15):
    a(f"ds_read_b128 v[{Bq[k2]}:{Bq[k2]+3}], v{vYR} offset:{k2*64}")
for k2 in range(16):
    if k2 == 1:
        a(f"ds_read_b128 v[{Bq[15]}:{Bq[15]+3}], v{vYR} offset:{15*64}")
    a(f"s_waitcnt lgkmcnt({14 if k2 == 0 else 15-k2})")
    c = "0" if k2 == 0 else "v[16:19]"
    a(f"v_mfma_f32_16x16x32_bf16 v[16:19], v[{vA1+k2*4}:{vA1+k2*4+3}], v[{Bq[k2]}:{Bq[k2]+3}], {c}")
stamp(6)
if E3F == 2 and not AO:
    a(f"s_cmp_lg_u32 s{sW}, 0")
    a("s_cbranch_scc1 L_E3F")
    a("s_mov_b64 exec, 1")
    a(f"buffer_store_dword v161, v{vZ}, {R('ws')}, s65 offen sc1")
    a("s_mov_b64 exec, -1")
    a.label("L_E3F")
def sel4(dst, src):
    m0_, m1_ = (("s[94:95]", "s[96:97]") if MM == 2 else ("s[96:97]", "s[98:99]"))
    a(f"v_cndmask_b32 v29, v{src}, v{src+1}, {m0_}")
    a(f"v_cndmask_b32 v30, v{src+2}, v{src+3}, {m0_}")
    a(f"v_cndmask_b32 v{dst}, v29, v30, {m1_}")
a(f"ds_read_b96 v[20:22], v{vABR}")
if GD: sel4(28, 16)
a("s_waitcnt lgkmcnt(0)")
a("v_cmp_eq_u32 vcc, 1, v22")
a("s_cmp_eq_u64 vcc, -1")
a("s_cbranch_scc1 L_AB_OK")
Lab = a.newlabel("AB")
a.label(Lab)
a(f"ds_read_b96 v[20:22], v{vABR}")
budget()
a("s_waitcnt lgkmcnt(0)")
a("v_cmp_eq_u32 vcc, 1, v22")
a("s_cmp_eq_u64 vcc, -1")
a(f"s_cbranch_scc0 {Lab}")
a.label("L_AB_OK")
if GD:
    a("v_mul_f32 v16, v20, v28")
    a(f"v_fmac_f32 v16, v21, v{vCS}")
    rnd1(16, 20)
    a(f"v_add_f32 v16, v16, v{vB1}")
    rnd1(16, 20)
    a("v_mul_f32 v20, v16, v16")
    a(f"v_fma_f32 v20, v20, s67, v{vGC}")
    a("v_mul_f32 v20, v20, v16")
    a("v_exp_f32 v20, v20")
    a("v_add_f32 v20, 1.0, v20")
    a("v_rcp_f32 v20, v20")
    a("v_mul_f32 v16, v16, v20")
    a("v_cvt_pk_bf16_f32 v16, v16, v16")
    a(f"ds_write_b16 v{vH1W}, v16")
else:
    for i in range(4):
        a(f"v_mul_f32 v{16+i}, v20, v{16+i}")
    for i in range(4):
        a(f"v_fmac_f32 v{16+i}, v21, v{vCS+i}")
    rnd2(16, 17, 20); rnd2(18, 19, 21)
    for i in range(4):
        a(f"v_add_f32 v{16+i}, v{16+i}, v{vB1+i}")
    rnd2(16, 17, 20); rnd2(18, 19, 21)
    for i in range(4):
        a(f"v_mul_f32 v{20+i}, v{16+i}, v{16+i}")
    for i in range(4):
        a(f"v_fma_f32 v{20+i}, v{20+i}, s67, v{vGC}")
    for i in range(4):
        a(f"v_mul_f32 v{20+i}, v{20+i}, v{16+i}")
    for i in range(4):
        a(f"v_exp_f32 v{20+i}, v{20+i}")
    for i in range(4):
        a(f"v_add_f32 v{20+i}, 1.0, v{20+i}")
    for i in range(4):
        a(f"v_rcp_f32 v{20+i}, v{20+i}")
    for i in range(4):
        a(f"v_mul_f32 v{16+i}, v{16+i}, v{20+i}")
    a("v_cvt_pk_bf16_f32 v16, v16, v17")
    a("v_cvt_pk_bf16_f32 v17, v18, v19")
    a(f"ds_write_b64 v{vH1W}, v[16:17]")
if BAR: a("s_waitcnt lgkmcnt(0)")
else: set_flag(F_D)
if E3F == 3 and not AO:
    a(f"s_cmp_lg_u32 s{sW}, 0")
    a("s_cbranch_scc1 L_E3F")
    a("s_mov_b64 exec, 1")
    a(f"buffer_store_dword v161, v{vZ}, {R('ws')}, s65 offen sc1")
    a("s_mov_b64 exec, -1")
    a.label("L_E3F")
stamp(9)
a("s_branch L_MLP_W2")
a.label("L_MLP_W2B")
if BAR: a("s_barrier")
a.label("L_MLP_W2")
if BAR: a("s_barrier")
else: lds_wait4(F_D, 20)
a(f"ds_read_b128 v[16:19], v{vH1R}")
a(f"ds_read_b128 v[20:23], v{vH1R} offset:64")
vO = 24
for kk in range(2):
    a(f"s_waitcnt lgkmcnt({1-kk})")
    for nt_ in range(NTW):
        r = vA2 + (nt_*2+kk)*4
        c = "0" if kk == 0 else f"v[{vO+nt_*4}:{vO+nt_*4+3}]"
        a(f"v_mfma_f32_16x16x32_bf16 v[{vO+nt_*4}:{vO+nt_*4+3}], v[{r}:{r+3}], v[{16+kk*4}:{19+kk*4}], {c}")
if AO:
    if MM == 2:
        for i in range(4):
            a(f"v_cndmask_b32 v{40+i}, v{vO+i}, v{vO+4+i}, s[94:95]")
            a(f"v_cndmask_b32 v{44+i}, v{vO+8+i}, v{vO+12+i}, s[94:95]")
        for i in range(4):
            a(f"v_cndmask_b32 v{40+i}, v{40+i}, v{44+i}, s[96:97]")
    else:
        for i in range(4):
            a(f"v_cndmask_b32 v{40+i}, v{vO+i}, v{vO+4+i}, s[96:97]")
    a("ds_write_b128 v52, v[40:43]")
    for j in range(3):
        a(f"ds_read_b32 v{44+j}, v{53+j}")
    for j in range(3):
        a(f"s_waitcnt lgkmcnt({2-j})")
        a(f"v_mov_b32 v{48+j}, v{44+j}")
        a(f"buffer_atomic_add_f32 v{48+j}, v56, {R('ws')}, s64 offen offset:{j*1024} sc0")
    stamp(7)
    for j in range(3):
        a(f"ds_read_u16 v{40+j}, v59 offset:{L_Y-SC + j*6}")
    a("s_waitcnt vmcnt(3)")
    for j in range(3):
        a(f"v_lshlrev_b32 v{60+j}, 16, v{60+j}")
    a(f"s_mov_b32 s60, {f2u(float(NMLP-1)):#x}")
    a("s_waitcnt lgkmcnt(0)")
    for j in range(3):
        a(f"v_lshlrev_b32 v{40+j}, 16, v{40+j}")
    for j in range(3):
        a(f"s_waitcnt vmcnt({2 if j == 0 else 2})")
        a(f"v_mov_b32_dpp v24, v{48+j} quad_perm:[3,3,3,3] {DPPM}")
        a(f"v_add_f32 v{48+j}, v{48+j}, v{44+j}")
        a("v_cmp_eq_f32 vcc, s60, v24")
        rnd1(48+j, 25)
        a(f"v_add_f32 v{48+j}, v{48+j}, v{60+j}")
        rnd1(48+j, 25)
        a(f"v_add_f32 v{48+j}, v{48+j}, v{40+j}")
        a(f"v_cvt_pk_bf16_f32 v{48+j}, v{48+j}, v{48+j}")
        a(f"s_and_b64 vcc, vcc, {'s[68:69]' if j < 2 else 's[70:71]'}")
        a(f"v_cndmask_b32 v{26+j}, v{vBIG}, v58, vcc")
        a(f"buffer_store_short v{48+j}, v{26+j}, {R('out')}, s72 offen offset:{j*6}")
    stamp(1)
    a(f"s_cmp_lg_u32 s2, 16")
    a("s_cbranch_scc1 L_FIN")
    a(f"s_cmp_lg_u32 s{sW}, 0")
    a("s_cbranch_scc1 L_FIN")
    a("s_mov_b64 exec, 1")
    a(f"buffer_store_dword v161, v{vZ}, {R('ws')}, 0 offen sc1")
    a("s_mov_b64 exec, -1")
    a("s_branch L_FIN")
else:
    if MM == 2:
        for nt_ in range(4):
            a(f"v_cndmask_b32 v{40+nt_*2}, v{vO+nt_*4}, v{vO+nt_*4+2}, s[94:95]")
            a(f"v_cndmask_b32 v{41+nt_*2}, v{vO+nt_*4+1}, v{vO+nt_*4+3}, s[94:95]")
        for q in range(2):
            a(f"v_cndmask_b32 v{40+q*4}, v{40+q*4}, v{42+q*4}, s[96:97]")
            a(f"v_cndmask_b32 v{41+q*4}, v{41+q*4}, v{43+q*4}, s[96:97]")
        a("v_cndmask_b32 v160, v40, v44, s[98:99]")
        a("v_cndmask_b32 v162, v41, v45, s[98:99]")
    else:
        for nt_ in range(2):
            a(f"v_cndmask_b32 v{40+nt_*2}, v{vO+nt_*4}, v{vO+nt_*4+2}, s[96:97]")
            a(f"v_cndmask_b32 v{41+nt_*2}, v{vO+nt_*4+1}, v{vO+nt_*4+3}, s[96:97]")
        a("v_cndmask_b32 v160, v40, v42, s[98:99]")
        a("v_cndmask_b32 v162, v41, v43, s[98:99]")
    a(f"buffer_store_dwordx4 v[160:163], v{vSTO}, {R('ws')}, s64 offen sc1")

a.label("L_V_NOTWO")
set_flag(F_V, 14)
mlp_decode()
a(f"s_cmp_ge_u32 s63, {NMLP}")
a("s_cbranch_scc1 L_FIN")
a.label("L_V_MLP")
srd("w2")
a(f"s_lshr_b32 s60, s62, {LM-1}")
a(f"s_lshl_b32 s60, s60, {LM}")
a(f"s_add_u32 s66, s60, s{sAW}")
a("s_and_b32 s66, s66, 7")
a("s_lshl_b32 s60, s66, 10")
a(f"buffer_load_dwordx4 v[{vX}:{vX+3}], v{vL16}, {R('x')}, s60 offen")
if MM == 2:
    a("s_lshl_b32 s58, s63, 16")
    a(f"s_lshl_b32 s61, s{sAW}, 12")
    a("s_add_u32 s58, s58, s61")
    a(f"s_lshr_b32 s60, s{sAW}, 1")
    a("s_lshl_b32 s60, s60, 3")
    for i in range(4):
        a(f"v_xor_b32 v{20+i}, {i*2}, v0")
        a(f"v_xor_b32 v{20+i}, s60, v{20+i}")
        a(f"v_lshlrev_b32 v{20+i}, 4, v{20+i}")
    lds_wait4(F_V, 16, minval=9)
    for q in range(4):
        a(f"s_add_u32 s60, s62, {q}")
        a("s_and_b32 s60, s60, 3")
        a("s_lshl_b32 s60, s60, 14")
        a("s_add_u32 s59, s60, s58")
        a("s_add_u32 m0, s60, s61")
        dma(4, lambda i: 20 + i, "w2", 59, 1024, pol=MLPP)
else:
    a("s_lshl_b32 s58, s63, 16")
    a(f"s_lshl_b32 s61, s{sAW}, 14")
    a("s_add_u32 s58, s58, s61")
    a("s_and_b32 s60, s62, 1")
    a("s_lshl_b32 s60, s60, 9")
    a("s_add_u32 s58, s58, s60")
    a(f"s_lshl_b32 s61, s{sAW}, 13")
    a("v_lshrrev_b32 v16, 5, v0")
    a("v_and_b32 v17, 31, v0")
    for i in range(2):
        a(f"v_lshlrev_b32 v{22+i}, 1, v16")
        a(f"v_xor_b32 v{22+i}, {i*4}, v{22+i}")
        a(f"v_xor_b32 v{22+i}, v17, v{22+i}")
        a(f"v_lshlrev_b32 v{22+i}, 4, v{22+i}")
        a(f"v_lshl_add_u32 v{22+i}, v16, 10, v{22+i}")
    lds_wait4(F_V, 16, minval=9)
    for q in range(2):
        a("s_lshr_b32 s60, s62, 1")
        a(f"s_add_u32 s60, s60, {q}")
        a("s_and_b32 s60, s60, 1")
        a("s_lshl_b32 s59, s60, 7")
        a("v_xor_b32 v20, s59, v22")
        a("v_xor_b32 v21, s59, v23")
        a("s_lshl_b32 s59, s60, 13")
        a("s_add_u32 s59, s59, s58")
        a("s_lshl_b32 s60, s60, 12")
        a("s_add_u32 m0, s60, s61")
        dma(4, lambda i: 20 + (i & 1), "w2", 59, 2048, pol=MLPP)
a("s_waitcnt vmcnt(0)")
set_flag(F_W2)
w2_common()
if MM == 2:
    a(f"s_cmp_ge_u32 s{sAW}, 2")
    a("s_cbranch_scc1 L_MLP_W2B")
a("s_setprio 3")
a("s_mul_i32 s60, s66, 3072")
a(f"s_add_u32 s60, s60, {WS_HACC}")
a("s_mov_b32 s61, 0x42000000")
for i in range(4):
    unpack(vX+i, 16+2*i, 17+2*i)
a(f"s_mul_i32 s58, s{sAW}, {Y_STR}")
a(f"s_add_u32 s58, s58, {L_Y}")
a(f"v_add_u32 v13, s58, v{vL16}")
a(f"s_lshl_b32 s58, s{sAW}, 4")
a(f"v_add_u32 v14, s58, v{vSC}")
if P1M:
    a(f"s_cmp_lg_u32 s{sAW}, 0")
    a("s_cbranch_scc1 L_V_GOW")
    flags_poll()
    a(f"ds_write_b32 v{vSC}, v{vONE} offset:{F_GO-SC}")
    a("s_branch L_V_GO")
    a.label("L_V_GOW")
    lds_wait1(F_GO, 48)
    a.label("L_V_GO")
else:
    flags_poll()
stamp(11)
h_gather()
a("ds_write_b128 v13, v[44:47]")
if BAR:
    a("s_waitcnt lgkmcnt(0)")
    a("s_barrier")
else:
    set_flag(F_Y)
for i in range(4):
    unpack(44+i, 24+2*i, 25+2*i)
row_stats(24, 32)
a("v_mov_b32 v34, v32")
a("v_mov_b32 v35, v33")
rnd2(34, 35, 36)
sd_of(35, 36)
rcp_nr(36, 35, 37)
a("v_sub_f32 v32, v32, v34")
a("v_mul_f32 v32, v32, v36")
a("v_mul_f32 v33, v33, v36")
a("v_mul_f32 v33, v33, v36")
rnd2(32, 33, 37)
sd_of(33, 37)
rcp_nr(37, 33, 38)
a("v_mul_f32 v40, v36, v37")
a("v_fma_f32 v41, v32, v35, v34")
a("v_mul_f32 v41, -v41, v40")
a("v_mov_b32 v42, 1")
a(f"ds_write_b96 v14, v[40:42] offset:{L_AB-SC}")
stamp(6)
a("s_branch L_MLP_W2")

a.label("L_FIN")
if STAMPS:
    stamp(8)
    if CAL:
        cw, cs = map(int, CAL.split(":"))
        a(f"s_cmp_lg_u32 s2, {CALWG}")
        a("s_cbranch_scc1 L_END")
        a(f"s_cmp_lg_u32 s{sW}, {cw}")
        a("s_cbranch_scc1 L_END")
        a(f"v_readfirstlane_b32 s60, v{240+cs}")
        a("v_readfirstlane_b32 s61, v240")
        a("s_sub_u32 s60, s60, s61")
        a("s_lshl_b32 s60, s60, 1")
        a("s_add_u32 s60, s60, 4000")
        a.label("L_CAL")
        a("s_memrealtime s[90:91]")
        a("s_waitcnt lgkmcnt(0)")
        a("s_sub_u32 s62, s90, s61")
        a("s_cmp_lt_u32 s62, s60")
        a("s_cbranch_scc1 L_CAL")
        a("s_branch L_END")
    a("s_lshl_b32 s60, s2, 3")
    a(f"s_add_u32 s60, s60, s{sW}")
    a("s_mul_i32 s60, s60, 48")
    a(f"s_add_u32 s60, s60, {WS_STAMP}")
    a("s_mov_b64 exec, 1")
    for i in range(3):
        a(f"buffer_store_dwordx4 v[{240+4*i}:{243+4*i}], v{vZ}, {R('ws')}, s60 offen offset:{16*i}")
    if DBGST:
        a("v_not_b32 v252, v240")
        for i in range(13):
            a(f"global_atomic_umax v{vZ}, v{240+i}, s[86:87] offset:{4*i}")
a.label("L_END")
a("s_endpgm")

hdr = open("sequential_preLN__sliding_block_cached__mixer_channel_mlp__decode.s.ref").read().split("; Override launch")[0]
txt = a.text().replace("CODE_KB", "(L_END-L_VW)/1024")
open(out, "w").write(wrap(txt, 256, 512, LDS_BYTES, vgpr=256, header_comment=hdr))
```

```python
import sys, struct
from asmgen import *

out = sys.argv[1]
opts = dict(kv.split("=") for kv in sys.argv[2:])
STAMPS = int(opts.get("stamps", 0))
DBGST = int(opts.get("dbgst", 0))
if DBGST: STAMPS = 1
CAL = opts.get("cal")
CALWG = int(opts.get("calwg", 0))
if CAL: STAMPS = 1
NT = "nt" if int(opts.get("nt", 1)) else ""
SL_GO = int(opts.get("sl_go", 0))
SL_POLL = int(opts.get("sl_poll", 2))
SL_RED = int(opts.get("sl_red", 4))
SL_Q = int(opts.get("sl_q", 10))
FLEARLY = int(opts.get("flearly", 1))
WOFILL = int(opts.get("wofill", 0))
SL_E1 = int(opts.get("sl_e1", 0))
QACK = int(opts.get("qack", 1))
THR = int(opts.get("thr", 4))
FQ = int(opts.get("fq", 0))
FE1 = int(opts.get("fe1", 1))
SL_F1 = int(opts.get("sl_f1", 1))
PREW = int(opts.get("prew", 0))
F1WAIT = int(opts.get("f1wait", 8))
BAR = 1
P1M = int(opts.get("p1m", 1))
GD = int(opts.get("gd", 1))
GIE = int(opts.get("gie", 0))
AO = int(opts.get("ao", 1))
SL_HR = int(opts.get("sl_hr", 4))
SL_QR = int(opts.get("sl_qr", 0))
SL_RR = int(opts.get("sl_rr", 0))
P1R = int(opts.get("p1r", 1))
MM = int(opts.get("mm", 2))
NS = MM // 2
LM = {2: 1, 4: 2}[MM]
NTW = 4 // NS
FLD = opts.get("fld", "sc1").replace("+", " ")
if FLD == "none": FLD = ""
NVK = int(opts.get("nvk", 4))
E1F = int(opts.get("e1f", 2))
E3F = int(opts.get("e3f", 2))
SL_E3 = int(opts.get("sl_e3", 0))
SL_P1 = int(opts.get("sl_p1", 2))
SL_Q2 = int(opts.get("sl_q2", 14))
NK1 = int(opts.get("nk1", 6))
QFL = int(opts.get("qfl", 1))
PFP = opts.get("pfp", "nt")
if PFP == "none": PFP = ""
MLPP = opts.get("mlpp", "nt")
if MLPP == "none": MLPP = ""

def f2u(x): return struct.unpack("<I", struct.pack("<f", x))[0]

WS_ZF = 1024
WS_ST = 4096
WS_HACC = 32768
WS_FL = 65536
WS_OF = 0x380000
WS_HF = 0x28000
WS_RF = 0x340000
WS_QP = 0x40000
WS_OP = 0x140000
WS_OUTP = 0x240000
WS_FAST = 0x400000
WS_OACC = 0x38000
WS_XC = 0x30000
WS_STAMP = 128 << 20
NMLP = 28
HPUB_ID = ((6*4+2)*8+4)
SL_W = int(opts.get("sl_w", 0))
SL_QW = int(opts.get("sl_qw", 8))
PF = int(opts.get("pf", 1))
PFPRIO = int(opts.get("pfprio", 0))
SL_WO = int(opts.get("sl_wo", 0))
NQ = int(opts.get("nq", 8))
NV1 = int(opts.get("nv1", 6))
CODEPF = int(opts.get("codepf", 1))
W1AFTER = int(opts.get("w1after", 1))

L_V = 0
L_K = 65536
L_WQ = 131072
L_QL = L_WQ
L_P = L_WQ + 1024; P_STR = 528
L_OL = L_WQ + 3200; OL_STR = 272
L_H1 = L_WQ + 5376; H1_STR = 144
L_RL = L_WQ + 6528; RL_STR = 144
SC = 147456
F_TAG = SC + 0
F_TRDY = SC + 4
F_GO = SC + 8
F_CF = SC + 12
F_LN1 = SC + 16
F_Q = SC + 32
F_A = SC + 48
F_B = SC + 64
F_V = SC + 80
F_W = SC + 96
F_C = SC + 112
F_D = SC + 128
F_W2 = SC + 144
F_KI = SC + 304
F_QGO = SC + 168
F_Y = SC + 512
F_WR = SC + 528
F_GI = SC + 544
F_VK = SC + 560
C_ONE = SC + 160
C_ZERO = SC + 164
L_AB = SC + 176
L_MX = SC + 320
L_SUM = SC + 384
L_CF = L_WQ + 12288
L_Y = SC + 640; Y_STR = 1040
LDS_BYTES = SC + 640 + 8*Y_STR
assert LDS_BYTES <= 163840

sW, sHKV, sB, sS, sAW = 3, 4, 5, 6, 7
SRD = dict(ws=8, k=12, v=16, x=20, wq=24, wo=28, w1=32, w2=36, b1=40, b2=44, out=48)
sTAG, sBUD = 52, 53
PTR = dict(x=64, k=66, v=68, wq=70, wo=72, bx=74, w1=76, b1=78, w2=80, b2=82, out=84, dbg=86, ws=88)
LOG2E = 0x3FB8AA3B
SCALE = 0x3DB504F3
DPPM = "row_mask:0xf bank_mask:0xf"

a = Asm()

def srd(name):
    d = SRD[name]; p = PTR[name]
    a(f"s_mov_b32 s{d}, s{p}")
    a(f"s_and_b32 s{d+1}, s{p+1}, 0xffff")
    a(f"s_mov_b32 s{d+2}, {SIZES[name]}")
    a(f"s_mov_b32 s{d+3}, 0x20000")
def R(name): d = SRD[name]; return f"s[{d}:{d+3}]"

def stamp(i):
    if not STAMPS: return
    if STAMPS == 2 and i != 8: return
    a("s_memrealtime s[90:91]")
    a("s_waitcnt lgkmcnt(0)")
    a(f"v_mov_b32 v{240+i}, s90")

def budget():
    a(f"s_sub_u32 s{sBUD}, s{sBUD}, 1")
    a("s_cbranch_scc1 L_END")

def set_flag(flag, val=None):
    a(f"ds_write_b32 v{vFL}, v{vONE if val is None else val} offset:{flag-SC}")

def lds_wait4(flag, vt, sleep=0, minval=None):
    L = a.newlabel("W4")
    a.label(L)
    a(f"ds_read_b128 v[{vt}:{vt+3}], v{vSC} offset:{flag-SC}")
    budget()
    a("s_waitcnt lgkmcnt(0)")
    a(f"v_min3_u32 v{vt}, v{vt}, v{vt+1}, v{vt+2}")
    a(f"v_min_u32 v{vt}, v{vt}, v{vt+3}")
    a(f"v_readfirstlane_b32 s54, v{vt}")
    if sleep: a(f"s_sleep {sleep}")
    a(f"s_cmp_lt_u32 s54, {1 if minval is None else minval}")
    a(f"s_cbranch_scc1 {L}")

def lds_wait1(flag, vt, sleep=0):
    L = a.newlabel("W1")
    a.label(L)
    a(f"ds_read_b32 v{vt}, v{vSC} offset:{flag-SC}")
    budget()
    a("s_waitcnt lgkmcnt(0)")
    a(f"v_readfirstlane_b32 s54, v{vt}")
    if sleep: a(f"s_sleep {sleep}")
    a("s_cmp_eq_u32 s54, 0")
    a(f"s_cbranch_scc1 {L}")

def rnd1(v, t):
    a(f"v_cvt_pk_bf16_f32 v{t}, v{v}, v{v}")
    a(f"v_lshlrev_b32 v{v}, 16, v{t}")
def rnd2(v0, v1, t):
    a(f"v_cvt_pk_bf16_f32 v{t}, v{v0}, v{v1}")
    a(f"v_lshlrev_b32 v{v0}, 16, v{t}")
    a(f"v_and_b32 v{v1}, 0xffff0000, v{t}")
def unpack(src, lo, hi):
    a(f"v_lshlrev_b32 v{lo}, 16, v{src}")
    a(f"v_and_b32 v{hi}, 0xffff0000, v{src}")

def wave_sum2(va, vb, sa, sb):
    for mod in ("quad_perm:[1,0,3,2]", "quad_perm:[2,3,0,1]", "row_half_mirror", "row_mirror"):
        a(f"v_add_f32_dpp v{va}, v{va}, v{va} {mod} {DPPM}")
        a(f"v_add_f32_dpp v{vb}, v{vb}, v{vb} {mod} {DPPM}")
    a(f"v_add_f32_dpp v{va}, v{va}, v{va} row_bcast:15 row_mask:0xa bank_mask:0xf")
    a(f"v_add_f32_dpp v{vb}, v{vb}, v{vb} row_bcast:15 row_mask:0xa bank_mask:0xf")
    a(f"v_add_f32_dpp v{va}, v{va}, v{va} row_bcast:31 row_mask:0xc bank_mask:0xf")
    a(f"v_add_f32_dpp v{vb}, v{vb}, v{vb} row_bcast:31 row_mask:0xc bank_mask:0xf")
    a(f"v_readlane_b32 s{sa}, v{va}, 63")
    a(f"v_readlane_b32 s{sb}, v{vb}, 63")

def row_stats(e, t, sg=55):
    a(f"v_readfirstlane_b32 s{sg}, v{e}")
    a(f"v_mov_b32 v{t+10}, s{sg}")
    a(f"v_mov_b32 v{t+11}, s{sg}")
    for i in range(0, 8, 2):
        a(f"v_pk_add_f32 v[{t+i}:{t+i+1}], v[{e+i}:{e+i+1}], v[{t+10}:{t+11}] neg_lo:[0,1] neg_hi:[0,1]")
    a(f"v_pk_add_f32 v[{t+8}:{t+9}], v[{t}:{t+1}], v[{t+2}:{t+3}]")
    a(f"v_pk_mul_f32 v[{t+10}:{t+11}], v[{t}:{t+1}], v[{t}:{t+1}]")
    a(f"v_pk_add_f32 v[{t}:{t+1}], v[{t+4}:{t+5}], v[{t+6}:{t+7}]")
    for i in (2, 4, 6):
        a(f"v_pk_fma_f32 v[{t+10}:{t+11}], v[{t+i}:{t+i+1}], v[{t+i}:{t+i+1}], v[{t+10}:{t+11}]")
    a(f"v_pk_add_f32 v[{t+8}:{t+9}], v[{t+8}:{t+9}], v[{t}:{t+1}]")
    a(f"v_add_f32 v{t+10}, v{t+10}, v{t+11}")
    a(f"v_add_f32 v{t+8}, v{t+8}, v{t+9}")
    wave_sum2(t+8, t+10, sg+1, sg+2)
    a(f"v_mov_b32 v{t+2}, 0x3b000000")
    a(f"v_mul_f32 v{t}, s{sg+1}, v{t+2}")
    a(f"v_mul_f32 v{t+1}, s{sg+2}, v{t+2}")
    a(f"v_fma_f32 v{t+1}, -v{t}, v{t}, v{t+1}")
    a(f"v_max_f32 v{t+1}, 0, v{t+1}")
    a(f"v_add_f32 v{t}, s{sg}, v{t}")

def sd_of(v, t):
    a(f"v_add_f32 v{v}, 0x3727c5ac, v{v}")
    rnd1(v, t)
    a(f"v_sqrt_f32 v{v}, v{v}")
    rnd1(v, t)

def rcp_nr(dst, src, t):
    a(f"v_rcp_f32 v{dst}, v{src}")
    a(f"v_fma_f32 v{t}, -v{src}, v{dst}, 1.0")
    a(f"v_fma_f32 v{dst}, v{t}, v{dst}, v{dst}")

def layernorm(e, t, last_pack):
    row_stats(e, t)
    rnd2(t, t+1, t+2)
    sd_of(t+1, t+2)
    rcp_nr(t+2, t+1, t+3)
    for i in range(8):
        a(f"v_sub_f32 v{e+i}, v{e+i}, v{t}")
    for i in range(0, 8, 2):
        rnd2(e+i, e+i+1, t+4+i//2)
    for i in range(8):
        a(f"v_mul_f32 v{t+4+i}, v{e+i}, v{t+2}")
    for i in range(8):
        a(f"v_fma_f32 v{e+i}, -v{t+4+i}, v{t+1}, v{e+i}")
    for i in range(8):
        a(f"v_fma_f32 v{e+i}, v{e+i}, v{t+2}, v{t+4+i}")
    for i in range(0, 8, 2):
        a(f"v_cvt_pk_bf16_f32 v{last_pack+i//2}, v{e+i}, v{e+i+1}")

def head_reduce(v, t, op):
    a(f"v_{op}_f32_dpp v{v}, v{v}, v{v} row_ror:4 {DPPM}")
    a(f"v_{op}_f32_dpp v{v}, v{v}, v{v} row_ror:8 {DPPM}")
    a(f"v_mov_b32 v{t}, v{v}")
    a(f"v_permlane16_swap_b32 v{v}, v{t}")
    a(f"v_{op}_f32 v{v}, v{v}, v{t}")
    a(f"v_mov_b32 v{t}, v{v}")
    a(f"v_permlane32_swap_b32 v{v}, v{t}")
    a(f"v_{op}_f32 v{v}, v{v}, v{t}")

def trA_addr(v, rowbytes, t):
    a(f"v_bfe_u32 v{v}, v0, 2, 2")
    a(f"v_lshl_add_u32 v{v}, v{vG}, 3, v{v}")
    a(f"v_mul_u32_u24 v{v}, {rowbytes}, v{v}")
    a(f"v_and_b32 v{t}, 3, v0")
    a(f"v_lshl_add_u32 v{v}, v{t}, 3, v{v}")
def B_addr(v, base, stride, t):
    a(f"v_and_b32 v{t}, 7, v0")
    a(f"v_mul_u32_u24 v{v}, {stride}, v{t}")
    a(f"v_lshl_add_u32 v{v}, v{vG}, 4, v{v}")
    a(f"v_add_u32 v{v}, {base}, v{v}")

def zflag_wait(vt):
    L = a.newlabel("ZF")
    a(f"v_and_b32 v{vt}, 7, v0")
    a(f"v_lshlrev_b32 v{vt}, 7, v{vt}")
    a(f"s_mov_b32 s60, {WS_ZF}")
    a.label(L)
    a(f"buffer_load_dword v{vt+1}, v{vt}, {R('ws')}, s60 offen sc1")
    budget()
    a("s_waitcnt vmcnt(0)")
    a(f"v_cmp_eq_u32 vcc, s{sTAG}, v{vt+1}")
    a("s_cmp_eq_u64 vcc, -1")
    a(f"s_cbranch_scc0 {L}")

def masked_gather(n, load, tags, consume, sleep):
    L = a.newlabel("MG")
    a(f"s_mov_b32 s62, {(1 << n) - 1}")
    a.label(L)
    for i in range(n):
        a(f"s_bitcmp1_b32 s62, {i}")
        a(f"s_cbranch_scc0 {L}_l{i}")
        load(i)
        a.label(f"{L}_l{i}")
    budget()
    a("s_waitcnt vmcnt(0)")
    for i in range(n):
        a(f"s_bitcmp1_b32 s62, {i}")
        a(f"s_cbranch_scc0 {L}_c{i}")
        t = tags(i)
        a(f"v_cmp_eq_u32 vcc, s{sTAG}, v{t[0]}")
        if len(t) > 1:
            a(f"v_cmp_eq_u32 s[56:57], s{sTAG}, v{t[1]}")
            a("s_and_b64 vcc, vcc, s[56:57]")
        a("s_cmp_eq_u64 vcc, -1")
        a(f"s_cbranch_scc0 {L}_c{i}")
        consume(i)
        a(f"s_bitset0_b32 s62, {i}")
        a.label(f"{L}_c{i}")
    a("s_cmp_eq_u32 s62, 0")
    a(f"s_cbranch_scc1 {L}_ok")
    if sleep: a(f"s_sleep {sleep}")
    a(f"s_branch {L}")
    a.label(f"{L}_ok")

def tags_ok(regs, t0, t1):
    for k, r in enumerate(regs):
        t = t0 if k % 2 == 0 else t1
        a(f"v_bitop3_b32 v{t}, v{r}, s{sTAG}, {'0' if k < 2 else 'v%d' % t} bitop3:0xbe")
    a(f"v_or_b32 v{t0}, v{t0}, v{t1}")
    a(f"v_cmp_ne_u32 vcc, 0, v{t0}")
    a("s_cmp_eq_u64 vcc, 0")

def capture(fn):
    save = a.items; a.items = []
    fn()
    got = a.items; a.items = save
    return got

def dma(n, voff, srdname, soff, sstep, mstep=1024, pol=None):
    if pol is None: pol = NT
    for i in range(n):
        v = voff(i) if callable(voff) else voff
        a(f"buffer_load_dwordx4 v{v}, {R(srdname)}, s{soff} offen {pol} lds")
        if i < n-1:
            ms = mstep(i) if callable(mstep) else mstep
            ss = sstep(i) if callable(sstep) else sstep
            a(f"s_add_u32 m0, m0, {ms}")
            a(f"s_add_u32 s{soff}, s{soff}, {ss}")

vLANE, vZ, vG, vC, vSC, vONE = 0, 1, 2, 3, 4, 5
vFL = 7
vX = 8
vL16 = 12
vA1 = 64
vA2 = 128
vB1, vCS = 192, 196
vYR, vH1W, vH1R, vSTO, vABR, vGC = 232, 233, 234, 235, 236, 237


def tr_swz_addr(dst, rowbytes, slot_s, slot_add, t0, t1, base_s=None, base_imm=0):
    a(f"v_bfe_u32 v{t0}, v0, 2, 2")
    if rowbytes == 128:
        a(f"v_lshrrev_b32 v{t1}, 1, v{t0}")
        a(f"v_and_b32 v{dst}, 1, v{vG}")
        a(f"v_lshl_add_u32 v{t1}, v{dst}, 1, v{t1}")
    else:
        a(f"v_and_b32 v{t1}, 1, v{vG}")
        a(f"v_lshl_add_u32 v{t1}, v{t1}, 2, v{t0}")
    a(f"v_lshlrev_b32 v{t1}, 1, v{t1}")
    a(f"v_bfe_u32 v{dst}, v0, 1, 1")
    a(f"v_xor_b32 v{t1}, v{t1}, v{dst}")
    a(f"v_xor_b32 v{t1}, s{slot_s}, v{t1}")
    if slot_add: a(f"v_xor_b32 v{t1}, {slot_add*2}, v{t1}")
    a(f"v_lshl_add_u32 v{t0}, v{vG}, 3, v{t0}")
    a(f"v_mul_u32_u24 v{t0}, {rowbytes}, v{t0}")
    a(f"v_lshl_add_u32 v{t0}, v{t1}, 4, v{t0}")
    a(f"v_and_b32 v{t1}, 1, v0")
    a(f"v_lshl_add_u32 v{dst}, v{t1}, 3, v{t0}")
    if base_imm: a(f"v_add_u32 v{dst}, {base_imm}, v{dst}")

def src128(dst, stride, t):
    a(f"v_lshrrev_b32 v{dst}, 3, v0")
    a(f"v_mul_u32_u24 v{dst}, {stride}, v{dst}") if stride < (1 << 24) else None
    a(f"v_bfe_u32 v{t}, v0, 4, 1")
    a(f"v_lshlrev_b32 v{t}, 1, v{t}")
    a(f"v_and_b32 v{dst+1}, 7, v0")
    a(f"v_xor_b32 v{t}, v{t}, v{dst+1}")
    a(f"v_xor_b32 v{dst+1}, 4, v{t}")
    a(f"v_lshl_add_u32 v{dst+1}, v{dst+1}, 4, v{dst}")
    a(f"v_lshl_add_u32 v{dst}, v{t}, 4, v{dst}")
vBIG = 238
vWO = 200
if STAMPS:
    a("s_memrealtime s[92:93]")
a("s_cmp_ge_u32 s2, 256")
a("s_cbranch_scc1 L_END")
a("s_load_dwordx16 s[64:79], s[0:1], 0")
a("s_load_dwordx2 s[88:89], s[0:1], 96")
a("s_load_dwordx8 s[80:87], s[0:1], 64")
a("v_lshrrev_b32 v1, 6, v0")
a("v_and_b32 v0, 63, v0")
a(f"v_readfirstlane_b32 s{sW}, v1")
a(f"v_mov_b32 v{vZ}, 0")
a(f"v_lshrrev_b32 v{vG}, 4, v0")
a(f"v_and_b32 v{vC}, 15, v0")
a(f"v_mov_b32 v{vSC}, {SC}")
a(f"v_mov_b32 v{vONE}, 1")
a(f"s_and_b32 s{sHKV}, s2, 7")
a(f"s_lshr_b32 s{sB}, s2, 5")
a(f"s_bfe_u32 s{sS}, s2, 0x20003")
a(f"s_mov_b32 s{sBUD}, 400000")
a(f"s_and_b32 s{sAW}, s{sW}, 3")
a(f"s_lshl_b32 s60, s{sAW}, 2")
a(f"v_add_u32 v{vFL}, s60, v{vSC}")
a(f"v_lshlrev_b32 v{vL16}, 4, v0")
a(f"v_mov_b32 v{vBIG}, 0x7fff0000")
a(f"s_lshl_b32 s58, s{sB}, 3")
a(f"s_add_u32 s58, s58, s{sHKV}")
a("s_mov_b32 s63, s58")
a("s_lshl_b32 s58, s58, 20")
a(f"s_lshl_b32 s59, s{sS}, 16")
a("s_add_u32 s58, s58, s59")
a("s_add_u32 s58, s58, 786432")
for nm in ("ws", "x", "k", "wq"):
    a(f"s_mov_b32 s{SRD[nm]+2}, {SIZES[nm]}")
    a(f"s_mov_b32 s{SRD[nm]+3}, 0x20000")
def srd_lo(name):
    d = SRD[name]; p = PTR[name]
    a(f"s_mov_b32 s{d}, s{p}")
    a(f"s_and_b32 s{d+1}, s{p+1}, 0xffff")
if STAMPS:
    for i in range(12): a(f"v_mov_b32 v{240+i}, 0")
a(f"s_cmp_ge_u32 s{sW}, 4")
a("s_cbranch_scc1 L_VW")

a("s_setprio 2")
a(f"s_lshl_b32 s61, s{sW}, 10")
if WOFILL:
    a(f"s_cmp_lt_u32 s{sS}, 2")
    a("s_cbranch_scc1 L_K_WOF")
a(f"s_lshl_b32 s60, s{sW}, 14")
a("s_add_u32 s59, s60, s58")
a(f"s_add_u32 m0, s60, {L_K}")
for j in range(4):
    a(f"v_xor_b32 v{16+j}, {j*4}, v{vG}")
    a(f"v_xor_b32 v{16+j}, v{16+j}, v{vC}")
    a(f"v_lshlrev_b32 v{16+j}, 4, v{16+j}")
    a(f"v_lshl_add_u32 v{16+j}, v{vG}, 8, v{16+j}")
a("s_waitcnt lgkmcnt(0)")
srd_lo("k")
a("s_barrier")
dma(NK1, lambda i: 16 + (i & 3), "k", 59, 1024)
a("s_branch L_K_MAIN")
if WOFILL:
    a.label("L_K_WOF")
    a(f"s_lshl_b32 s62, s{sB}, 1")
    a(f"s_add_u32 s62, s62, s{sS}")
    a("s_lshr_b32 s59, s62, 2")
    a("s_and_b32 s60, s62, 3")
    a(f"s_lshl_b32 s62, s{sHKV}, 2")
    a("s_add_u32 s60, s60, s62")
    a("s_lshl_b32 s60, s60, 17")
    a("s_lshl_b32 s59, s59, 8")
    a("s_add_u32 s59, s59, s60")
    a(f"s_lshl_b32 s60, s{sW}, 15")
    a("s_add_u32 s59, s59, s60")
    a(f"s_lshl_b32 m0, s{sW}, 13")
    a(f"v_lshlrev_b32 v16, 1, v{vG}")
    a(f"v_xor_b32 v16, v16, v{vC}")
    a("v_xor_b32 v17, 8, v16")
    a("v_lshlrev_b32 v16, 4, v16")
    a("v_lshlrev_b32 v17, 4, v17")
    a(f"v_lshl_add_u32 v16, v{vG}, 10, v16")
    a(f"v_lshl_add_u32 v17, v{vG}, 10, v17")
    a("s_waitcnt lgkmcnt(0)")
    a(f"s_mov_b32 s{SRD['wq']}, s{PTR['wo']}")
    a(f"s_and_b32 s{SRD['wq']+1}, s{PTR['wo']+1}, 0xffff")
    a("s_barrier")
    dma(8, lambda i: 16 + ((i >> 1) & 1), "wq", 59, 4096)
    a("s_branch L_K_MAIN")

a.label("L_VW")
a("s_setprio 3")
a(f"s_cmp_lg_u32 s{sAW}, 0")
a("s_cbranch_scc1 L_V_NZ")
a(f"v_lshl_add_u32 v13, v0, 2, v{vSC}")
a("v_mov_b32 v14, 1.0")
a(f"v_cmp_eq_u32 vcc, {(C_ONE-SC)//4}, v0")
a("v_cndmask_b32 v14, 0, v14, vcc")
a("ds_write_b32 v13, v14")
a(f"ds_write_b32 v13, v{vZ} offset:256")
a(f"ds_write_b32 v13, v{vZ} offset:512")
a.label("L_V_NZ")
a(f"s_lshl_b32 s60, s{sAW}, 12")
a(f"s_add_u32 m0, s60, {L_WQ}")
a(f"s_lshl_b32 s59, s{sHKV}, 10")
a(f"s_lshl_b32 s60, s{sB}, 7")
a("s_add_u32 s59, s59, s60")
a(f"s_lshl_b32 s60, s{sS}, 20")
a("s_add_u32 s59, s59, s60")
a(f"s_lshl_b32 s60, s{sAW}, 18")
a("s_add_u32 s59, s59, s60")
src128(74, 8192, 14)
a("v_lshrrev_b32 v15, 5, v0")
a("v_lshlrev_b32 v15, 10, v15")
a("v_and_b32 v14, 31, v0")
a("v_lshl_add_u32 v15, v14, 3, v15")
a(f"s_lshl_b32 s60, s{sS}, 8")
a("v_add_u32 v15, s60, v15")
a(f"s_lshl_b32 s60, s{sAW}, 11")
a(f"s_lshl_b32 s61, s{sW}, 10")
a("s_waitcnt lgkmcnt(0)")
srd_lo("x"); srd_lo("wq"); srd_lo("ws")
a(f"s_lshl_b32 s54, s{sHKV}, 5")
a(f"s_add_u32 s54, s54, s{sHKV}")
a("s_add_u32 s54, s54, 24")
a("s_sub_u32 s54, s54, s2")
a(f"s_xor_b32 s55, s{sW}, 5")
a("s_or_b32 s74, s54, s55")
a("s_cbranch_scc1 L_V_NOZ")
for i in range(4): a(f"v_mov_b32 v{76+i}, 0")
a(f"s_mul_i32 s54, s{sB}, 3072")
a(f"s_add_u32 s54, s54, {WS_HACC}")
for j in range(3):
    a(f"buffer_store_dwordx4 v[76:79], v{vL16}, {R('ws')}, s54 offen offset:{j*1024} sc1")
if AO:
    a(f"s_add_u32 s54, s54, {WS_OACC - WS_HACC}")
    for j in range(3):
        a(f"buffer_store_dwordx4 v[76:79], v{vL16}, {R('ws')}, s54 offen offset:{j*1024} sc1")
a.label("L_V_NOZ")
a(f"buffer_load_dwordx4 v[16:19], v{vL16}, {R('x')}, s60 offen")
a(f"buffer_load_dwordx4 v[20:23], v{vL16}, {R('x')}, s60 offen offset:1024")
a(f"buffer_load_dwordx2 v[64:65], v15, {R('x')}, s60 offen")
dma(4, lambda i: 74 + (i & 1), "wq", 59, 65536)
a(f"buffer_load_dword v6, v{vZ}, {R('ws')}, 0 offen sc1")
a("s_barrier")
if STAMPS:
    a("v_mov_b32 v240, s92")
a(f"s_mul_i32 s60, s{sAW}, {2*Y_STR}")
a(f"s_add_u32 s60, s60, {L_Y}")
a("v_lshrrev_b32 v15, 5, v0")
a(f"v_mul_u32_u24 v15, {Y_STR}, v15")
a("v_and_b32 v14, 31, v0")
a("v_lshl_add_u32 v15, v14, 3, v15")
a("v_add_u32 v15, s60, v15")
a("s_mov_b32 s98, 0"); a("s_mov_b32 s99, -1")
a(f"s_lshl_b32 s60, s{sAW}, 1")
tr_swz_addr(70, 128, 60, 0, 14, 24, base_imm=L_WQ)
B_addr(71, L_Y, Y_STR, 14)
a("v_and_b32 v72, 7, v0")
a("v_lshlrev_b32 v72, 17, v72")
a(f"v_lshl_add_u32 v72, v{vG}, 5, v72")
a("v_bfe_u32 v14, v0, 3, 1")
a("v_lshl_add_u32 v72, v14, 4, v72")
a(f"s_lshl_b32 s62, s{sHKV}, 2")
a(f"s_add_u32 s62, s62, s{sS}")
a("s_lshl_b32 s62, s62, 12")
a(f"s_lshl_b32 s60, s{sB}, 9")
a("s_add_u32 s62, s62, s60")
a(f"s_lshl_b32 s60, s{sAW}, 7")
a("s_add_u32 s62, s62, s60")
a(f"s_add_u32 s62, s62, {WS_QP}")
a("s_mov_b32 s100, 0xff00ff00"); a("s_mov_b32 s101, 0xff00ff00")
PQ = 1 if (FQ and PREW) else 0
if PQ:
    for i in range(4): a(f"v_mov_b32 v{76+i}, 0")
    a(f"s_add_u32 s60, s62, {WS_FAST}")
    a(f"buffer_store_dwordx4 v[76:79], v72, {R('ws')}, s60 offen")
a(f"s_waitcnt vmcnt({6+PQ})")
def st0():
    for i in range(4): unpack(16+i, 24+2*i, 25+2*i)
    row_stats(24, 40, 55)
def st1():
    for i in range(4): unpack(20+i, 32+2*i, 33+2*i)
    row_stats(32, 52, 94)
A_, B_ = capture(st0), capture(st1)
for x_, y_ in zip(A_, B_):
    a.items += [x_, y_]
a("v_cndmask_b32 v40, v40, v52, s[98:99]")
a("v_cndmask_b32 v41, v41, v53, s[98:99]")
rnd2(40, 41, 42)
sd_of(41, 42)
rcp_nr(42, 41, 43)
a(f"s_waitcnt vmcnt({5+PQ})")
unpack(64, 66, 67); unpack(65, 68, 69)
for i in range(4):
    a(f"v_sub_f32 v{66+i}, v{66+i}, v40")
rnd2(66, 67, 44); rnd2(68, 69, 45)
for i in range(4):
    a(f"v_mul_f32 v{44+i}, v{66+i}, v42")
for i in range(4):
    a(f"v_fma_f32 v{66+i}, -v{44+i}, v41, v{66+i}")
for i in range(4):
    a(f"v_fma_f32 v{66+i}, v{66+i}, v42, v{44+i}")
a("v_cvt_pk_bf16_f32 v44, v66, v67")
a("v_cvt_pk_bf16_f32 v45, v68, v69")
a("ds_write_b64 v15, v[44:45]")
a(f"s_waitcnt vmcnt({1+PQ})")
set_flag(F_LN1)
a(f"s_waitcnt vmcnt({PQ})")
a("s_mov_b32 s60, 0x9e3779b1")
a("v_mul_lo_u32 v53, v6, s60")
a("v_add_u32 v53, 0x7f4a7c15, v53")
assert not PQ
a("v_mov_b32 v55, v53")
a(f"v_readfirstlane_b32 s{sTAG}, v53")
a("s_cmp_lg_u32 s74, 0")
a("s_cbranch_scc1 L_V_NOZF")
a(f"s_lshl_b32 s60, s{sB}, 7")
a(f"s_add_u32 s60, s60, {WS_ZF}")
a("s_mov_b64 exec, 1")
a(f"buffer_store_dword v53, v{vZ}, {R('ws')}, s60 offen sc1")
a("s_mov_b64 exec, -1")
a.label("L_V_NOZF")
stamp(1)
lds_wait4(F_LN1, 16)
for kk in range(4):
    a(f"ds_read_b128 v[{16+kk*4}:{19+kk*4}], v71 offset:{kk*64}")
    for hh in range(2):
        a(f"ds_read_b64_tr_b16 v[{32+kk*4+hh*2}:{33+kk*4+hh*2}], v70 offset:{kk*4096+hh*512}")
for kk in range(4):
    a(f"s_waitcnt lgkmcnt({(3-kk)*3})")
    c = "0" if kk == 0 else "v[56:59]"
    a(f"v_mfma_f32_16x16x32_bf16 v[56:59], v[{32+kk*4}:{35+kk*4}], v[{16+kk*4}:{19+kk*4}], {c}")
a(f"ds_write_b32 v{vSC}, v53 offset:{F_TAG-SC}")
a("v_cndmask_b32 v52, v56, v58, s[100:101]")
a("v_cndmask_b32 v54, v57, v59, s[100:101]")
if FQ:
    a(f"s_add_u32 s60, s62, {WS_FAST}")
    a(f"buffer_store_dwordx4 v[52:55], v72, {R('ws')}, s60 offen")
a(f"buffer_store_dwordx4 v[52:55], v72, {R('ws')}, s62 offen sc1")
if FE1:
    a(f"s_cmp_lg_u32 s{sAW}, 0")
    a("s_cbranch_scc1 L_V_NOXC")
    a("s_getreg_b32 s60, hwreg(HW_REG_XCC_ID, 0, 4)")
    a("v_mov_b32 v56, s60")
    a("v_mov_b32 v57, v53")
    a(f"s_lshl_b32 s60, s{sHKV}, 5")
    a("s_lshr_b32 s59, s2, 3")
    a("s_add_u32 s60, s60, s59")
    a("s_lshl_b32 s60, s60, 3")
    a(f"s_add_u32 s60, s60, {WS_XC}")
    a("s_mov_b64 exec, 1")
    a(f"buffer_store_dwordx2 v[56:57], v{vZ}, {R('ws')}, s60 offen sc1")
    a("s_mov_b64 exec, -1")
    a.label("L_V_NOXC")
a("s_lshl_b32 s59, s63, 14")
a(f"s_lshl_b32 s60, s{sAW}, 10")
a("s_add_u32 s59, s59, s60")
a(f"s_add_u32 s64, s59, {WS_QP}")
for i in range(1, 4): a(f"s_add_u32 s{64+i}, s{63+i}, 4096")
a(f"s_lshl_b32 s60, s{sAW}, 8")
a(f"s_add_u32 s60, s60, {L_QL}")
a("v_lshl_add_u32 v73, v0, 2, s60")
if GIE == 1: set_flag(F_GI)
if QACK: a("s_waitcnt vmcnt(0)")
if GIE == 2: set_flag(F_GI)
set_flag(F_Q)
stamp(2)
lds_wait4(F_Q, 16)
a(f"s_sleep {SL_Q}")
if FQ:
    a(f"v_add_u32 v74, {WS_FAST}, v{vL16}")
    a("s_mov_b32 s62, 0")
else:
    a(f"v_mov_b32 v74, v{vL16}")
a.label("L_QG")
for i in range(4):
    a(f"buffer_load_dwordx4 v[{32+i*4}:{35+i*4}], v74, {R('ws')}, s{64+i} offen sc1")
set_flag(F_GI)
budget()
if FQ:
    a("s_add_u32 s62, s62, 1")
    a("s_cmp_lt_u32 s62, 3")
    a("s_cselect_b32 s60, 0, s62")
    a("s_and_b32 s60, s60, 1")
    a("s_xor_b32 s60, s60, 1")
    a(f"s_mul_i32 s60, s60, {WS_FAST}")
    a(f"v_add_u32 v74, s60, v{vL16}")
a("s_waitcnt vmcnt(0)")
tags_ok([32+r for r in (1, 3, 5, 7, 9, 11, 13, 15)], 48, 49)
if SL_QR:
    a("s_cbranch_scc1 L_QG_OK")
    a(f"s_sleep {SL_QR}")
    a("s_branch L_QG")
    a.label("L_QG_OK")
else:
    a("s_cbranch_scc0 L_QG")
a("v_add_f32 v48, v32, v36")
a("v_add_f32 v49, v34, v38")
a("v_add_f32 v50, v40, v44")
a("v_add_f32 v51, v42, v46")
a("v_pk_add_f32 v[48:49], v[48:49], v[50:51]")
a("v_cvt_pk_bf16_f32 v48, v48, v49")
a("ds_write_b32 v73, v48")
a("v_mov_b32 v14, 2")
set_flag(F_Q, 14)
stamp(5)
a("s_setprio 1")
srd("v")
a(f"s_and_b32 s60, s{sAW}, 1")
a("s_lshl_b32 s60, s60, 3")
a(f"v_lshlrev_b32 v13, 1, v{vG}")
a("v_or_b32 v13, s60, v13")
a(f"v_xor_b32 v13, v13, v{vC}")
a("v_lshlrev_b32 v13, 4, v13")
a(f"v_lshl_add_u32 v13, v{vG}, 8, v13")
a(f"s_lshl_b32 s60, s{sAW}, 11")
a(f"s_add_u32 s60, s60, {NVK*8192}")
a("s_add_u32 s59, s58, s60")
a(f"s_add_u32 m0, s60, {L_V}")
if WOFILL:
    a(f"s_cmp_ge_u32 s{sS}, 2")
    a("s_cbranch_scc1 L_V_NOWOR")
    a(f"s_lshl_b32 s60, s{sAW}, 2")
    tr_swz_addr(70, 256, 60, 0, 14, 16)
    tr_swz_addr(71, 256, 60, 1, 14, 16)
    lds_wait4(F_W, 16, sleep=1)
    for nt_ in range(2):
        for kk in range(4):
            for hh in range(2):
                r = vWO + (nt_*4+kk)*4 + hh*2
                a(f"ds_read_b64_tr_b16 v[{r}:{r+1}], v{70+nt_} offset:{kk*8192 + hh*1024}")
        a("s_waitcnt lgkmcnt(0)")
    set_flag(F_WR)
    lds_wait4(F_WR, 16)
    a.label("L_V_NOWOR")
step = lambda i: 1024 if i % 2 == 0 else 7168
lds_wait4(F_KI, 16, sleep=1)
dma(16-2*NVK, 13, "v", 59, step, step)
stamp(3)
vPR, vOPA, vTR = 120, 121, 122
a("v_and_b32 v15, 3, v0")
a(f"v_mul_u32_u24 v{vPR}, {P_STR}, v15")
a(f"v_add_u32 v{vPR}, {L_P}, v{vPR}")
a(f"v_lshl_add_u32 v{vPR}, v{vG}, 4, v{vPR}")
a(f"s_lshl_b32 s60, s{sHKV}, 2")
a(f"v_add_u32 v{vOPA}, s60, v15")
a("s_lshr_b32 s60, s2, 3")
a(f"v_lshlrev_b32 v{vOPA}, 5, v{vOPA}")
a(f"v_add_u32 v{vOPA}, s60, v{vOPA}")
a(f"v_lshlrev_b32 v{vOPA}, 10, v{vOPA}")
a("v_bfe_u32 v15, v0, 3, 1")
a(f"v_lshl_add_u32 v{vOPA}, v15, 7, v{vOPA}")
a(f"v_lshl_add_u32 v{vOPA}, v{vG}, 5, v{vOPA}")
a("v_bfe_u32 v15, v0, 2, 1")
a(f"v_lshl_add_u32 v{vOPA}, v15, 4, v{vOPA}")
a("v_bfe_u32 v14, v0, 2, 2")
a(f"v_and_b32 v15, 1, v{vG}")
a("v_lshl_add_u32 v15, v15, 2, v14")
a("v_lshlrev_b32 v15, 1, v15")
a("v_bfe_u32 v16, v0, 1, 1")
a("v_xor_b32 v15, v15, v16")
a(f"v_lshl_add_u32 v14, v{vG}, 3, v14")
a("v_lshlrev_b32 v14, 8, v14")
a("v_and_b32 v16, 1, v0")
a("v_lshl_add_u32 v14, v16, 3, v14")
for dt in range(2):
    a(f"s_lshl_b32 s60, s{sAW}, 2")
    if dt: a("s_add_u32 s60, s60, 2")
    a("v_xor_b32 v16, s60, v15")
    a(f"v_lshl_add_u32 v{vTR+dt}, v16, 4, v14")
a("s_mov_b32 s94, 0x00f000f0"); a("s_mov_b32 s95, 0x00f000f0")
a("s_mov_b32 s96, 0x0f000f00"); a("s_mov_b32 s97, 0x0f000f00")
a("s_mov_b32 s98, 0xf000f000"); a("s_mov_b32 s99, 0xf000f000")
a(f"s_lshl_b32 s60, s{sAW}, 8")
a(f"s_add_u32 s60, s60, {WS_OP}")
a(f"v_mov_b32 v105, s{sTAG}")
a(f"v_mov_b32 v107, s{sTAG}")
a(f"s_lshl_b32 s61, s{sHKV}, 5")
a("s_lshr_b32 s62, s2, 3")
a("s_add_u32 s61, s61, s62")
a("s_lshl_b32 s61, s61, 7")
a(f"s_add_u32 s61, s61, {WS_OF}")
a(f"s_lshl_b32 s62, s{sAW}, {2 if E1F == 3 else 15}")
a("s_add_u32 s61, s61, s62")
PO = 1 if (FE1 and PREW) else 0
if PO:
    a(f"v_not_b32 v76, v105")
    a("v_mov_b32 v77, v76"); a("v_mov_b32 v78, v76"); a("v_mov_b32 v79, v76")
    a(f"s_add_u32 s62, s60, {WS_FAST}")
    if PREW == 1: a(f"buffer_store_dwordx4 v[76:79], v{vOPA}, {R('ws')}, s62 offen")
    else: a(f"buffer_load_dwordx4 v[112:115], v{vOPA}, {R('ws')}, s62 offen {'sc1' if PREW == 2 else ''}")
lds_wait4(F_B, 16, sleep=1)
vP = 16
for kk in range(8):
    a(f"ds_read_b128 v[{vP+kk*4}:{vP+kk*4+3}], v{vPR} offset:{kk*64}")
stamp(9)
vA = 48
vO = 96
def pv_reads(kk):
    base = vA + (kk % 6)*8
    for dt in range(2):
        for hh in range(2):
            r = base + dt*4 + hh*2
            a(f"ds_read_b64_tr_b16 v[{r}:{r+1}], v{vTR+dt} offset:{kk*8192 + hh*1024}")
def pv_mfma(kk, dt):
    base = vA + (kk % 6)*8
    c = "0" if kk == 0 else f"v[{vO+dt*4}:{vO+dt*4+3}]"
    a(f"v_mfma_f32_16x16x32_bf16 v[{vO+dt*4}:{vO+dt*4+3}], v[{base+dt*4}:{base+dt*4+3}], v[{vP+kk*4}:{vP+kk*4+3}], {c}")
extra = PO
for gi, grp in enumerate((list(range(NVK)), list(range(NVK, 7)), [7])):
    last = grp[-1]
    if gi == 0:
        lds_wait4(F_VK, 108)
    else:
        a(f"v_mov_b32 v14, {last+1}")
        a(f"s_waitcnt vmcnt({14-2*last+extra})")
        set_flag(F_V, 14)
        lds_wait4(F_V, 108, minval=last+1)
    if E1F and gi == E1F:
        a("s_mov_b64 exec, 1")
        a(f"buffer_store_dword v105, v{vZ}, {R('ws')}, s61 offen sc1")
        a("s_mov_b64 exec, -1")
        extra += 1
    pend = list(grp)
    issued = []
    for kk in pend[:3]:
        pv_reads(kk); issued.append(kk)
    for idx, kk in enumerate(pend):
        after = len(issued) - 1 - idx
        for dt in range(2):
            a(f"s_waitcnt lgkmcnt({after*4 + 2 - 2*dt})")
            pv_mfma(kk, dt)
        if idx + 3 < len(pend):
            pv_reads(pend[idx+3]); issued.append(pend[idx+3])
a("v_mov_b32 v14, 9")
a(f"v_cndmask_b32 v104, v{vO}, v{vO+2}, s[94:95]")
a(f"v_cndmask_b32 v106, v{vO+1}, v{vO+3}, s[94:95]")
a(f"v_cndmask_b32 v104, v104, v{vO+4}, s[96:97]")
a(f"v_cndmask_b32 v106, v106, v{vO+5}, s[96:97]")
a(f"v_cndmask_b32 v104, v104, v{vO+6}, s[98:99]")
a(f"v_cndmask_b32 v106, v106, v{vO+7}, s[98:99]")
if FE1:
    a(f"s_add_u32 s62, s60, {WS_FAST}")
    a(f"buffer_store_dwordx4 v[104:107], v{vOPA}, {R('ws')}, s62 offen")
a(f"buffer_store_dwordx4 v[104:107], v{vOPA}, {R('ws')}, s60 offen sc1")
if E1F in (3, 4):
    a("s_mov_b64 exec, 1")
    a(f"buffer_store_dword v105, v{vZ}, {R('ws')}, s61 offen sc1")
    a("s_mov_b64 exec, -1")
stamp(4)
a(f"s_cmp_ge_u32 s{sS}, 2")
a("s_cbranch_scc1 L_V_NOTWO")

a(f"s_lshl_b32 s58, s{sB}, 1")
a(f"s_add_u32 s58, s58, s{sS}")
a("s_lshl_b32 s64, s58, 3")
a(f"s_add_u32 s64, s64, s{sHKV}")
a("s_lshl_b32 s64, s64, 7")
a(f"s_add_u32 s64, s64, {WS_FL}")
a("s_lshr_b32 s63, s58, 2")
a("s_lshl_b32 s63, s63, 2")
a(f"s_add_u32 s63, s63, s{sAW}")
a("s_waitcnt vmcnt(0)")
set_flag(F_V, 14)
B_addr(14, L_OL, OL_STR, 15)
a(f"s_mul_i32 s60, s{sAW}, {8*RL_STR}")
a(f"s_add_u32 s60, s60, {L_RL}")
a("v_and_b32 v15, 7, v0")
a(f"v_mul_u32_u24 v15, {RL_STR}, v15")
a("v_bfe_u32 v16, v0, 3, 1")
a("v_lshl_add_u32 v15, v16, 6, v15")
a(f"v_lshl_add_u32 v15, v{vG}, 4, v15")
a("v_add_u32 v15, s60, v15")
a("v_bfe_u32 v16, v0, 2, 2")
a("v_and_b32 v17, 3, v0")
a(f"v_mul_u32_u24 v18, {RL_STR}, v{vG}")
a("v_lshl_add_u32 v18, v16, 5, v18")
a("v_lshl_add_u32 v18, v17, 2, v18")
a("v_add_u32 v18, s60, v18")
a(f"v_mov_b32 v19, {C_ONE}")
a(f"v_mov_b32 v20, {C_ZERO}")
a("v_cmp_eq_u32 s[56:57], 3, v17")
a("v_cmp_eq_u32 s[58:59], 2, v17")
for j in range(3):
    for bh in range(2):
        r = 24 + j*2 + bh
        a(f"v_add_u32 v{r}, {j*12 + bh*4*RL_STR}, v18")
        a(f"v_cndmask_b32 v{r}, v{r}, v19, s[56:57]")
        if j == 2:
            a(f"v_cndmask_b32 v{r}, v{r}, v20, s[58:59]")
a(f"v_mul_u32_u24 v21, 3072, v{vG}")
a("v_and_b32 v22, 15, v0")
a("v_lshl_add_u32 v21, v22, 2, v21")
a("s_lshl_b32 s63, s63, 6")
a(f"s_add_u32 s63, s63, {WS_HACC}")
a("s_add_u32 s61, s63, 12288")
vA = vWO
if not WOFILL:
    a(f"s_lshl_b32 s60, s{sAW}, 2")
    tr_swz_addr(70, 256, 60, 0, 30, 31, base_imm=L_K)
    tr_swz_addr(71, 256, 60, 1, 30, 31, base_imm=L_K)
    lds_wait4(F_W, 32)
    for nt_ in range(2):
        for kk in range(4):
            for hh in range(2):
                r = vWO + (nt_*4+kk)*4 + hh*2
                a(f"ds_read_b64_tr_b16 v[{r}:{r+1}], v{70+nt_} offset:{kk*8192 + hh*1024}")
        a("s_waitcnt lgkmcnt(0)")
stamp(10)
if BAR: a("s_barrier")
else: lds_wait4(F_C, 64)
stamp(5)
vB = 64
for kk in range(4):
    a(f"ds_read_b128 v[{vB+kk*4}:{vB+kk*4+3}], v14 offset:{kk*64}")
for kk in range(4):
    a(f"s_waitcnt lgkmcnt({3-kk})")
    for nt_ in range(2):
        c = "0" if kk == 0 else f"v[{80+nt_*4}:{83+nt_*4}]"
        r = vA + (nt_*4+kk)*4
        a(f"v_mfma_f32_16x16x32_bf16 v[{80+nt_*4}:{83+nt_*4}], v[{r}:{r+3}], v[{vB+kk*4}:{vB+kk*4+3}], {c}")
for i in range(4):
    a(f"v_cndmask_b32 v{88+i}, v{80+i}, v{84+i}, s[100:101]")
a("ds_write_b128 v15, v[88:91]")
for r in range(6):
    a(f"ds_read_b32 v{92+r}, v{24+r}")
for j in range(3):
    for bh in range(2):
        r = j*2 + bh
        a(f"s_waitcnt lgkmcnt({5-r})")
        a(f"buffer_atomic_add_f32 v{92+r}, v21, {R('ws')}, {'s63' if bh == 0 else 's61'} offen offset:{j*1024}")
a(f"s_cmp_lg_u32 s{sAW}, {99 if FLEARLY else 3}")
a("s_cbranch_scc1 L_V_NOFL")
a("s_mov_b64 exec, 1")
a(f"buffer_store_dword v105, v{vZ}, {R('ws')}, s64 offen sc1")
a("s_mov_b64 exec, -1")
a.label("L_V_NOFL")
stamp(6)
if STAMPS == 1:
    a("s_waitcnt vmcnt(0)")
    stamp(7)
a("s_branch L_FIN")


a.label("L_K_MAIN")
if STAMPS:
    a("v_mov_b32 v240, s92")
srd_lo("k"); srd_lo("ws"); srd("v")
if CODEPF:
    a("s_getpc_b64 s[68:69]")
    a.label("L_PCREF")
    a("s_sub_u32 s68, s68, L_PCREF-L_VW")
    a("s_subb_u32 s69, s69, 0")
    a("s_and_b32 s68, s68, 0xfffffff0")
    a("s_lshr_b32 s60, s2, 3")
    a("s_lshl_b32 s60, s60, 2")
    a(f"s_add_u32 s60, s60, s{sW}")
    a(f"s_cmp_ge_u32 s60, CODE_KB")
    a("s_cbranch_scc1 L_K_NOCP")
    a("s_lshl_b32 s60, s60, 10")
    a(f"v_add_u32 v14, s60, v{vL16}")
    a("global_load_dwordx4 v[20:23], v14, s[68:69]")
    a.label("L_K_NOCP")
vQA, vMXA, vMXW, vPW, vSTA, vQW = 120, 121, 122, 123, 124, 125
vKR = 126
a("v_and_b32 v15, 3, v0")
a(f"v_lshlrev_b32 v{vQA}, 8, v15")
a(f"v_lshl_add_u32 v{vQA}, v{vG}, 4, v{vQA}")
a(f"v_add_u32 v{vQA}, {L_QL}, v{vQA}")
a(f"v_lshl_add_u32 v{vMXA}, v15, 4, v{vSC}")
a(f"s_lshl_b32 s60, s{sW}, 2")
a(f"v_add_u32 v{vMXW}, s60, v{vMXA}")
a(f"v_mul_u32_u24 v14, {P_STR}, v15")
a(f"v_add_u32 v14, {L_P}, v14")
a(f"v_bfe_u32 v{vPW}, v0, 2, 2")
a(f"v_lshlrev_b32 v{vPW}, 5, v{vPW}")
a(f"v_lshl_add_u32 v{vPW}, v{vG}, 3, v{vPW}")
a(f"s_lshl_b32 s60, s{sW}, 7")
a(f"v_add3_u32 v{vPW}, v{vPW}, s60, v14")
a(f"s_lshl_b32 s60, s{sHKV}, 2")
a(f"v_add_u32 v{vSTA}, s60, v15")
a("s_lshr_b32 s60, s2, 3")
a(f"v_lshlrev_b32 v{vSTA}, 5, v{vSTA}")
a(f"v_add_u32 v{vSTA}, s60, v{vSTA}")
a(f"v_lshlrev_b32 v{vSTA}, 4, v{vSTA}")
a(f"s_lshl_b32 s60, s{sW}, 8")
a(f"s_add_u32 s60, s60, {L_QL}")
a(f"v_lshl_add_u32 v{vQW}, v0, 2, s60")
a(f"s_lshl_b32 s60, s{sW}, 14")
a(f"s_add_u32 s60, s60, {L_K}")
for kk in range(4):
    a(f"v_xor_b32 v{vKR+kk}, {kk*4}, v{vG}")
    a(f"v_xor_b32 v{vKR+kk}, v{vKR+kk}, v{vC}")
    a(f"v_lshlrev_b32 v{vKR+kk}, 4, v{vKR+kk}")
    a(f"v_lshl_add_u32 v{vKR+kk}, v{vC}, 8, v{vKR+kk}")
    a(f"v_add_u32 v{vKR+kk}, s60, v{vKR+kk}")
a("s_mov_b32 s94, 0x00f000f0"); a("s_mov_b32 s95, 0x00f000f0")
a("s_mov_b32 s96, 0x0f000f00"); a("s_mov_b32 s97, 0x0f000f00")
a("s_mov_b32 s98, 0xf000f000"); a("s_mov_b32 s99, 0xf000f000")
a("s_lshl_b32 s59, s63, 14")
a(f"s_lshl_b32 s60, s{sW}, 10")
a("s_add_u32 s59, s59, s60")
a(f"s_add_u32 s64, s59, {WS_QP}")
for i in range(1, 4): a(f"s_add_u32 s{64+i}, s{63+i}, 4096")
for j in range(4):
    a(f"v_xor_b32 v{16+j}, {j*4}, v{vG}")
    a(f"v_xor_b32 v{16+j}, v{16+j}, v{vC}")
    a(f"v_lshlrev_b32 v{16+j}, 4, v{16+j}")
    a(f"v_lshl_add_u32 v{16+j}, v{vG}, 8, v{16+j}")
a(f"s_lshl_b32 s60, s{sW}, 14")
a("s_add_u32 s68, s60, s58")
a(f"s_add_u32 m0, s60, {L_K}")
a(f"s_add_u32 s68, s68, {NK1*1024}")
a(f"s_add_u32 m0, m0, {NK1*1024}")
a(f"s_and_b32 s60, s{sW}, 1")
a("s_lshl_b32 s60, s60, 3")
a(f"v_lshlrev_b32 v13, 1, v{vG}")
a("v_or_b32 v13, s60, v13")
a(f"v_xor_b32 v13, v13, v{vC}")
a("v_lshlrev_b32 v13, 4, v13")
a(f"v_lshl_add_u32 v13, v{vG}, 8, v13")
a(f"s_lshl_b32 s61, s{sW}, 11")
a("s_add_u32 s69, s58, s61")
NTOT = 16 + 2*NVK
def stream_item(i):
    if i < 16:
        a(f"buffer_load_dwordx4 v{16 + (i & 3)}, {R('k')}, s68 offen {NT} lds")
        if i < 15:
            a("s_add_u32 m0, m0, 1024")
            a("s_add_u32 s68, s68, 1024")
        else:
            a("s_mov_b32 m0, s61")
    else:
        j = i - 16
        a(f"buffer_load_dwordx4 v13, {R('v')}, s69 offen {NT} lds")
        st_ = 1024 if j % 2 == 0 else 7168
        a(f"s_add_u32 m0, m0, {st_}")
        a(f"s_add_u32 s69, s69, {st_}")
for i in range(NK1, NTOT):
    a(f"ds_read_b128 v[24:27], v{vSC} offset:{F_GI-SC}")
    a(f"s_waitcnt vmcnt({THR}) lgkmcnt(0)")
    a("v_and_b32 v24, v24, v25")
    a("v_and_b32 v26, v26, v27")
    a("v_and_b32 v24, v24, v26")
    a("v_readfirstlane_b32 s54, v24")
    a("s_cmp_lg_u32 s54, 0")
    a(f"s_cbranch_scc1 L_KF{i}")
    stream_item(i)
a("s_branch L_KFE")
for i in range(NK1, NTOT):
    a.label(f"L_KF{i}")
    stream_item(i)
a.label("L_KFE")
set_flag(F_KI)
stamp(1)
vK = 132
lds_wait4(F_Q, 56, minval=2, sleep=1)
a(f"ds_read_b32 v14, v{vSC} offset:{F_TAG-SC}")
stamp(2)
a("s_setprio 3")
vQ = 80
for kk in range(4):
    a(f"ds_read_b128 v[{vQ+kk*4}:{vQ+kk*4+3}], v{vQA} offset:{kk*64}")
vS = 96
a("s_waitcnt lgkmcnt(4)")
a(f"v_readfirstlane_b32 s{sTAG}, v14")
for t in range(4):
    a(f"s_waitcnt vmcnt({(3-t)*4 + 2*NVK})")
    for kk in range(4):
        r = vK + (t*4+kk)*4
        a(f"ds_read_b128 v[{r}:{r+3}], v{vKR+kk} offset:{t*4096}")
    for kk in range(4):
        a(f"s_waitcnt lgkmcnt({3-kk})")
        r = vK + (t*4+kk)*4
        c = "0" if kk == 0 else f"v[{vS+t*4}:{vS+t*4+3}]"
        a(f"v_mfma_f32_16x16x32_bf16 v[{vS+t*4}:{vS+t*4+3}], v[{r}:{r+3}], v[{vQ+kk*4}:{vQ+kk*4+3}], {c}")
vE = 112
for i in range(4):
    a(f"v_cndmask_b32 v{vE+i}, v{vS+i}, v{vS+4+i}, s[94:95]")
for i in range(4):
    a(f"v_cndmask_b32 v{vE+i}, v{vE+i}, v{vS+8+i}, s[96:97]")
for i in range(4):
    a(f"v_cndmask_b32 v{vE+i}, v{vE+i}, v{vS+12+i}, s[98:99]")
rnd2(vE, vE+1, 116); rnd2(vE+2, vE+3, 117)
a(f"s_mov_b32 s55, {SCALE}")
for i in range(4):
    a(f"v_mul_f32 v{vE+i}, s55, v{vE+i}")
rnd2(vE, vE+1, 116); rnd2(vE+2, vE+3, 117)
vM, vL = 118, 119
a(f"v_max_f32 v{vM}, v{vE}, v{vE+1}")
a(f"v_max3_f32 v{vM}, v{vM}, v{vE+2}, v{vE+3}")
head_reduce(vM, 119, "max")
a(f"ds_write_b32 v{vMXW}, v{vM} offset:{L_MX-SC}")
set_flag(F_A)
lds_wait4(F_A, 56)
a(f"ds_read_b128 v[56:59], v{vMXA} offset:{L_MX-SC}")
a("s_waitcnt lgkmcnt(0)")
a(f"v_max3_f32 v{vM}, v56, v57, v58")
a(f"v_max_f32 v{vM}, v{vM}, v59")
a(f"s_mov_b32 s55, {LOG2E}")
for i in range(4):
    a(f"v_sub_f32 v{vE+i}, v{vE+i}, v{vM}")
for i in range(4):
    a(f"v_mul_f32 v{vE+i}, s55, v{vE+i}")
for i in range(4):
    a(f"v_exp_f32 v{vE+i}, v{vE+i}")
a(f"v_add_f32 v{vL}, v{vE}, v{vE+1}")
a(f"v_add_f32 v56, v{vE+2}, v{vE+3}")
a(f"v_add_f32 v{vL}, v{vL}, v56")
a(f"v_cvt_pk_bf16_f32 v116, v{vE}, v{vE+1}")
a(f"v_cvt_pk_bf16_f32 v117, v{vE+2}, v{vE+3}")
a(f"ds_write_b64 v{vPW}, v[116:117]")
head_reduce(vL, 56, "add")
a(f"ds_write_b32 v{vMXW}, v{vL} offset:{L_SUM-SC}")
set_flag(F_B)
lds_wait4(F_B, 56)
a(f"ds_read_b128 v[56:59], v{vMXA} offset:{L_SUM-SC}")
a("s_waitcnt lgkmcnt(0)")
a(f"v_add_f32 v{vL}, v56, v57")
a("v_add_f32 v58, v58, v59")
a(f"v_add_f32 v58, v{vL}, v58")
a(f"v_mov_b32 v56, v{vM}")
a(f"v_mov_b32 v57, s{sTAG}")
a(f"v_mov_b32 v59, s{sTAG}")
a(f"s_lshl_b64 s[56:57], 1, s{sW}")
a(f"s_mov_b32 s61, {WS_ST}")
a("s_mov_b64 exec, s[56:57]")
a(f"buffer_store_dwordx4 v[56:59], v{vSTA}, {R('ws')}, s61 offen sc1")
if FE1:
    a(f"s_mov_b32 s61, {WS_ST + WS_FAST}")
    a(f"buffer_store_dwordx4 v[56:59], v{vSTA}, {R('ws')}, s61 offen")
a("s_mov_b64 exec, -1")
stamp(3)
a("s_setprio 0")
a(f"s_cmp_ge_u32 s{sS}, 2")
a("s_cbranch_scc1 L_K_NOTWO")

if not WOFILL:
    a(f"s_lshl_b32 s62, s{sB}, 1")
    a(f"s_add_u32 s62, s62, s{sS}")
    a("s_lshr_b32 s59, s62, 2")
    a("s_and_b32 s60, s62, 3")
    a(f"s_lshl_b32 s62, s{sHKV}, 2")
    a("s_add_u32 s60, s60, s62")
    a("s_lshl_b32 s60, s60, 17")
    a("s_lshl_b32 s59, s59, 8")
    a("s_add_u32 s59, s59, s60")
    a(f"s_lshl_b32 s60, s{sW}, 15")
    a("s_add_u32 s59, s59, s60")
    a(f"s_lshl_b32 s60, s{sW}, 13")
    a(f"s_add_u32 m0, s60, {L_K}")
    a(f"v_lshlrev_b32 v16, 1, v{vG}")
    a(f"v_xor_b32 v16, v16, v{vC}")
    a("v_xor_b32 v17, 8, v16")
    a("v_lshlrev_b32 v16, 4, v16")
    a("v_lshlrev_b32 v17, 4, v17")
    a(f"v_lshl_add_u32 v16, v{vG}, 10, v16")
    a(f"v_lshl_add_u32 v17, v{vG}, 10, v17")
    a(f"s_mov_b32 s{SRD['wq']}, s{PTR['wo']}")
    a(f"s_and_b32 s{SRD['wq']+1}, s{PTR['wo']+1}, 0xffff")
    dma(8, lambda i: 16 + ((i >> 1) & 1), "wq", 59, 4096)
def coefs():
    a(f"v_max_f32_dpp v72, v68, v68 quad_perm:[1,0,3,2] {DPPM}")
    a(f"v_max_f32_dpp v72, v72, v72 quad_perm:[2,3,0,1] {DPPM}")
    a("v_sub_f32 v72, v68, v72")
    a(f"v_mul_f32 v72, {LOG2E}, v72")
    a("v_exp_f32 v72, v72")
    a("v_mul_f32 v73, v72, v70")
    a(f"v_add_f32_dpp v73, v73, v73 quad_perm:[1,0,3,2] {DPPM}")
    a(f"v_add_f32_dpp v73, v73, v73 quad_perm:[2,3,0,1] {DPPM}")
    a("v_rcp_f32 v74, v73")
    a("v_mul_f32 v72, v72, v74")
    for i in range(8):
        a(f"v_readlane_b32 s{66+i}, v72, {i}")
    a("s_nop 1")
def fl_load():
    if E1F == 3: a(f"buffer_load_dwordx4 v[60:63], v15, {R('ws')}, s61 offen sc1")
    else: a(f"buffer_load_dword v60, v15, {R('ws')}, s61 offen sc1")
a(f"s_waitcnt vmcnt({9+FE1})")
set_flag(F_VK)
a(f"s_lshl_b32 s58, s{sB}, 1")
a(f"s_add_u32 s58, s58, s{sS}")
a("s_and_b32 s58, s58, 3")
a(f"s_lshl_b32 s60, s{sHKV}, 2")
a("s_add_u32 s58, s58, s60")
a("s_setprio 3")
a("s_lshl_b32 s65, s58, 9")
a(f"s_lshl_b32 s60, s{sW}, 7")
a("s_add_u32 s65, s65, s60")
a(f"s_add_u32 s65, s65, {WS_ST}")
a("s_lshl_b32 s58, s58, 15")
a(f"s_lshl_b32 s60, s{sW}, 13")
a("s_add_u32 s58, s58, s60")
a(f"s_add_u32 s58, s58, {WS_OP}")
a("s_add_u32 s59, s58, 4096")
a(f"s_mul_i32 s60, s{sW}, {2*OL_STR}")
a(f"s_add_u32 s60, s60, {L_OL}")
a("v_lshl_add_u32 v13, v0, 2, s60")
a("v_and_b32 v14, 7, v0")
a("v_lshlrev_b32 v15, 7, v14")
a("v_lshlrev_b32 v14, 4, v14")
a(f"s_lshl_b32 s61, s{sHKV}, 12")
a(f"s_lshl_b32 s60, s{sW}, 10")
a("s_add_u32 s61, s61, s60")
a(f"s_add_u32 s61, s61, {WS_OF}")
a("s_mov_b32 s62, 0xff")
a(f"s_lshl_b32 s75, s{sB}, 1")
a(f"s_add_u32 s75, s75, s{sS}")
a("s_lshl_b32 s75, s75, 3")
a(f"s_add_u32 s75, s75, s{sHKV}")
a("s_lshl_b32 s75, s75, 7")
a(f"s_add_u32 s75, s75, {WS_FL}")
if FE1:
    a("v_and_b32 v66, 31, v0")
    a("v_lshlrev_b32 v66, 3, v66")
    a(f"s_lshl_b32 s64, s{sHKV}, 8")
    a(f"s_add_u32 s64, s64, {WS_XC}")
    a(f"buffer_load_dwordx2 v[76:77], v66, {R('ws')}, s64 offen sc1")
zflag_wait(64)
set_flag(F_W)
stamp(4)
vD = 16
if FE1:
    a("s_getreg_b32 s60, hwreg(HW_REG_XCC_ID, 0, 4)")
    a("v_cmp_eq_u32 vcc, s60, v76")
    a(f"v_cmp_eq_u32 s[56:57], s{sTAG}, v77")
    a("s_and_b64 vcc, vcc, s[56:57]")
    a("s_cmp_eq_u64 vcc, -1")
    a("s_cbranch_scc0 L_E1")
    a(f"v_add_u32 v66, {WS_FAST}, v{vL16}")
    a(f"v_add_u32 v67, {WS_FAST}, v14")
    a("s_mov_b32 s64, 3000")
    def fld(i):
        if i < 8: a(f"buffer_load_dwordx4 v[{vD+i*4}:{vD+i*4+3}], v66, {R('ws')}, {'s58' if i < 4 else 's59'} offen offset:{(i%4)*1024} {FLD}")
        else: a(f"buffer_load_dwordx4 v[68:71], v67, {R('ws')}, s65 offen {FLD}")
    if F1WAIT: lds_wait4(F_V, 60, minval=F1WAIT)
    fld(8)
    for i in range(8): fld(i)
    a("s_waitcnt vmcnt(8)")
    coefs()
    a.label("L_F1")
    a("s_waitcnt vmcnt(0)")
    tags_ok([vD+i*4+k for i in range(8) for k in (1, 3)] + [69, 71], 60, 61)
    a("s_cbranch_scc1 L_E1_FMA")
    if SL_F1: a(f"s_sleep {SL_F1}")
    for i in (8, 0, 1, 2, 3, 4, 5, 6, 7):
        t0, t1 = (vD+i*4+1, vD+i*4+3) if i < 8 else (69, 71)
        a(f"v_cmp_eq_u32 vcc, s{sTAG}, v{t0}")
        a(f"v_cmp_eq_u32 s[56:57], s{sTAG}, v{t1}")
        a("s_and_b64 vcc, vcc, s[56:57]")
        a("s_cmp_eq_u64 vcc, -1")
        a(f"s_cbranch_scc1 L_F1_c{i}")
        fld(i)
        if i == 8:
            a("s_waitcnt vmcnt(0)")
            coefs()
        a.label(f"L_F1_c{i}")
    a("s_sub_u32 s64, s64, 1")
    a("s_cbranch_scc0 L_F1")
    a("s_waitcnt vmcnt(0)")
    a("s_mov_b32 s62, 0xff")
def ld(i): a(f"buffer_load_dwordx4 v[{vD+i*4}:{vD+i*4+3}], v{vL16}, {R('ws')}, {'s58' if i < 4 else 's59'} offen offset:{(i%4)*1024} sc1")
a.label("L_E1")
fl_load()
budget()
a("s_waitcnt vmcnt(0)")
a(f"v_cmp_eq_u32 vcc, s{sTAG}, v60")
if E1F == 3:
    for r in (61, 62, 63):
        a(f"v_cmp_eq_u32 s[56:57], s{sTAG}, v{r}")
        a("s_and_b64 vcc, vcc, s[56:57]")
a("s_and_b32 s60, vcc_lo, s62")
a("s_cbranch_scc1 L_E1_GO")
if SL_P1: a(f"s_sleep {SL_P1}")
a("s_branch L_E1")
a.label("L_E1_GO")
for i in range(8):
    a(f"s_bitcmp1_b32 s60, {i}")
    a(f"s_cbranch_scc0 L_E1_l{i}")
    ld(i)
    a.label(f"L_E1_l{i}")
a("s_cmp_lg_u32 s60, s62")
a("s_cbranch_scc1 L_E1_NS")
a.label("L_E1_ST")
a(f"buffer_load_dwordx4 v[68:71], v14, {R('ws')}, s65 offen sc1")
a.label("L_E1_NS")
a("s_waitcnt vmcnt(0)")
for i in range(8):
    a(f"s_bitcmp1_b32 s60, {i}")
    a(f"s_cbranch_scc0 L_E1_c{i}")
    a(f"v_cmp_eq_u32 vcc, s{sTAG}, v{vD+i*4+1}")
    a(f"v_cmp_eq_u32 s[56:57], s{sTAG}, v{vD+i*4+3}")
    a("s_and_b64 vcc, vcc, s[56:57]")
    a("s_cmp_eq_u64 vcc, -1")
    a(f"s_cbranch_scc0 L_E1_c{i}")
    a(f"s_bitset0_b32 s62, {i}")
    a.label(f"L_E1_c{i}")
a("s_cmp_lg_u32 s62, 0")
a("s_cbranch_scc1 L_E1")
a(f"v_cmp_eq_u32 vcc, s{sTAG}, v69")
a(f"v_cmp_eq_u32 s[56:57], s{sTAG}, v71")
a("s_and_b64 vcc, vcc, s[56:57]")
a("s_mov_b32 s60, 0")
budget()
a("s_cmp_eq_u64 vcc, -1")
a("s_cbranch_scc0 L_E1_ST")
coefs()
a.label("L_E1_FMA")
if FLEARLY == 2:
    a(f"s_cmp_lg_u32 s{sW}, 3")
    a("s_cbranch_scc1 L_K_NOFL2")
    a("s_mov_b64 exec, 1")
    a(f"buffer_store_dword v17, v{vZ}, {R('ws')}, s75 offen sc1")
    a("s_mov_b64 exec, -1")
    a.label("L_K_NOFL2")
stamp(5)
for i in range(8):
    bb = i // 4
    op = "v_mul_f32" if i % 4 == 0 else "v_fmac_f32"
    a(f"{op} v{56+bb*2}, s{66+i}, v{vD+i*4}")
    a(f"{op} v{57+bb*2}, s{66+i}, v{vD+i*4+2}")
a("v_cvt_pk_bf16_f32 v56, v56, v57")
a("v_cvt_pk_bf16_f32 v58, v58, v59")
a("ds_write_b32 v13, v56")
a(f"ds_write_b32 v13, v58 offset:{OL_STR}")
if BAR:
    a("s_waitcnt lgkmcnt(0)")
    a("s_barrier")
else:
    set_flag(F_C)
if FLEARLY == 1:
    a(f"s_cmp_lg_u32 s{sW}, 3")
    a("s_cbranch_scc1 L_K_NOFL")
    if not BAR: lds_wait4(F_C, 60)
    a("s_mov_b64 exec, 1")
    a(f"buffer_store_dword v17, v{vZ}, {R('ws')}, s75 offen sc1")
    a("s_mov_b64 exec, -1")
    a.label("L_K_NOFL")
stamp(6)
if AO:
    a("s_branch L_FIN")
else:
    a(f"s_cmp_lg_u32 s{sS}, 0")
    a("s_cbranch_scc1 L_FIN")

if not AO:
    srd("b2"); srd("out")
    a("v_and_b32 v13, 7, v0")
    a("v_lshlrev_b32 v14, 2, v13")
    a(f"s_lshl_b32 s58, s{sHKV}, 7")
    a(f"s_lshl_b32 s59, s{sW}, 5")
    a("s_add_u32 s58, s58, s59")
    a(f"s_lshl_b32 s59, s{sB}, 10")
    a("s_add_u32 s59, s59, s58")
    a(f"buffer_load_dword v15, v14, {R('b2')}, s58 offen")
    a("s_lshl_b32 s60, s63, 2")
    a(f"s_add_u32 s60, s60, s{sW}")
    a("s_lshl_b32 s60, s60, 12")
    a(f"s_add_u32 s60, s60, {WS_OUTP}")
    a("v_lshlrev_b32 v16, 3, v13")
    a("v_and_b32 v17, 31, v0")
    a("v_lshlrev_b32 v17, 4, v17")
    a("v_mov_b32 v18, 0")
    a("v_mov_b32 v19, 0")
    a("v_mov_b32 v20, 1.0")
    a("v_cmp_gt_u32 vcc, 32, v0")
    a("v_cndmask_b32 v20, 0, v20, vcc")
    a("s_waitcnt vmcnt(0)")
    unpack(15, 22, 23)
    vD = 24
    def ld(i):
        if i < 3: a(f"buffer_load_dwordx4 v[{vD+i*4}:{vD+i*4+3}], v{vL16}, {R('ws')}, s60 offen offset:{i*1024} sc1")
        elif i == 3: a(f"buffer_load_dwordx4 v[{vD+12}:{vD+15}], v17, {R('ws')}, s60 offen offset:3072 sc1")
        else: a(f"buffer_load_dwordx2 v[40:41], v16, {R('ws')}, s60 offen offset:{NMLP*128} sc1")
    def tg(i): return [vD+i*4+1, vD+i*4+3] if i < 4 else [41]
    def cons(i):
        if i < 3:
            a(f"v_add_f32 v18, v18, v{vD+i*4}")
            a(f"v_add_f32 v19, v19, v{vD+i*4+2}")
        elif i == 3:
            a(f"v_fmac_f32 v18, v20, v{vD+12}")
            a(f"v_fmac_f32 v19, v20, v{vD+14}")
        else:
            unpack(40, 42, 43)
    if E3F:
        a(f"s_lshr_b32 s61, s{sB}, {LM}")
        if NS == 2:
            a("s_lshl_b32 s61, s61, 1")
            a(f"s_lshr_b32 s62, s{sHKV}, 2")
            a("s_add_u32 s61, s61, s62")
        a("s_lshl_b32 s61, s61, 12")
        a(f"s_add_u32 s61, s61, {WS_RF}")
        a(f"v_min_u32 v44, {NMLP-1}, v0")
        a("v_lshlrev_b32 v44, 7, v44")
        if P1R:
            a(f"s_cmp_lg_u32 s{sW}, 0")
            a("s_cbranch_scc1 L_RF_OK")
        a.label("L_RF")
        a(f"buffer_load_dword v45, v44, {R('ws')}, s61 offen sc1")
        budget()
        a("s_waitcnt vmcnt(0)")
        a(f"v_cmp_eq_u32 vcc, s{sTAG}, v45")
        a("s_cmp_eq_u64 vcc, -1")
        a("s_cbranch_scc1 L_RF_OK")
        if SL_RED: a(f"s_sleep {SL_RED}")
        a("s_branch L_RF")
        a.label("L_RF_OK")
        if P1R: a("s_barrier")
        if SL_E3: a(f"s_sleep {SL_E3}")
        stamp(11)
    a.label("L_RG")
    for i in range(5): ld(i)
    budget()
    a("s_waitcnt vmcnt(0)")
    tags_ok([t for i in range(5) for t in tg(i)], 44, 45)
    if SL_RR:
        a("s_cbranch_scc1 L_RG_OK")
        a(f"s_sleep {SL_RR}")
        a("s_branch L_RG")
        a.label("L_RG_OK")
    else:
        a("s_cbranch_scc0 L_RG")
    for i in range(5): cons(i)
    stamp(9)
    a(f"v_add_f32_dpp v18, v18, v18 row_ror:8 {DPPM}")
    a(f"v_add_f32_dpp v19, v19, v19 row_ror:8 {DPPM}")
    for sw in ("16", "32"):
        a("v_mov_b32 v24, v18")
        a("v_mov_b32 v25, v19")
        a(f"v_permlane{sw}_swap_b32 v18, v24")
        a(f"v_permlane{sw}_swap_b32 v19, v25")
        a("v_add_f32 v18, v18, v24")
        a("v_add_f32 v19, v19, v25")
    rnd2(18, 19, 24)
    a("v_add_f32 v18, v18, v22")
    a("v_add_f32 v19, v19, v23")
    rnd2(18, 19, 24)
    a("v_add_f32 v18, v18, v42")
    a("v_add_f32 v19, v19, v43")
    a("v_cvt_pk_bf16_f32 v18, v18, v19")
    a("s_mov_b64 exec, 0xff")
    a(f"buffer_store_dword v18, v14, {R('out')}, s59 offen")
    a("s_mov_b64 exec, -1")
    stamp(10)
    a("s_cmp_lg_u32 s2, 0")
    a("s_cbranch_scc1 L_FIN")
    a(f"s_cmp_lg_u32 s{sW}, 0")
    a("s_cbranch_scc1 L_FIN")
    a(f"v_mov_b32 v34, s{sTAG}")
    a("s_mov_b64 exec, 1")
    a(f"buffer_store_dword v34, v{vZ}, {R('ws')}, 0 offen sc1")
    a("s_mov_b64 exec, -1")
    a("s_branch L_FIN")

def mlp_decode():
    a(f"s_lshl_b32 s62, s{sB}, 1")
    a(f"s_add_u32 s62, s62, s{sS}")
    a("s_sub_u32 s62, s62, 2")
    a("s_lshr_b32 s63, s62, 2")
    a("s_lshl_b32 s63, s63, 3")
    a(f"s_add_u32 s63, s63, s{sHKV}")
    a("s_and_b32 s62, s62, 3")

def w2_common():
    RB = 1024 // NS
    a(f"s_mul_i32 s60, s{sW}, {2*NTW}")
    for nt_ in range(NTW):
        tr_swz_addr(20+nt_, RB, 60, nt_, 16, 17)
    a(f"v_and_b32 v16, {MM-1}, v0")
    a(f"v_mul_u32_u24 v{vH1R}, {H1_STR}, v16")
    a(f"v_lshl_add_u32 v{vH1R}, v{vG}, 4, v{vH1R}")
    a(f"v_add_u32 v{vH1R}, {L_H1}, v{vH1R}")
    a("s_mov_b32 s94, 0xcccccccc"); a("s_mov_b32 s95, 0xcccccccc")
    a("s_mov_b32 s96, 0xf0f0f0f0"); a("s_mov_b32 s97, 0xf0f0f0f0")
    a("s_mov_b32 s98, 0xff00ff00"); a("s_mov_b32 s99, 0xff00ff00")
    a(f"v_mov_b32 v161, s{sTAG}")
    if AO:
        srd("b2"); srd("out")
        CW = 64 // NS; RS = CW*4 + 16; SH = 6 - LM
        a(f"s_mul_i32 s60, s{sW}, {MM*RS}")
        a(f"s_add_u32 s60, s60, {L_RL}")
        a(f"v_and_b32 v16, {MM-1}, v0")
        a(f"v_mul_u32_u24 v52, {RS}, v16")
        a(f"v_bfe_u32 v17, v0, {LM}, {3-LM}")
        a("v_lshl_add_u32 v52, v17, 6, v52")
        a(f"v_lshl_add_u32 v52, v{vG}, 4, v52")
        a("v_add_u32 v52, s60, v52")
        a(f"v_lshrrev_b32 v16, {SH}, v0")
        a(f"v_bfe_u32 v17, v0, 2, {SH-2}")
        a("v_and_b32 v18, 3, v0")
        a("v_lshl_add_u32 v17, v17, 3, v18")
        a(f"v_mul_u32_u24 v19, {RS}, v16")
        a("v_lshl_add_u32 v19, v17, 2, v19")
        a("v_add_u32 v19, s60, v19")
        a(f"v_mov_b32 v56, {C_ONE}")
        a(f"v_mov_b32 v57, {C_ZERO}")
        a("v_cmp_eq_u32 s[68:69], 3, v18")
        a("v_cmp_eq_u32 s[70:71], 2, v18")
        for j in range(3):
            a(f"v_add_u32 v{53+j}, {j*12}, v19")
            a(f"v_cndmask_b32 v{53+j}, v{53+j}, v56, s[68:69]")
        a("v_cndmask_b32 v55, v55, v57, s[70:71]")
        a("s_not_b64 s[68:69], s[68:69]")
        a("s_andn2_b64 s[70:71], s[68:69], s[70:71]")
        a(f"s_and_b32 s60, s62, {NS-1}")
        a(f"s_mul_i32 s60, s60, {1024//NS}")
        a(f"s_mul_i32 s72, s{sW}, {CW*2}")
        a("s_add_u32 s60, s60, s72")
        a("v_mul_u32_u24 v56, 3072, v16")
        a(f"v_and_b32 v57, {(1<<SH)-1}, v0")
        a("v_lshl_add_u32 v56, v57, 2, v56")
        a(f"s_lshr_b32 s72, s62, {LM-1}")
        a(f"s_mul_i32 s64, s72, {MM*3072}")
        a("s_add_u32 s64, s64, s60")
        a(f"s_add_u32 s64, s64, {WS_OACC}")
        a("v_lshl_add_u32 v57, v17, 1, s60")
        a("v_lshl_add_u32 v58, v16, 10, v57")
        a(f"v_mul_u32_u24 v59, {Y_STR}, v16")
        a(f"v_add3_u32 v59, v59, v57, v{vSC}")
        a(f"s_lshl_b32 s72, s72, {10+LM}")
        for j in range(3):
            a(f"buffer_load_ushort v{60+j}, v57, {R('b2')}, 0 offen offset:{j*6}")
    lds_wait4(F_W2, 16, sleep=1)
    for nt_ in range(NTW):
        for kk in range(2):
            for hh in range(2):
                r = vA2 + (nt_*2+kk)*4 + hh*2
                a(f"ds_read_b64_tr_b16 v[{r}:{r+1}], v{20+nt_} offset:{kk*32*RB + hh*4*RB}")
        if nt_ % 2 == 1: a("s_waitcnt lgkmcnt(0)")
    stamp(10)

def flags_poll():
    a("v_lshlrev_b32 v48, 7, v0")
    a(f"s_mov_b32 s58, {WS_FL}")
    a(f"s_mov_b32 s59, {WS_FL+8192}")
    Lf = a.newlabel("FL")
    a.label(Lf)
    a(f"buffer_load_dword v49, v48, {R('ws')}, s58 offen sc1")
    a(f"buffer_load_dword v50, v48, {R('ws')}, s59 offen sc1")
    budget()
    a("s_waitcnt vmcnt(0)")
    a(f"v_cmp_eq_u32 vcc, s{sTAG}, v49")
    a(f"v_cmp_eq_u32 s[56:57], s{sTAG}, v50")
    a("s_and_b64 vcc, vcc, s[56:57]")
    a("s_cmp_eq_u64 vcc, -1")
    a(f"s_cbranch_scc1 {Lf}_ok")
    a(f"s_sleep {SL_POLL}")
    a(f"s_branch {Lf}")
    a.label(f"{Lf}_ok")
    if SL_GO: a(f"s_sleep {SL_GO}")

def h_gather():
    Lh = a.newlabel("MH")
    a.label(Lh)
    for j in range(3):
        a(f"buffer_load_dwordx4 v[{24+j*4}:{27+j*4}], v{vL16}, {R('ws')}, s60 offen offset:{j*1024} sc1")
    budget()
    a("s_waitcnt vmcnt(2)")
    a("v_cmp_eq_f32 s[56:57], s61, v27")
    a("s_waitcnt vmcnt(1)")
    a("v_cmp_eq_f32 vcc, s61, v31")
    a("s_and_b64 s[56:57], s[56:57], vcc")
    a("s_waitcnt vmcnt(0)")
    a("v_cmp_eq_f32 vcc, s61, v35")
    a("s_and_b64 s[56:57], s[56:57], vcc")
    a("s_cmp_eq_u64 s[56:57], -1")
    a(f"s_cbranch_scc1 {Lh}_ok")
    a(f"s_sleep {SL_HR}")
    a(f"s_branch {Lh}")
    a.label(f"{Lh}_ok")
    stamp(5)
    src = [24, 25, 26, 28, 29, 30, 32, 33]
    for i in range(0, 8, 2):
        a(f"v_cvt_pk_bf16_f32 v{36+i//2}, v{src[i]}, v{src[i+1]}")
    for i in range(4):
        unpack(36+i, 24+2*i, 25+2*i)
    for i in range(0, 8, 2):
        a(f"v_pk_add_f32 v[{24+i}:{25+i}], v[{24+i}:{25+i}], v[{16+i}:{17+i}]")
    for i in range(0, 8, 2):
        a(f"v_cvt_pk_bf16_f32 v{44+i//2}, v{24+i}, v{25+i}")

a.label("L_K_NOTWO")
a(f"s_waitcnt vmcnt({1+FE1})")
set_flag(F_VK)
mlp_decode()
assert AO
a(f"s_cmp_ge_u32 s63, {NMLP}")
a("s_cbranch_scc1 L_FIN")
a.label("L_K_MLP")
srd("w1"); srd("b1")
src128(20, 3584, 16)
a("s_lshl_b32 s58, s63, 7")
a(f"s_lshl_b32 s60, s{sW}, 5")
a("s_add_u32 s60, s60, s58")
a(f"v_lshlrev_b32 v16, 3, v{vG}")
a(f"buffer_load_dwordx2 v[14:15], v16, {R('b1')}, s60 offen")
a(f"s_mul_i32 s59, s{sW}, {32*3584}")
a("s_add_u32 s58, s59, s58")
a(f"s_lshl_b32 s61, s{sW}, 12")
a(f"s_add_u32 s61, s61, {L_K}")
W1PRIO = int(opts.get("w1prio", 0))
for q in range(4):
    if (W1AFTER == 1 and q == 0) or (W1AFTER >= 2 and q == W1AFTER - 1):
        lds_wait4(F_V, 16, minval=9, sleep=2)
        if W1PRIO: a(f"s_setprio {W1PRIO}")
    a(f"s_add_u32 s60, s62, {q}")
    a("s_and_b32 s60, s60, 3")
    a(f"s_mul_i32 s59, s60, {128*3584}")
    a("s_add_u32 s59, s59, s58")
    a("s_lshl_b32 s60, s60, 14")
    a("s_add_u32 m0, s60, s61")
    dma(4, lambda i: 20 + (i & 1), "w1", 59, 8*3584, pol=MLPP)
stamp(4)
a(f"v_and_b32 v16, {MM-1}, v0")
a(f"v_mul_u32_u24 v{vYR}, {Y_STR}, v16")
a(f"v_lshl_add_u32 v{vYR}, v{vG}, 4, v{vYR}")
a(f"v_add_u32 v{vYR}, {L_Y}, v{vYR}")
a(f"v_mul_u32_u24 v{vH1W}, {H1_STR}, v16")
a(f"v_lshl_add_u32 v{vH1W}, v{vG}, 3, v{vH1W}")
a(f"s_lshl_b32 s60, s{sW}, 5")
a(f"s_add_u32 s60, s60, {L_H1}")
a(f"v_add_u32 v{vH1W}, s60, v{vH1W}")
a(f"v_lshlrev_b32 v{vABR}, 4, v16")
a(f"v_add_u32 v{vABR}, {L_AB}, v{vABR}")
k0 = 0.7978845608028654; k1 = 0.044715; l2e = 1.4426950408889634
a(f"s_mov_b32 s67, {f2u(-2*k0*k1*l2e):#x}")
a(f"v_mov_b32 v{vGC}, {f2u(-2*k0*l2e):#x}")
a(f"s_lshl_b32 s60, s{sW}, 1")
tr_swz_addr(13, 128, 60, 0, 16, 17, base_imm=L_K)
w2_common()
a("v_mov_b32 v16, 2")
for i in range(4): a(f"v_mov_b32 v{24+i}, 0x3f803f80")
a("s_waitcnt vmcnt(0)")
if int(opts.get("dbgw", 0)): stamp(2)
set_flag(F_W, 16)
unpack(14, vB1, vB1+1); unpack(15, vB1+2, vB1+3)
lds_wait4(F_W, 16, minval=2)
def w1rd(kk):
    for hh in range(2):
        a(f"ds_read_b64_tr_b16 v[{vA1+kk*4+hh*2}:{vA1+kk*4+hh*2+1}], v13 offset:{kk*4096+hh*512}")
for kk in range(7): w1rd(kk)
for kk in range(16):
    a(f"s_waitcnt lgkmcnt({12 if kk < 10 else (15-kk)*2})")
    c = "0" if kk == 0 else f"v[{vCS}:{vCS+3}]"
    a(f"v_mfma_f32_16x16x32_bf16 v[{vCS}:{vCS+3}], v[{vA1+kk*4}:{vA1+kk*4+3}], v[24:27], {c}")
    if kk + 7 < 16: w1rd(kk+7)
if GD:
    m0_, m1_ = (("s[94:95]", "s[96:97]") if MM == 2 else ("s[96:97]", "s[98:99]"))
    for base in (vB1, vCS):
        a(f"v_cndmask_b32 v29, v{base}, v{base+1}, {m0_}")
        a(f"v_cndmask_b32 v30, v{base+2}, v{base+3}, {m0_}")
        a(f"v_cndmask_b32 v{base}, v29, v30, {m1_}")
    a(f"v_bfe_u32 v29, v0, {LM}, 2")
    a(f"v_lshl_add_u32 v{vH1W}, v29, 1, v{vH1W}")
stamp(11)
a("s_setprio 2")
if BAR:
    a("s_barrier")
else:
    Ly = a.newlabel("WY")
    a.label(Ly)
    a(f"ds_read_b64 v[16:17], v{vSC} offset:{F_Y-SC}")
    budget()
    a("s_waitcnt lgkmcnt(0)")
    a("v_and_b32 v16, v16, v17")
    a("v_readfirstlane_b32 s54, v16")
    a("s_cmp_eq_u32 s54, 0")
    a(f"s_cbranch_scc1 {Ly}")
stamp(5)
if E3F == 1 and not AO:
    a(f"s_cmp_lg_u32 s{sW}, 0")
    a("s_cbranch_scc1 L_E3F")
    a("s_mov_b64 exec, 1")
    a(f"buffer_store_dword v161, v{vZ}, {R('ws')}, s65 offen sc1")
    a("s_mov_b64 exec, -1")
    a.label("L_E3F")
vB = 164
Bq = [200+4*i for i in range(8)] + [164+4*i for i in range(7)] + [24]
for k2 in range(15):
    a(f"ds_read_b128 v[{Bq[k2]}:{Bq[k2]+3}], v{vYR} offset:{k2*64}")
for k2 in range(16):
    if k2 == 1:
        a(f"ds_read_b128 v[{Bq[15]}:{Bq[15]+3}], v{vYR} offset:{15*64}")
    a(f"s_waitcnt lgkmcnt({14 if k2 == 0 else 15-k2})")
    c = "0" if k2 == 0 else "v[16:19]"
    a(f"v_mfma_f32_16x16x32_bf16 v[16:19], v[{vA1+k2*4}:{vA1+k2*4+3}], v[{Bq[k2]}:{Bq[k2]+3}], {c}")
stamp(6)
if E3F == 2 and not AO:
    a(f"s_cmp_lg_u32 s{sW}, 0")
    a("s_cbranch_scc1 L_E3F")
    a("s_mov_b64 exec, 1")
    a(f"buffer_store_dword v161, v{vZ}, {R('ws')}, s65 offen sc1")
    a("s_mov_b64 exec, -1")
    a.label("L_E3F")
def sel4(dst, src):
    m0_, m1_ = (("s[94:95]", "s[96:97]") if MM == 2 else ("s[96:97]", "s[98:99]"))
    a(f"v_cndmask_b32 v29, v{src}, v{src+1}, {m0_}")
    a(f"v_cndmask_b32 v30, v{src+2}, v{src+3}, {m0_}")
    a(f"v_cndmask_b32 v{dst}, v29, v30, {m1_}")
a(f"ds_read_b96 v[20:22], v{vABR}")
if GD: sel4(28, 16)
a("s_waitcnt lgkmcnt(0)")
a("v_cmp_eq_u32 vcc, 1, v22")
a("s_cmp_eq_u64 vcc, -1")
a("s_cbranch_scc1 L_AB_OK")
Lab = a.newlabel("AB")
a.label(Lab)
a(f"ds_read_b96 v[20:22], v{vABR}")
budget()
a("s_waitcnt lgkmcnt(0)")
a("v_cmp_eq_u32 vcc, 1, v22")
a("s_cmp_eq_u64 vcc, -1")
a(f"s_cbranch_scc0 {Lab}")
a.label("L_AB_OK")
if GD:
    a("v_mul_f32 v16, v20, v28")
    a(f"v_fmac_f32 v16, v21, v{vCS}")
    rnd1(16, 20)
    a(f"v_add_f32 v16, v16, v{vB1}")
    rnd1(16, 20)
    a("v_mul_f32 v20, v16, v16")
    a(f"v_fma_f32 v20, v20, s67, v{vGC}")
    a("v_mul_f32 v20, v20, v16")
    a("v_exp_f32 v20, v20")
    a("v_add_f32 v20, 1.0, v20")
    a("v_rcp_f32 v20, v20")
    a("v_mul_f32 v16, v16, v20")
    a("v_cvt_pk_bf16_f32 v16, v16, v16")
    a(f"ds_write_b16 v{vH1W}, v16")
else:
    for i in range(4):
        a(f"v_mul_f32 v{16+i}, v20, v{16+i}")
    for i in range(4):
        a(f"v_fmac_f32 v{16+i}, v21, v{vCS+i}")
    rnd2(16, 17, 20); rnd2(18, 19, 21)
    for i in range(4):
        a(f"v_add_f32 v{16+i}, v{16+i}, v{vB1+i}")
    rnd2(16, 17, 20); rnd2(18, 19, 21)
    for i in range(4):
        a(f"v_mul_f32 v{20+i}, v{16+i}, v{16+i}")
    for i in range(4):
        a(f"v_fma_f32 v{20+i}, v{20+i}, s67, v{vGC}")
    for i in range(4):
        a(f"v_mul_f32 v{20+i}, v{20+i}, v{16+i}")
    for i in range(4):
        a(f"v_exp_f32 v{20+i}, v{20+i}")
    for i in range(4):
        a(f"v_add_f32 v{20+i}, 1.0, v{20+i}")
    for i in range(4):
        a(f"v_rcp_f32 v{20+i}, v{20+i}")
    for i in range(4):
        a(f"v_mul_f32 v{16+i}, v{16+i}, v{20+i}")
    a("v_cvt_pk_bf16_f32 v16, v16, v17")
    a("v_cvt_pk_bf16_f32 v17, v18, v19")
    a(f"ds_write_b64 v{vH1W}, v[16:17]")
if BAR: a("s_waitcnt lgkmcnt(0)")
else: set_flag(F_D)
if E3F == 3 and not AO:
    a(f"s_cmp_lg_u32 s{sW}, 0")
    a("s_cbranch_scc1 L_E3F")
    a("s_mov_b64 exec, 1")
    a(f"buffer_store_dword v161, v{vZ}, {R('ws')}, s65 offen sc1")
    a("s_mov_b64 exec, -1")
    a.label("L_E3F")
stamp(9)
a("s_branch L_MLP_W2")
a.label("L_MLP_W2B")
if BAR: a("s_barrier")
a.label("L_MLP_W2")
if BAR: a("s_barrier")
else: lds_wait4(F_D, 20)
a(f"ds_read_b128 v[16:19], v{vH1R}")
a(f"ds_read_b128 v[20:23], v{vH1R} offset:64")
vO = 24
for kk in range(2):
    a(f"s_waitcnt lgkmcnt({1-kk})")
    for nt_ in range(NTW):
        r = vA2 + (nt_*2+kk)*4
        c = "0" if kk == 0 else f"v[{vO+nt_*4}:{vO+nt_*4+3}]"
        a(f"v_mfma_f32_16x16x32_bf16 v[{vO+nt_*4}:{vO+nt_*4+3}], v[{r}:{r+3}], v[{16+kk*4}:{19+kk*4}], {c}")
if AO:
    if MM == 2:
        for i in range(4):
            a(f"v_cndmask_b32 v{40+i}, v{vO+i}, v{vO+4+i}, s[94:95]")
            a(f"v_cndmask_b32 v{44+i}, v{vO+8+i}, v{vO+12+i}, s[94:95]")
        for i in range(4):
            a(f"v_cndmask_b32 v{40+i}, v{40+i}, v{44+i}, s[96:97]")
    else:
        for i in range(4):
            a(f"v_cndmask_b32 v{40+i}, v{vO+i}, v{vO+4+i}, s[96:97]")
    a("ds_write_b128 v52, v[40:43]")
    for j in range(3):
        a(f"ds_read_b32 v{44+j}, v{53+j}")
    for j in range(3):
        a(f"s_waitcnt lgkmcnt({2-j})")
        a(f"v_mov_b32 v{48+j}, v{44+j}")
        a(f"buffer_atomic_add_f32 v{48+j}, v56, {R('ws')}, s64 offen offset:{j*1024} sc0")
    stamp(7)
    for j in range(3):
        a(f"ds_read_u16 v{40+j}, v59 offset:{L_Y-SC + j*6}")
    a("s_waitcnt vmcnt(3)")
    for j in range(3):
        a(f"v_lshlrev_b32 v{60+j}, 16, v{60+j}")
    a(f"s_mov_b32 s60, {f2u(float(NMLP-1)):#x}")
    a("s_waitcnt lgkmcnt(0)")
    for j in range(3):
        a(f"v_lshlrev_b32 v{40+j}, 16, v{40+j}")
    for j in range(3):
        a(f"s_waitcnt vmcnt({2 if j == 0 else 2})")
        a(f"v_mov_b32_dpp v24, v{48+j} quad_perm:[3,3,3,3] {DPPM}")
        a(f"v_add_f32 v{48+j}, v{48+j}, v{44+j}")
        a("v_cmp_eq_f32 vcc, s60, v24")
        rnd1(48+j, 25)
        a(f"v_add_f32 v{48+j}, v{48+j}, v{60+j}")
        rnd1(48+j, 25)
        a(f"v_add_f32 v{48+j}, v{48+j}, v{40+j}")
        a(f"v_cvt_pk_bf16_f32 v{48+j}, v{48+j}, v{48+j}")
        a(f"s_and_b64 vcc, vcc, {'s[68:69]' if j < 2 else 's[70:71]'}")
        a(f"v_cndmask_b32 v{26+j}, v{vBIG}, v58, vcc")
        a(f"buffer_store_short v{48+j}, v{26+j}, {R('out')}, s72 offen offset:{j*6}")
    stamp(1)
    a(f"s_cmp_lg_u32 s2, 16")
    a("s_cbranch_scc1 L_FIN")
    a(f"s_cmp_lg_u32 s{sW}, 0")
    a("s_cbranch_scc1 L_FIN")
    a("s_mov_b64 exec, 1")
    a(f"buffer_store_dword v161, v{vZ}, {R('ws')}, 0 offen sc1")
    a("s_mov_b64 exec, -1")
    a("s_branch L_FIN")
else:
    if MM == 2:
        for nt_ in range(4):
            a(f"v_cndmask_b32 v{40+nt_*2}, v{vO+nt_*4}, v{vO+nt_*4+2}, s[94:95]")
            a(f"v_cndmask_b32 v{41+nt_*2}, v{vO+nt_*4+1}, v{vO+nt_*4+3}, s[94:95]")
        for q in range(2):
            a(f"v_cndmask_b32 v{40+q*4}, v{40+q*4}, v{42+q*4}, s[96:97]")
            a(f"v_cndmask_b32 v{41+q*4}, v{41+q*4}, v{43+q*4}, s[96:97]")
        a("v_cndmask_b32 v160, v40, v44, s[98:99]")
        a("v_cndmask_b32 v162, v41, v45, s[98:99]")
    else:
        for nt_ in range(2):
            a(f"v_cndmask_b32 v{40+nt_*2}, v{vO+nt_*4}, v{vO+nt_*4+2}, s[96:97]")
            a(f"v_cndmask_b32 v{41+nt_*2}, v{vO+nt_*4+1}, v{vO+nt_*4+3}, s[96:97]")
        a("v_cndmask_b32 v160, v40, v42, s[98:99]")
        a("v_cndmask_b32 v162, v41, v43, s[98:99]")
    a(f"buffer_store_dwordx4 v[160:163], v{vSTO}, {R('ws')}, s64 offen sc1")

a.label("L_V_NOTWO")
set_flag(F_V, 14)
mlp_decode()
a(f"s_cmp_ge_u32 s63, {NMLP}")
a("s_cbranch_scc1 L_FIN")
a.label("L_V_MLP")
srd("w2")
a(f"s_lshr_b32 s60, s62, {LM-1}")
a(f"s_lshl_b32 s60, s60, {LM}")
a(f"s_add_u32 s66, s60, s{sAW}")
a("s_and_b32 s66, s66, 7")
a("s_lshl_b32 s60, s66, 10")
a(f"buffer_load_dwordx4 v[{vX}:{vX+3}], v{vL16}, {R('x')}, s60 offen")
if MM == 2:
    a("s_lshl_b32 s58, s63, 16")
    a(f"s_lshl_b32 s61, s{sAW}, 12")
    a("s_add_u32 s58, s58, s61")
    a(f"s_lshr_b32 s60, s{sAW}, 1")
    a("s_lshl_b32 s60, s60, 3")
    for i in range(4):
        a(f"v_xor_b32 v{20+i}, {i*2}, v0")
        a(f"v_xor_b32 v{20+i}, s60, v{20+i}")
        a(f"v_lshlrev_b32 v{20+i}, 4, v{20+i}")
    lds_wait4(F_V, 16, minval=9)
    for q in range(4):
        a(f"s_add_u32 s60, s62, {q}")
        a("s_and_b32 s60, s60, 3")
        a("s_lshl_b32 s60, s60, 14")
        a("s_add_u32 s59, s60, s58")
        a("s_add_u32 m0, s60, s61")
        dma(4, lambda i: 20 + i, "w2", 59, 1024, pol=MLPP)
else:
    a("s_lshl_b32 s58, s63, 16")
    a(f"s_lshl_b32 s61, s{sAW}, 14")
    a("s_add_u32 s58, s58, s61")
    a("s_and_b32 s60, s62, 1")
    a("s_lshl_b32 s60, s60, 9")
    a("s_add_u32 s58, s58, s60")
    a(f"s_lshl_b32 s61, s{sAW}, 13")
    a("v_lshrrev_b32 v16, 5, v0")
    a("v_and_b32 v17, 31, v0")
    for i in range(2):
        a(f"v_lshlrev_b32 v{22+i}, 1, v16")
        a(f"v_xor_b32 v{22+i}, {i*4}, v{22+i}")
        a(f"v_xor_b32 v{22+i}, v17, v{22+i}")
        a(f"v_lshlrev_b32 v{22+i}, 4, v{22+i}")
        a(f"v_lshl_add_u32 v{22+i}, v16, 10, v{22+i}")
    lds_wait4(F_V, 16, minval=9)
    for q in range(2):
        a("s_lshr_b32 s60, s62, 1")
        a(f"s_add_u32 s60, s60, {q}")
        a("s_and_b32 s60, s60, 1")
        a("s_lshl_b32 s59, s60, 7")
        a("v_xor_b32 v20, s59, v22")
        a("v_xor_b32 v21, s59, v23")
        a("s_lshl_b32 s59, s60, 13")
        a("s_add_u32 s59, s59, s58")
        a("s_lshl_b32 s60, s60, 12")
        a("s_add_u32 m0, s60, s61")
        dma(4, lambda i: 20 + (i & 1), "w2", 59, 2048, pol=MLPP)
a("s_waitcnt vmcnt(0)")
set_flag(F_W2)
w2_common()
if MM == 2:
    a(f"s_cmp_ge_u32 s{sAW}, 2")
    a("s_cbranch_scc1 L_MLP_W2B")
a("s_setprio 3")
a("s_mul_i32 s60, s66, 3072")
a(f"s_add_u32 s60, s60, {WS_HACC}")
a("s_mov_b32 s61, 0x42000000")
for i in range(4):
    unpack(vX+i, 16+2*i, 17+2*i)
a(f"s_mul_i32 s58, s{sAW}, {Y_STR}")
a(f"s_add_u32 s58, s58, {L_Y}")
a(f"v_add_u32 v13, s58, v{vL16}")
a(f"s_lshl_b32 s58, s{sAW}, 4")
a(f"v_add_u32 v14, s58, v{vSC}")
if P1M:
    a(f"s_cmp_lg_u32 s{sAW}, 0")
    a("s_cbranch_scc1 L_V_GOW")
    flags_poll()
    a(f"ds_write_b32 v{vSC}, v{vONE} offset:{F_GO-SC}")
    a("s_branch L_V_GO")
    a.label("L_V_GOW")
    lds_wait1(F_GO, 48)
    a.label("L_V_GO")
else:
    flags_poll()
stamp(11)
h_gather()
a("ds_write_b128 v13, v[44:47]")
if BAR:
    a("s_waitcnt lgkmcnt(0)")
    a("s_barrier")
else:
    set_flag(F_Y)
for i in range(4):
    unpack(44+i, 24+2*i, 25+2*i)
row_stats(24, 32)
a("v_mov_b32 v34, v32")
a("v_mov_b32 v35, v33")
rnd2(34, 35, 36)
sd_of(35, 36)
rcp_nr(36, 35, 37)
a("v_sub_f32 v32, v32, v34")
a("v_mul_f32 v32, v32, v36")
a("v_mul_f32 v33, v33, v36")
a("v_mul_f32 v33, v33, v36")
rnd2(32, 33, 37)
sd_of(33, 37)
rcp_nr(37, 33, 38)
a("v_mul_f32 v40, v36, v37")
a("v_fma_f32 v41, v32, v35, v34")
a("v_mul_f32 v41, -v41, v40")
a("v_mov_b32 v42, 1")
a(f"ds_write_b96 v14, v[40:42] offset:{L_AB-SC}")
stamp(6)
a("s_branch L_MLP_W2")

a.label("L_FIN")
if STAMPS:
    stamp(8)
    if CAL:
        cw, cs = map(int, CAL.split(":"))
        a(f"s_cmp_lg_u32 s2, {CALWG}")
        a("s_cbranch_scc1 L_END")
        a(f"s_cmp_lg_u32 s{sW}, {cw}")
        a("s_cbranch_scc1 L_END")
        a(f"v_readfirstlane_b32 s60, v{240+cs}")
        a("v_readfirstlane_b32 s61, v240")
        a("s_sub_u32 s60, s60, s61")
        a("s_lshl_b32 s60, s60, 1")
        a("s_add_u32 s60, s60, 4000")
        a.label("L_CAL")
        a("s_memrealtime s[90:91]")
        a("s_waitcnt lgkmcnt(0)")
        a("s_sub_u32 s62, s90, s61")
        a("s_cmp_lt_u32 s62, s60")
        a("s_cbranch_scc1 L_CAL")
        a("s_branch L_END")
    a("s_lshl_b32 s60, s2, 3")
    a(f"s_add_u32 s60, s60, s{sW}")
    a("s_mul_i32 s60, s60, 48")
    a(f"s_add_u32 s60, s60, {WS_STAMP}")
    a("s_mov_b64 exec, 1")
    for i in range(3):
        a(f"buffer_store_dwordx4 v[{240+4*i}:{243+4*i}], v{vZ}, {R('ws')}, s60 offen offset:{16*i}")
    if DBGST:
        a("v_not_b32 v252, v240")
        for i in range(13):
            a(f"global_atomic_umax v{vZ}, v{240+i}, s[86:87] offset:{4*i}")
a.label("L_END")
a("s_endpgm")

hdr = open("sequential_preLN__sliding_block_cached__mixer_channel_mlp__decode.s.ref").read().split("; Override launch")[0] + """; Design: one persistent launch, 256 workgroups (b, kv head, key quarter) x 8 waves, one per CU.
;  waves 0-3 stream K (+ first half of V) by LDS-DMA, do QK^T / softmax; waves 4-7 do LN1 + a K-quarter of the
;  q projection, the q exchange, the rest of V and P.V.  Quarters 0,1 then combine the splits and apply wo
;  (fp32 atomics into h accumulators with embedded arrival counts); quarters 2,3 run the MLP (LN folded into
;  the w1 epilogue) and finish with returning atomics: the last arriver of each granule writes the output.
;  Hand-offs are {data, tag} granules; tag = LCG step of word 0 of d_ws, stored back at the end of every launch.
"""
txt = a.text().replace("CODE_KB", "(L_END-L_VW)/1024")
open(out, "w").write(wrap(txt, 256, 512, LDS_BYTES, vgpr=256, header_comment=hdr))
```
